```python
import torch

def _softmax(x, axis=-1):
    return torch.softmax(x, dim=axis)
def _gelu(x):
    return torch.nn.functional.gelu(x, approximate="tanh")
def _silu(x):
    return torch.nn.functional.silu(x)
def _sigmoid(x):
    return torch.sigmoid(x)
def _layernorm(x, axis=-1, eps=1e-5):
    m = x.mean(dim=axis, keepdim=True)
    v = x.var(dim=axis, keepdim=True, unbiased=False)
    return (x - m) / torch.sqrt(v + eps)
def _scatter_add(tgt, idx, src, axis=0):
    return tgt.clone().index_add_(axis, idx, src)
def _segment_sum(src, seg, n):
    out = torch.zeros((n,) + src.shape[1:], dtype=src.dtype)
    return out.index_add_(0, seg, src)
def _pad(x, pw):
    flat = tuple(v for pair in reversed(pw) for v in pair)
    return torch.nn.functional.pad(x, flat)

kernel_name = 'gated_mix__gqa_block_cached__dense_activation_gelu__decode'

def setup_inputs():

    _w = (lambda a: (lambda t: t.to(torch.bfloat16) if t.is_floating_point() else t)(torch.as_tensor(a)))
    def _A_setup():
        B, Sq, D = 8, 1, 512
        Hq, Hkv, Sk, Dh = 32, 8, 4096, 128
        assert Hq % Hkv == 0, (Hq, Hkv)
        return {
            "x": _w((lambda *s: torch.randn(*s, dtype=torch.bfloat16) * 0.05)(B, Sq, D)),
            "k_cache": _w((lambda *s: torch.randn(*s, dtype=torch.bfloat16) * 6.4)(B, Hkv, Sk, Dh)),
            "v_cache": _w((lambda *s: torch.randn(*s, dtype=torch.bfloat16) * 0.2)(B, Hkv, Sk, Dh)),
            "wq": _w((lambda *s: torch.randn(*s, dtype=torch.bfloat16) * 6.4)(D, Hq * Dh) * (D ** -0.5)),
            "wo": _w((lambda *s: torch.randn(*s, dtype=torch.bfloat16) * 0.2)(Hq * Dh, D) * ((Hq * Dh) ** -0.5)),
        }
    _A_in = _A_setup()

    def _B_setup():
        B, S, D, F = 8, 1, 512, 1792
        return {
            "x": _w((lambda *s: torch.randn(*s, dtype=torch.bfloat16) * 0.05)(B, S, D)),
            "w1": _w((lambda *s: torch.randn(*s, dtype=torch.bfloat16) * 3.2)(D, F) * (D ** -0.5)),
            "b1": _w((lambda *s: torch.randn(*s, dtype=torch.bfloat16) * 3.2)(F) * 0.01),
            "w2": _w((lambda *s: torch.randn(*s, dtype=torch.bfloat16) * 0.2)(F, D) * (F ** -0.5)),
            "b2": _w((lambda *s: torch.randn(*s, dtype=torch.bfloat16) * 0.4)(D) * 0.01),
        }
    _B_in = _B_setup()

    return {
        "A_x": _A_in["x"],
        "A_k_cache": _A_in["k_cache"],
        "A_v_cache": _A_in["v_cache"],
        "A_wq": _A_in["wq"],
        "A_wo": _A_in["wo"],
        "B_x": _B_in["x"],
        "B_w1": _B_in["w1"],
        "B_b1": _B_in["b1"],
        "B_w2": _B_in["w2"],
        "B_b2": _B_in["b2"],
        "gate_w": _w((lambda *s: torch.randn(*s, dtype=torch.bfloat16) * 0.05)(512) * 16.0),
    }

def reference(A_x, A_k_cache, A_v_cache, A_wq, A_wo, B_x, B_w1, B_b1, B_w2, B_b2, gate_w):
    def _A_ref(x, k_cache, v_cache, wq, wo):
        B, Sq, D = x.shape
        Hq, Dh = 32, 128
        Hkv = k_cache.shape[1]
        rep = Hq // Hkv
        q = (lambda x, *d: x.permute(*d))((x @ wq).reshape(B, Sq, Hq, Dh), 0, 2, 1, 3)
        k = (lambda x, n, axis: torch.repeat_interleave(x, n, dim=axis))(k_cache, rep, axis=1)
        v = (lambda x, n, axis: torch.repeat_interleave(x, n, dim=axis))(v_cache, rep, axis=1)
        scores = torch.einsum("bhqd,bhkd->bhqk", q, k) * (Dh ** -0.5)
        p = _softmax(scores, axis=-1)
        o = torch.einsum("bhqk,bhkd->bhqd", p, v)
        return (lambda x, *d: x.permute(*d))(o, 0, 2, 1, 3).reshape(B, Sq, Hq * Dh) @ wo

    def _B_ref(x, w1, b1, w2, b2):
        h = torch.einsum("bsd,df->bsf", x, w1) + b1
        h = _gelu(h)
        return torch.einsum("bsf,fd->bsd", h, w2) + b2

    x = A_x
    g = _sigmoid((x * gate_w).sum(-1, keepdims=True))
    a = _A_ref(x, A_k_cache, A_v_cache, A_wq, A_wo)
    b = _B_ref(x, B_w1, B_b1, B_w2, B_b2)
    return g * a + (1 - g) * b
```

```python
import re

def _regs(tok):
    tok = tok.strip()
    tok = tok.lstrip('-')
    if tok.startswith('abs(') : tok = tok[4:-1]
    if tok.startswith('|'): tok = tok.strip('|')
    m = re.fullmatch(r'([vas])(\d+)', tok)
    if m: return {(m.group(1), int(m.group(2)))}
    m = re.fullmatch(r'([vas])\[(\d+):(\d+)\]', tok)
    if m: return {(m.group(1), i) for i in range(int(m.group(2)), int(m.group(3))+1)}
    if tok in ('vcc', 'vcc_lo', 'vcc_hi'): return {('s', 'vcc')}
    if tok == 'm0': return {('s', 'm0')}
    if tok in ('exec', 'exec_lo', 'exec_hi'): return {('s', 'exec')}
    return set()

TRANS = ('v_exp_', 'v_log_', 'v_rcp_', 'v_rsq_', 'v_sqrt_', 'v_sin_', 'v_cos_')

class Ins:
    def __init__(self, text):
        self.text = text
        t = text.split(';')[0].strip()
        self.op = t.split()[0]
        rest = t[len(self.op):].strip()
        ops = []; cur = ''; depth = 0
        for ch in rest:
            if ch == '[': depth += 1
            if ch == ']': depth -= 1
            if ch == ',' and depth == 0: ops.append(cur); cur = ''
            else: cur += ch
        if cur.strip(): ops.append(cur)
        toks = []
        for o in ops:
            o = o.strip()
            toks.append(o.split()[0] if o else o)
        self.toks = toks
        op = self.op
        self.mfma = op.startswith('v_mfma')
        self.valu = op.startswith('v_') and not self.mfma
        self.salu = op.startswith('s_')
        self.ds = op.startswith('ds_')
        self.vmem = op.startswith(('buffer_', 'global_'))
        self.dpp = '_dpp' in op or 'quad_perm' in t or 'row_' in t
        self.trans = op.startswith(TRANS)
        self.permlane = op.startswith('v_permlane')
        self.readlane = op.startswith(('v_readfirstlane', 'v_readlane'))
        self.ldsdma = self.vmem and (t.endswith(' lds') or ' lds ' in t or 'load_lds' in op)
        R = [_regs(x) for x in toks]
        self.dst = set(); self.src = set()
        allr = set().union(*R) if R else set()
        if self.mfma:
            self.dst = R[0]; self.A = R[1]; self.B = R[2]; self.C = R[3]; self.src = R[1] | R[2] | R[3]
        elif self.valu:
            if self.permlane:
                self.dst = R[0] | R[1]; self.src = R[0] | R[1]
            else:
                self.dst = R[0]; self.src = set().union(*R[1:]) if len(R) > 1 else set()
                if op.startswith(('v_add_co', 'v_sub_co', 'v_addc_co', 'v_subb_co')):
                    self.dst = R[0] | R[1]; self.src = set().union(*R[2:])
                if self.dpp or op.startswith(('v_fmac', 'v_dot2c')): self.src |= R[0]
                if op.startswith('v_cndmask') and len(R) == 3: self.src |= {('s', 'vcc')}
        elif self.ds:
            if op.startswith(('ds_read', 'ds_bpermute', 'ds_permute', 'ds_swizzle')):
                self.dst = R[0]; self.src = set().union(*R[1:])
            else:
                self.src = allr
        elif self.vmem:
            self.store = ('store' in op) or ('atomic' in op)
            if op in ('buffer_wbl2', 'buffer_inv'):
                pass
            elif self.store or self.ldsdma:
                self.src = allr
                if self.store:
                    self.data = R[0] if op.startswith('buffer_') else R[1]
                    self.wide = op.endswith(('x3', 'x4'))
            else:
                self.dst = R[0]; self.src = set().union(*R[1:])
            if self.ldsdma: self.src |= {('s', 'm0')}
        elif self.salu:
            if op.startswith(('s_cmp', 's_cbranch', 's_branch', 's_waitcnt', 's_barrier', 's_nop', 's_sleep', 's_endpgm', 's_setprio', 's_bitcmp')):
                self.src = allr
            else:
                self.dst = R[0] if R else set(); self.src = set().union(*R[1:]) if len(R) > 1 else set()
                if 'saveexec' in op: self.dst |= {('s', 'exec')}
        self.states = 1
        if op == 's_nop': self.states = int(toks[0], 0) + 1

def vg(s): return {r for r in s if r[0] in 'va'}
def sg(s): return {r for r in s if r[0] == 's'}

def need(p, c):
    n = 0
    if p.valu:
        w = vg(p.dst)
        if c.valu and c.dpp and (w & c.src): n = max(n, 2)
        if c.mfma and (w & c.src): n = max(n, 2)
        if c.valu and c.permlane and (w & c.src): n = max(n, 2)
        if c.valu and c.readlane and (w & c.src): n = max(n, 1)
        if p.trans and (c.valu or c.mfma) and (w & c.src): n = max(n, 1)
        ws = sg(p.dst)
        if ws:
            if c.valu and (ws & c.src): n = max(n, 2)
            if c.vmem and (ws & c.src): n = max(n, 5)
            if c.op.startswith('s_cbranch_vcc') and ('s', 'vcc') in ws: n = max(n, 1)
            if c.salu and (ws & c.src): n = max(n, 1)
    if p.mfma:
        D = p.dst
        if c.valu and (D & (c.src | c.dst)): n = max(n, 8)
        if (c.ds or c.vmem) and (D & (c.src | c.dst)): n = max(n, 8)
        if c.mfma:
            if D & (c.A | c.B): n = max(n, 8)
            if (D & c.C) and D != c.C: n = max(n, 6)
            if (D & c.dst) and D != c.C: n = max(n, 6)
        if c.valu and (p.C & c.dst): n = max(n, 3)
    if p.salu and ('s', 'm0') in p.dst and c.vmem and c.ldsdma: n = max(n, 1)
    if p.vmem and getattr(p, 'store', False) and getattr(p, 'wide', False):
        if (p.data & c.dst): n = max(n, 2)
    return n

class Asm:
    def __init__(self):
        self.lines = []
        self.hist = []
        self.snap = {}
        self.vm = []
        self.ctx = set()
        self.cond = None
        self.nops = 0
    def raw(self, s): self.lines.append(s)
    def c(self, s): self.lines.append('    ; ' + s)
    def _age(self, k):
        for h in self.hist: h[1] += k
        self.hist = [h for h in self.hist if h[1] < 12]
    def label(self, name):
        self.lines.append(name + ':')
        for snap in self.snap.get(name, []):
            self.hist += [[i, a] for i, a in snap]
    def __call__(self, text, name=None):
        ins = Ins(text)
        req = 0
        for p, age in self.hist:
            req = max(req, need(p, ins) - age)
        if req > 0:
            self.lines.append(f'    s_nop {req-1}')
            self.nops += 1
            self._age(req)
        self.lines.append('    ' + text)
        self._age(ins.states)
        self.hist.append([ins, 0])
        if ins.op.startswith(('s_cbranch', 's_branch')):
            self.snap.setdefault(ins.toks[0], []).append([(i, a) for i, a in self.hist])
            if ins.op == 's_branch': self.hist = []
        if ins.vmem and ins.op not in ('buffer_wbl2', 'buffer_inv'):
            self.vm.append((name, not getattr(ins, 'store', False), self.cond))
    def younger(self, name, ctx=()):
        idx = max(i for i, v in enumerate(self.vm) if v[0] == name)
        return sum(1 for v in self.vm[idx+1:] if v[1] and (v[2] is None or v[2] in ctx or v[2] == self.cond))
    def wait_vm(self, name, ctx=()):
        n = min(self.younger(name, ctx), 63)
        self(f's_waitcnt vmcnt({n})')
        return n
    def text(self): return '\n'.join(self.lines) + '\n'
```

```python
import sys, struct
from asmlib import Asm

NAME = "gated_mix__gqa_block_cached__dense_activation_gelu__decode_kernel"
HEADER = open("gated_mix__gqa_block_cached__dense_activation_gelu__decode.s.ref").read().split("; Override launch")[0]

def f2u(x): return struct.unpack('<I', struct.pack('<f', x))[0]
LOG2E = 1.4426950408889634

QBUF, HBUF, MLBUF, OBUF, PBUF, FBUF, STAMP = 0x10000, 0x30000, 0x40000, 0x50000, 0x100000, 0x200000, 0x400000
L_W, L_WO, L_X, L_ML, L_RED, L_END = 0, 0x10000, 0x14000, 0x16100, 0x17000, 0x19000

def gen(D=12, kv="nt", wf="nt", wgmap="kvh", stamps=False, KQ=None, QG=63):
    a = Asm()
    KQ = KQ if KQ is not None else D
    a.raw(HEADER + f"; @launch grid=(256,1,1) block=(256,1,1) lds={L_END}")
    a.raw('.amdgcn_target "amdgcn-amd-amdhsa--gfx950"')
    a.raw(".text"); a.raw(f".globl {NAME}"); a.raw(".p2align 8"); a.raw(f".type {NAME},@function"); a.raw(f"{NAME}:")
    nst = [0]
    def stamp():
        if stamps:
            a(f"s_memrealtime s[{80+2*nst[0]}:{81+2*nst[0]}]"); nst[0] += 1
    WAVE, KVH, BB, SP, ROLE, EE, TAG, SOFF, PITCH = "s52", "s53", "s54", "s55", "s56", "s57", "s58", "s59", "s60"
    SPIN = "s73"
    def srd(base, lo, hi, size):
        a(f"s_mov_b32 s{base}, {lo}"); a(f"s_mov_b32 s{base+1}, {hi}"); a(f"s_mov_b32 s{base+2}, {size}"); a(f"s_mov_b32 s{base+3}, 0x20000")
    def bf16r(dst, src):
        a(f"v_cvt_pk_bf16_f32 {dst}, {src}, {src}"); a(f"v_and_b32 {dst}, 0xffff0000, {dst}")
    WS = "s[48:51]"

    stamp()
    a("s_cmp_ge_u32 s2, 256"); a("s_cbranch_scc1 L_end")
    a("s_load_dwordx16 s[4:19], s[0:1], 0")
    a("s_load_dwordx8 s[20:27], s[0:1], 64")
    a("s_load_dwordx4 s[28:31], s[0:1], 96")
    a("v_lshrrev_b32 v4, 6, v0"); a("v_and_b32 v1, 63, v0"); a(f"v_readfirstlane_b32 {WAVE}, v4")
    if wgmap == "kvh":
        a(f"s_and_b32 {KVH}, s2, 7"); a(f"s_lshr_b32 {BB}, s2, 5")
    else:
        a(f"s_and_b32 {BB}, s2, 7"); a(f"s_lshr_b32 {KVH}, s2, 5")
    a(f"s_bfe_u32 {SP}, s2, 0x20003")
    a(f"s_lshl_b32 s61, {BB}, 5"); a(f"s_lshl_b32 s62, {KVH}, 2"); a("s_add_u32 s61, s61, s62"); a(f"s_add_u32 s61, s61, {SP}")
    a("s_lshl_b32 s61, s61, 18"); a(f"s_lshl_b32 s62, {WAVE}, 12"); a("s_add_u32 s61, s61, s62")
    a("v_and_b32 v2, 3, v1"); a("v_lshlrev_b32 v2, 4, v2")
    a("v_bfe_u32 v4, v1, 2, 2"); a("v_lshl_add_u32 v2, v4, 8, v2")
    a("v_lshrrev_b32 v4, 4, v1"); a("v_lshl_add_u32 v2, v4, 6, v2")
    a("v_add_u32 v2, s61, v2")
    a("v_lshl_add_u32 v3, v1, 4, s61")
    a(f"s_lshr_b32 {EE}, s2, 1"); a(f"s_mov_b32 {ROLE}, 0")
    a("s_bitcmp1_b32 s2, 0"); a("s_cbranch_scc1 L_role_odd")
    a(f"s_cmp_lt_u32 {EE}, 92"); a(f"s_cselect_b32 {ROLE}, 2, 0")
    a(f"s_cmp_lt_u32 {EE}, 64"); a(f"s_cselect_b32 {ROLE}, 1, {ROLE}")
    a("s_branch L_role_done")
    a.label("L_role_odd")
    a(f"s_cmp_lt_u32 {EE}, 112"); a(f"s_cselect_b32 {ROLE}, 3, 0")
    a.label("L_role_done")
    a(f"s_mov_b32 {SOFF}, 0")
    a("s_waitcnt lgkmcnt(0)")
    a(f"s_load_dword {TAG}, s[30:31], 0")
    srd(32, "s6", "s7", "0x4000000")
    srd(36, "s8", "s9", "0x4000000")
    srd(48, "s30", "s31", "0x10000000")

    def pace():
        a(f"s_waitcnt vmcnt({D-1})")
    cur = {"soff": 0}
    def kvload(which, n, paced=True):
        off = (n >> 2) * 16384; imm = (n & 3) * 1024
        if off != cur["soff"]:
            a(f"s_mov_b32 {SOFF}, {off}"); cur["soff"] = off
        if paced: pace()
        if which == "K":
            a(f"buffer_load_dwordx4 a[{4*n}:{4*n+3}], v2, s[32:35], {SOFF} offen offset:{imm} {kv}", name=f"K{n}")
        else:
            r = 96 + (n % 40) * 4
            a(f"buffer_load_dwordx4 v[{r}:{r+3}], v3, s[36:39], {SOFF} offen offset:{imm} {kv}", name=f"V{n}")

    a(f"s_sub_u32 s61, {ROLE}, 1"); a("s_cmp_lt_u32 s61, 2"); a("s_cbranch_scc0 L_qh_dma_done")
    a.cond = "QH"
    a(f"s_cmp_eq_u32 {ROLE}, 1")
    a("s_cselect_b32 s40, s10, s16"); a("s_cselect_b32 s41, s11, s17")
    a(f"s_cselect_b32 s42, {512*4096*2}, {512*1792*2}" if False else "s_mov_b32 s43, 0x20000")
    a(f"s_mov_b32 s61, {512*4096*2}"); a(f"s_mov_b32 s62, {512*1792*2}"); a("s_cselect_b32 s42, s61, s62")
    a(f"s_movk_i32 s61, 8192"); a(f"s_movk_i32 s62, 3584"); a(f"s_cselect_b32 {PITCH}, s61, s62")
    a(f"s_and_b32 {EE}, {EE}, 63")
    a("v_lshrrev_b32 v4, 3, v1"); a(f"s_lshl_b32 s61, {WAVE}, 7"); a("v_add_u32 v4, s61, v4")
    a(f"v_mul_u32_u24 v5, {PITCH}, v4")
    a("v_and_b32 v4, 7, v1"); a("v_lshl_add_u32 v5, v4, 4, v5")
    a(f"s_lshl_b32 s61, {EE}, 7"); a("v_add_u32 v5, s61, v5")
    a(f"s_lshl_b32 s62, {PITCH}, 3")
    a(f"s_lshl_b32 s63, {WAVE}, 14")
    a("s_mov_b32 s61, 0")
    a(f"s_lshl_b32 s76, {WAVE}, 11"); a("v_lshl_add_u32 v6, v1, 4, s76")
    a(f"s_mul_i32 s76, {WAVE}, 2080"); a(f"s_add_u32 m0, s76, {L_X}")
    a("global_load_lds_dwordx4 v6, s[4:5]", name="X0")
    a(f"s_add_u32 m0, s76, {L_X+16}")
    a("global_load_lds_dwordx4 v6, s[4:5] offset:1024", name="X1")
    for n in range(16):
        a(f"s_add_u32 m0, s63, {L_W + n*1024}")
        a(f"buffer_load_dwordx4 v5, s[40:43], s61 offen {wf} lds", name=f"W{n}")
        if n < 15: a("s_add_u32 s61, s61, s62")
    a(f"s_min_u32 s61, {EE}, 27"); a("s_lshl_b32 s61, s61, 7"); a(f"s_lshl_b32 s62, {WAVE}, 5"); a("s_add_u32 s61, s61, s62")
    a("v_lshrrev_b32 v4, 4, v1"); a("v_lshl_add_u32 v4, v4, 3, s61")
    a("global_load_dwordx2 v[14:15], v4, s[18:19]", name="B1")
    a.cond = None
    a.label("L_qh_dma_done")

    for n in range(KQ): kvload("K", n, paced=False)

    a("s_mov_b32 s64, 0x22222222"); a("s_mov_b32 s65, 0x22222222")
    a("s_mov_b32 s66, 0x44444444"); a("s_mov_b32 s67, 0x44444444")
    a("s_mov_b32 s68, 0x88888888"); a("s_mov_b32 s69, 0x88888888")
    a("s_mov_b32 s70, 0x05040100"); a("s_mov_b32 s71, 0x07060302")
    a(f"s_mov_b32 s72, {hex(f2u(128**-0.5*LOG2E))}")
    a(f"s_mov_b32 {SPIN}, 0x100000")
    srd(44, "s12", "s13", 4096*512*2)
    a(f"s_lshl_b32 s77, {KVH}, 5"); a(f"s_lshl_b32 s61, {BB}, 2"); a("s_add_u32 s77, s77, s61"); a(f"s_add_u32 s77, s77, {SP}")
    a("s_lshl_b32 s61, s77, 10"); a(f"s_lshl_b32 s62, {WAVE}, 8"); a("s_add_u32 s61, s61, s62"); a(f"s_add_u32 s61, s61, {OBUF}")
    a("v_lshl_add_u32 v8, v1, 2, s61")
    a("v_lshrrev_b32 v4, 4, v1"); a("v_lshlrev_b32 v4, 3, v4"); a("v_bfe_u32 v5, v1, 2, 2"); a("v_add_u32 v4, v4, v5")
    a("v_lshlrev_b32 v4, 7, v4"); a("v_and_b32 v5, 3, v1"); a("v_lshl_add_u32 v4, v5, 3, v4")
    a(f"s_lshl_b32 s61, {WAVE}, 5"); a("v_add_u32 v4, s61, v4")
    a("s_waitcnt lgkmcnt(0)")
    a(f"s_add_u32 {TAG}, {TAG}, 1")
    a("v_mov_b32 v5, -1")
    a(f"buffer_store_dword v5, v8, {WS}, 0 offen sc1", name="CLR")

    a(f"s_sub_u32 s61, {ROLE}, 1"); a("s_cmp_lt_u32 s61, 2"); a("s_cbranch_scc0 L_qh_done")
    a.cond = "QH"
    a("v_and_b32 v5, 7, v1"); a("v_mul_u32_u24 v6, 1040, v5"); a("v_lshrrev_b32 v7, 4, v1"); a("v_lshl_add_u32 v6, v7, 4, v6")
    a.wait_vm("B1")
    a("s_barrier")
    for s in range(16):
        a(f"ds_read_b64_tr_b16 v[{96+4*s}:{97+4*s}], v4 offset:{L_W + s*4096}")
        a(f"ds_read_b64_tr_b16 v[{98+4*s}:{99+4*s}], v4 offset:{L_W + s*4096 + 512}")
    a(f"v_add_u32 v6, {L_X}, v6")
    for s in range(16):
        a(f"ds_read_b128 v[{160+4*s}:{163+4*s}], v6 offset:{s*64}")
    a(f"s_cmp_eq_u32 {ROLE}, 1")
    a(f"s_movk_i32 s61, 16384"); a("s_movk_i32 s62, 7168"); a("s_cselect_b32 s61, s61, s62")
    a(f"s_mov_b32 s62, {QBUF}"); a(f"s_mov_b32 s63, {HBUF}"); a("s_cselect_b32 s62, s62, s63")
    a(f"s_lshl_b32 s63, {EE}, 8"); a("s_add_u32 s62, s62, s63"); a(f"s_lshl_b32 s63, {WAVE}, 6"); a("s_add_u32 s62, s62, s63")
    a("v_mul_u32_u24 v5, s61, v5"); a("v_lshl_add_u32 v5, v7, 4, v5"); a("v_add_u32 v5, s62, v5")
    a("s_waitcnt lgkmcnt(0)")
    for s in range(16):
        acc = 224 + 4*(s & 1)
        a(f"v_mfma_f32_16x16x32_bf16 v[{acc}:{acc+3}], v[{96+4*s}:{99+4*s}], v[{160+4*s}:{163+4*s}], " + ("0" if s < 2 else f"v[{acc}:{acc+3}]"))
    for r in range(4): a(f"v_add_f32 v{224+r}, v{224+r}, v{228+r}")
    a(f"s_cmp_eq_u32 {ROLE}, 1"); a("s_cbranch_scc1 L_qh_pub")
    a("v_lshlrev_b32 v232, 16, v14"); a("v_and_b32 v233, 0xffff0000, v14"); a("v_lshlrev_b32 v234, 16, v15"); a("v_and_b32 v235, 0xffff0000, v15")
    k1 = -2.0 * (2.0/3.141592653589793)**0.5 * LOG2E
    for r in range(4): bf16r(f"v{224+r}", f"v{224+r}")
    for r in range(4): a(f"v_add_f32 v{224+r}, v{224+r}, v{232+r}")
    for r in range(4): bf16r(f"v{224+r}", f"v{224+r}")
    for r in range(4): a(f"v_mul_f32 v{232+r}, v{224+r}, v{224+r}")
    a(f"v_mov_b32 v236, {hex(f2u(k1))}")
    for r in range(4): a(f"v_fmamk_f32 v{232+r}, v{232+r}, {hex(f2u(k1*0.044715))}, v236")
    for r in range(4): a(f"v_mul_f32 v{232+r}, v{232+r}, v{224+r}")
    for r in range(4): a(f"v_exp_f32 v{232+r}, v{232+r}")
    for r in range(4): a(f"v_add_f32 v{232+r}, 1.0, v{232+r}")
    for r in range(4): a(f"v_rcp_f32 v{232+r}, v{232+r}")
    for r in range(4): a(f"v_mul_f32 v{224+r}, v{224+r}, v{232+r}")
    a.label("L_qh_pub")
    a("v_cvt_pk_bf16_f32 v228, v224, v225"); a(f"v_mov_b32 v229, {TAG}"); a("v_cvt_pk_bf16_f32 v230, v226, v227"); a(f"v_mov_b32 v231, {TAG}")
    a("s_mov_b32 exec_lo, 0x00ff00ff"); a("s_mov_b32 exec_hi, 0x00ff00ff")
    a(f"buffer_store_dwordx4 v[228:231], v5, {WS}, 0 offen sc1")
    a("s_mov_b64 exec, -1")
    a.cond = None
    a.label("L_qh_done")
    stamp()

    n = KQ
    for _ in range(4): kvload("K", n); n += 1
    a("v_lshrrev_b32 v5, 3, v1"); a(f"s_lshl_b32 s61, {WAVE}, 5"); a("v_add_u32 v5, s61, v5"); a("v_lshlrev_b32 v5, 10, v5")
    a("v_and_b32 v6, 7, v1"); a("v_lshl_add_u32 v5, v6, 4, v5")
    a(f"s_lshl_b32 s61, {KVH}, 2"); a(f"s_add_u32 s78, s61, {SP}")
    a("s_lshl_b32 s61, s78, 17"); a(f"s_lshl_b32 s62, {BB}, 7"); a("s_add_u32 s61, s61, s62")
    a(f"s_lshl_b32 s63, {WAVE}, 12")
    for i in range(4):
        pace()
        a(f"s_add_u32 m0, s63, {L_WO + i*1024}")
        a(f"buffer_load_dwordx4 v5, s[44:47], s61 offen {wf} lds", name=f"WO{i}")
        if i < 3: a("s_add_u32 s61, s61, 8192")
    a(f"s_cmp_eq_u32 {ROLE}, 3"); a("s_cbranch_scc0 L_w2_dma_done")
    a.cond = "W2"
    srd(40, "s20", "s21", 1792*512*2)
    a(f"s_lshr_b32 s61, {EE}, 3"); a("s_lshl_b32 s61, s61, 17"); a(f"s_and_b32 s62, {EE}, 7"); a("s_lshl_b32 s62, s62, 7"); a("s_add_u32 s61, s61, s62")
    for i in range(4):
        pace()
        a(f"s_add_u32 m0, s63, {L_W + i*1024}")
        a(f"buffer_load_dwordx4 v5, s[40:43], s61 offen {wf} lds", name=f"W2_{i}")
        if i < 3: a("s_add_u32 s61, s61, 8192")
    a.cond = None
    a.label("L_w2_dma_done")
    a("s_bfe_u32 s61, s2, 0x40001"); a("s_lshl_b32 s61, s61, 5"); a("s_and_b32 s62, s2, 1"); a("s_lshl_b32 s62, s62, 3"); a("s_add_u32 s79, s61, s62")
    a("v_and_b32 v12, 23, v1"); a("v_add_u32 v12, s79, v12"); a("v_lshlrev_b32 v12, 1, v12")
    a(f"s_cmp_eq_u32 {WAVE}, 3"); a("s_cbranch_scc0 L_f0_done")
    a.cond = "F"
    a("s_lshr_b32 s61, s2, 5"); a("s_lshl_b32 s61, s61, 10"); a("v_lshl_add_u32 v5, v1, 4, s61")
    a("global_load_dwordx4 v[80:83], v5, s[4:5]", name="GX")
    a("v_lshlrev_b32 v5, 4, v1")
    a("global_load_dwordx4 v[84:87], v5, s[24:25]", name="GW")
    a("global_load_ushort v11, v12, s[22:23]", name="GB2")
    a("s_lshr_b32 s61, s2, 5"); a("s_lshl_b32 s61, s61, 10"); a("v_add_u32 v12, s61, v12")
    a.cond = None
    a.label("L_f0_done")
    while n < 40: kvload("K", n); n += 1
    def reduce_rows(v, t, op):
        a(f"v_mov_b32 {t}, {v}"); a(f"v_permlane16_swap_b32 {v}, {t}"); a(f"{op} {v}, {v}, {t}")
        a(f"v_mov_b32 {t}, {v}"); a(f"v_permlane32_swap_b32 {v}, {t}"); a(f"{op} {v}, {v}, {t}")
    def reduce_quad(v, op):
        a(f"{op}_dpp {v}, {v}, {v} quad_perm:[1,0,3,2] row_mask:0xf bank_mask:0xf")
        a(f"{op}_dpp {v}, {v}, {v} quad_perm:[2,3,0,1] row_mask:0xf bank_mask:0xf")
    a(f"s_cmp_eq_u32 {WAVE}, 3"); a("s_cbranch_scc0 L_f1_done")
    a.cond = "F"
    a.wait_vm("GB2")
    for i in range(4):
        a(f"v_lshlrev_b32 v{48+2*i}, 16, v{80+i}"); a(f"v_and_b32 v{49+2*i}, 0xffff0000, v{80+i}")
        a(f"v_lshlrev_b32 v{56+2*i}, 16, v{84+i}"); a(f"v_and_b32 v{57+2*i}, 0xffff0000, v{84+i}")
    for i in range(8): a(f"v_mul_f32 v{48+i}, v{48+i}, v{56+i}")
    for i in range(4): a(f"v_cvt_pk_bf16_f32 v{56+i}, v{48+2*i}, v{49+2*i}")
    for i in range(4):
        a(f"v_lshlrev_b32 v{48+2*i}, 16, v{56+i}"); a(f"v_and_b32 v{49+2*i}, 0xffff0000, v{56+i}")
    for i in range(4): a(f"v_add_f32 v{48+i}, v{48+i}, v{52+i}")
    a("v_add_f32 v48, v48, v50"); a("v_add_f32 v49, v49, v51"); a("v_add_f32 v48, v48, v49")
    reduce_quad("v48", "v_add_f32")
    a("v_add_f32_dpp v48, v48, v48 row_ror:4 row_mask:0xf bank_mask:0xf")
    a("v_add_f32_dpp v48, v48, v48 row_ror:8 row_mask:0xf bank_mask:0xf")
    reduce_rows("v48", "v49", "v_add_f32")
    bf16r("v48", "v48")
    a(f"v_mul_f32 v48, {hex(f2u(-LOG2E))}, v48"); a("v_exp_f32 v48, v48"); a("v_add_f32 v48, 1.0, v48"); a("v_rcp_f32 v48, v48")
    bf16r("v9", "v48")
    a("v_sub_f32 v10, 1.0, v9"); bf16r("v10", "v10")
    a("v_lshlrev_b32 v11, 16, v11")
    a.cond = None
    a.label("L_f1_done")
    while n <= QG: kvload("K", n); n += 1
    a(f"s_lshl_b32 s61, {BB}, 14"); a(f"s_lshl_b32 s62, {KVH}, 11"); a("s_add_u32 s61, s61, s62"); a(f"s_add_u32 s61, s61, {QBUF}")
    a("v_bfe_u32 v5, v1, 2, 2"); a("v_lshlrev_b32 v5, 9, v5")
    a("v_lshrrev_b32 v6, 4, v1"); a("v_lshl_add_u32 v5, v6, 7, v5")
    a("v_and_b32 v7, 3, v1"); a("v_lshl_add_u32 v5, v7, 5, v5"); a("v_add_u32 v5, s61, v5")
    def qgather(nm):
        a(f"buffer_load_dwordx4 v[80:83], v5, {WS}, 0 offen sc1", name=nm+"0")
        a(f"buffer_load_dwordx4 v[84:87], v5, {WS}, 0 offen offset:16 sc1", name=nm+"1")
    qgather("QG")
    a(f"s_cmp_eq_u32 {ROLE}, 3"); a("s_cbranch_scc0 L_hg_done")
    a.cond = "W2"
    a(f"s_lshr_b32 s61, {EE}, 3"); a("s_lshl_b32 s61, s61, 9"); a(f"s_add_u32 s61, s61, {HBUF}")
    a("v_and_b32 v7, 7, v1"); a("v_mul_u32_u24 v7, 7168, v7"); a("v_lshl_add_u32 v7, v6, 5, v7"); a("v_add_u32 v7, s61, v7")
    def hgather(nm):
        for i in range(8):
            a(f"buffer_load_dwordx4 v[{192+4*i}:{195+4*i}], v7, {WS}, 0 offen offset:{(i>>1)*128 + (i&1)*16} sc1", name=f"{nm}{i}")
    hgather("HG")
    a.cond = None
    a.label("L_hg_done")
    while n < 64: kvload("K", n); n += 1
    nv = 0
    while nv < D: kvload("V", nv); nv += 1

    def tagcheck(regs, t):
        a(f"v_xor_b32 {t}, {TAG}, v{regs[0]}")
        a(f"v_mov_b32 v13, {TAG}")
        for r in regs[1:]:
            a(f"v_bitop3_b32 {t}, {t}, v{r}, v13 bitop3:0xf6")
        a(f"v_cmp_ne_u32 vcc, 0, {t}")
    def retry(lbl, reissue):
        a(f"s_cbranch_vccz {lbl}_ok")
        a(f"s_cmp_eq_u32 {SPIN}, 0"); a(f"s_cbranch_scc1 {lbl}_ok")
        a(f"s_sub_u32 {SPIN}, {SPIN}, 1")
        old = a.cond; a.cond = "retry" + lbl
        reissue("R" + lbl)
        a.cond = old
        a("s_waitcnt vmcnt(0)")
        a(f"s_branch {lbl}_chk")
        a.label(f"{lbl}_ok")

    a(f"s_cmp_eq_u32 {ROLE}, 3"); a("s_cbranch_scc0 L_w2_done")
    a.cond = "W2"
    a.wait_vm("HG7")
    a("s_barrier")
    for s in range(4):
        a(f"ds_read_b64_tr_b16 v[{240+4*s}:{241+4*s}], v4 offset:{L_W + s*4096}")
        a(f"ds_read_b64_tr_b16 v[{242+4*s}:{243+4*s}], v4 offset:{L_W + s*4096 + 512}")
    a.label("L_h_chk")
    tagcheck([193 + 2*i for i in range(16)], "v14")
    retry("L_h", hgather)
    for i in range(16): a(f"v_mov_b32 v{224+i}, v{192+2*i}")
    a("s_waitcnt lgkmcnt(0)")
    for s in range(4):
        a(f"v_mfma_f32_16x16x32_bf16 v[192:195], v[{240+4*s}:{243+4*s}], v[{224+4*s}:{227+4*s}], " + ("0" if s == 0 else "v[192:195]"))
    a(f"s_lshr_b32 s61, {EE}, 3"); a("s_lshl_b32 s61, s61, 15"); a(f"s_and_b32 s62, {EE}, 7"); a("s_lshl_b32 s62, s62, 9"); a("s_add_u32 s61, s61, s62")
    a(f"s_lshl_b32 s62, {WAVE}, 7"); a("s_add_u32 s61, s61, s62"); a(f"s_add_u32 s61, s61, {FBUF}")
    a("v_and_b32 v7, 7, v1"); a("v_lshlrev_b32 v7, 12, v7"); a("v_lshl_add_u32 v7, v6, 5, v7"); a("v_add_u32 v7, s61, v7")
    for r in range(4): a(f"v_mov_b32 v{201+2*r}, {TAG}")
    for r in range(4): a(f"v_mov_b32 v{200+2*r}, v{192+r}")
    a("s_mov_b32 exec_lo, 0x00ff00ff"); a("s_mov_b32 exec_hi, 0x00ff00ff")
    a(f"buffer_store_dwordx4 v[200:203], v7, {WS}, 0 offen sc1")
    a(f"buffer_store_dwordx4 v[204:207], v7, {WS}, 0 offen offset:16 sc1")
    a("s_mov_b64 exec, -1")
    a.cond = None
    a.label("L_w2_done")

    a.wait_vm("QG1" if QG == 63 else "K63")
    stamp()
    a.label("L_q_chk")
    tagcheck([81, 83, 85, 87], "v14")
    retry("L_q", qgather)
    for i in range(4): a(f"v_mov_b32 v{40+i}, v{80+2*i}")
    stamp()
    def qk_mfma(u):
        for t in range(4):
            d = 48 + (u & 1)*16 + 4*t; k = 4*(4*u + t)
            a(f"v_mfma_f32_16x16x32_bf16 v[{d}:{d+3}], a[{k}:{k+3}], v[40:43], 0")
    def qk_red(u):
        base = 48 + (u & 1)*16
        for step in range(1, 4):
            for t in range(4):
                c = (t + step) & 3
                d = base + 4*t
                dst = f"v{16+u}" if (t == 0 and step == 3) else f"v{d+t}"
                a(f"v_add_f32_dpp {dst}, v{d+c}, v{d+t} quad_perm:[{c},{c},{c},{c}] row_mask:0xf bank_mask:0xf")
        for t in range(1, 4):
            a(f"v_cndmask_b32 v{16+u}, v{16+u}, v{base+5*t}, s[{62+2*t}:{63+2*t}]")
    qk_mfma(0)
    for u in range(16):
        if u < 15: qk_mfma(u+1)
        qk_red(u)
        if u % 2 == 1: kvload("V", nv); nv += 1
    a("v_max3_f32 v48, v16, v17, v18")
    for i in range(6): a(f"v_max3_f32 v48, v48, v{19+2*i}, v{20+2*i}")
    a("v_max_f32 v48, v48, v31")
    reduce_quad("v48", "v_max_f32")
    reduce_rows("v48", "v49", "v_max_f32")
    a("v_mul_f32 v48, s72, v48")
    for u in range(16): a(f"v_fma_f32 v{16+u}, v{16+u}, s72, -v48")
    for u in range(16): a(f"v_exp_f32 v{16+u}, v{16+u}")
    kvload("V", nv); nv += 1
    for i in range(8): a(f"v_add_f32 v{52+i}, v{16+2*i}, v{17+2*i}")
    for i in range(4): a(f"v_add_f32 v{52+i}, v{52+i}, v{56+i}")
    a("v_add_f32 v52, v52, v54"); a("v_add_f32 v53, v53, v55"); a("v_add_f32 v49, v52, v53")
    reduce_quad("v49", "v_add_f32")
    reduce_rows("v49", "v50", "v_add_f32")
    a(f"s_lshl_b32 s61, {WAVE}, 9"); a(f"s_add_u32 s61, s61, {L_ML}")
    a("v_lshl_add_u32 v50, v1, 3, s61"); a("v_lshlrev_b32 v51, 3, v1"); a(f"v_add_u32 v51, {L_ML}, v51")
    a("ds_write_b64 v50, v[48:49]")
    kvload("V", nv); nv += 1
    a("s_waitcnt lgkmcnt(0)")
    a("s_barrier")
    for w in range(4): a(f"ds_read_b64 v[{52+2*w}:{53+2*w}], v51 offset:{w*512}")
    a("v_lshrrev_b32 v5, 4, v1"); a("v_lshlrev_b32 v5, 5, v5"); a("v_bfe_u32 v6, v1, 3, 1"); a("v_lshl_add_u32 v5, v6, 3, v5")
    a("v_bfe_u32 v6, v1, 2, 1"); a("v_add_u32 v5, v5, v6"); a("v_lshlrev_b32 v5, 7, v5")
    a("v_and_b32 v6, 3, v1"); a("v_lshl_add_u32 v5, v6, 3, v5")
    a(f"s_lshr_b32 s61, {WAVE}, 1"); a("s_lshl_b32 s61, s61, 6"); a(f"s_add_u32 s61, s61, {L_WO}"); a("v_add_u32 v5, s61, v5")
    a("s_waitcnt lgkmcnt(0)")
    for ct in range(2):
        for s in range(4):
            r = 64 + (ct*4 + s)*4
            a(f"ds_read_b64_tr_b16 a[{r}:{r+1}], v5 offset:{s*256 + ct*32}")
            a(f"ds_read_b64_tr_b16 a[{r+2}:{r+3}], v5 offset:{s*256 + ct*32 + 2048}")
    a("v_max3_f32 v60, v52, v54, v56"); a("v_max_f32 v60, v60, v58")
    a("v_sub_f32 v48, v48, v60"); a("v_exp_f32 v48, v48")
    for w in range(4): a(f"v_sub_f32 v{52+2*w}, v{52+2*w}, v60")
    for w in range(4): a(f"v_exp_f32 v{52+2*w}, v{52+2*w}")
    a("v_mul_f32 v62, v52, v53")
    for w in range(1, 4): a(f"v_fmac_f32 v62, v{52+2*w}, v{53+2*w}")
    for u in range(16): a(f"v_mul_f32 v{16+u}, v{16+u}, v48")
    for t in range(8): a(f"v_cvt_pk_bf16_f32 v{32+t}, v{16+2*t}, v{17+2*t}")
    a(f"s_cmp_eq_u32 {WAVE}, 0"); a("s_cbranch_scc0 L_ml_done")
    a.cond = "W0"
    a(f"v_mov_b32 v61, {TAG}"); a(f"v_mov_b32 v63, {TAG}")
    a("s_lshl_b32 s61, s77, 7"); a(f"s_add_u32 s61, s61, {MLBUF}"); a("v_lshl_add_u32 v5, v1, 2, s61")
    a("s_mov_b64 exec, 0x1111")
    a(f"buffer_store_dwordx4 v[60:63], v5, {WS}, 0 offen sc1")
    a("s_mov_b64 exec, -1")
    a.cond = None
    a.label("L_ml_done")
    kvload("V", nv); nv += 1
    stamp()
    a(f"s_and_b32 s61, {WAVE}, 1"); a("s_lshl_b32 s61, s61, 4"); a(f"s_lshl_b32 s62, {KVH}, 5"); a("s_add_u32 s61, s61, s62")
    a("v_lshrrev_b32 v6, 4, v1"); a("v_and_b32 v7, 15, v1")
    a("s_lshl_b32 s62, s61, 10"); a(f"s_lshl_b32 s63, {SP}, 6"); a("s_add_u32 s62, s62, s63"); a(f"s_add_u32 s62, s62, {OBUF}")
    a("v_lshlrev_b32 v24, 10, v7"); a("v_lshl_add_u32 v24, v6, 4, v24"); a("v_add_u32 v24, s62, v24")
    a("s_lshl_b32 s62, s61, 7"); a(f"s_lshl_b32 s63, {SP}, 4"); a("s_add_u32 s62, s62, s63"); a(f"s_add_u32 s62, s62, {MLBUF}")
    a("v_lshl_add_u32 v30, v6, 9, s62")
    a(f"s_and_b32 s61, {WAVE}, 1"); a("s_lshl_b32 s61, s61, 19"); a(f"s_lshl_b32 s62, {BB}, 14"); a("s_add_u32 s61, s61, s62")
    a(f"s_lshr_b32 s62, {WAVE}, 1"); a("s_lshl_b32 s62, s62, 13"); a("s_add_u32 s61, s61, s62")
    a("s_lshl_b32 s62, s78, 7"); a("s_add_u32 s61, s61, s62"); a(f"s_add_u32 s61, s61, {PBUF}")
    a("v_lshlrev_b32 v25, 17, v6"); a("v_bfe_u32 v7, v1, 3, 1"); a("v_lshl_add_u32 v25, v7, 12, v25")
    a("v_and_b32 v7, 7, v1"); a("v_lshl_add_u32 v25, v7, 4, v25"); a("v_add_u32 v25, s61, v25")
    a("s_lshl_b32 s61, s2, 12"); a(f"s_add_u32 s61, s61, {PBUF}"); a("v_lshl_add_u32 v26, v1, 4, s61")
    a(f"s_lshl_b32 s61, {WAVE}, 11"); a(f"s_add_u32 s61, s61, {L_RED}"); a("v_lshl_add_u32 v27, v1, 2, s61")
    a(f"s_lshl_b32 s61, {WAVE}, 9"); a(f"s_add_u32 s61, s61, {L_RED}"); a("v_lshl_add_u32 v28, v1, 2, s61")
    a("s_lshr_b32 s61, s2, 5"); a("s_lshl_b32 s61, s61, 12"); a("s_lshl_b32 s62, s79, 3"); a("s_add_u32 s61, s61, s62"); a(f"s_add_u32 s61, s61, {FBUF}")
    a("v_lshrrev_b32 v31, 3, v1"); a("v_lshlrev_b32 v31, 15, v31"); a("v_lshl_add_u32 v31, v7, 3, v31"); a("v_add_u32 v31, s61, v31")

    def mlgather(nm):
        for r in range(4):
            a(f"buffer_load_dwordx4 v[{80+4*r}:{83+4*r}], v30, {WS}, 0 offen offset:{r*128} sc1", name=f"{nm}{r}")
    def fgather(nm):
        a(f"s_mov_b32 s61, {8*32768}")
        a(f"buffer_load_dwordx2 v[16:17], v31, {WS}, 0 offen sc1", name=nm+"0")
        a(f"buffer_load_dwordx2 v[18:19], v31, {WS}, 0 offen offset:128 sc1", name=nm+"1")
        a("s_mov_b32 exec_hi, 0xffff")
        a(f"buffer_load_dwordx2 v[20:21], v31, {WS}, s61 offen sc1", name=nm+"2")
        a(f"buffer_load_dwordx2 v[22:23], v31, {WS}, s61 offen offset:128 sc1", name=nm+"3")
        a("s_mov_b32 exec_hi, -1")
    gathered = False
    for tau in range(8):
        vb = 96 + (tau % 5)*32
        for w in range(4):
            needi = 8*tau + 4 + w
            while nv < 64 and nv <= needi + D:
                assert nv < 40 + 8*tau or (nv - 40) // 8 < tau
                kvload("V", nv); nv += 1
            if nv == 64 and not gathered:
                gathered = True
                mlgather("ML")
                a(f"s_cmp_eq_u32 {WAVE}, 3"); a("s_cbranch_scc0 L_fg_done")
                a.cond = "F"
                a("v_mov_b32 v20, 0"); a(f"v_mov_b32 v21, {TAG}"); a("v_mov_b32 v22, 0"); a(f"v_mov_b32 v23, {TAG}")
                fgather("FG")
                a.cond = None
                a.label("L_fg_done")
            if w == 0:
                for x in range(4):
                    a(f"v_mov_b32_dpp v{44+x}, v{32+tau} quad_perm:[{x},{x},{x},{x}] row_mask:0xf bank_mask:0xf")
            a.wait_vm(f"V{needi}")
            if tau == 7 and w == 3: stamp()
            ra = vb + 4*w; rb = vb + 4*(4 + w)
            def perm(m):
                a(f"v_perm_b32 v{48+4*m+w}, v{rb+(m>>1)}, v{ra+(m>>1)}, s{70+(m&1)}")
            def mf(m):
                a(f"v_mfma_f32_16x16x32_bf16 a[{32+4*m}:{35+4*m}], v[44:47], v[{48+4*m}:{51+4*m}], " + ("0" if tau == 0 else f"a[{32+4*m}:{35+4*m}]"))
            if w < 3:
                for m in range(8): perm(m)
            else:
                perm(0); perm(1); perm(2)
                for m in range(8):
                    mf(m)
                    if m + 3 < 8: perm(m + 3)
    a.wait_vm("ML3")
    a.label("L_ml_chk")
    tagcheck([81 + 2*i for i in range(8)], "v14")
    for m in range(0, 8, 2):
        a(f"ds_write2st64_b32 v27, a{32+4*m}, a{36+4*m} offset0:{m} offset1:{m+1}")
    retry("L_ml", mlgather)
    a("s_waitcnt lgkmcnt(0)")
    a("s_barrier")
    for w in range(4): a(f"ds_read2st64_b32 v[{48+2*w}:{49+2*w}], v28 offset0:{w*8} offset1:{w*8+1}")
    a("s_waitcnt lgkmcnt(0)")
    a("v_add_f32 v48, v48, v50"); a("v_add_f32 v49, v49, v51"); a("v_add_f32 v52, v52, v54"); a("v_add_f32 v53, v53, v55")
    a("v_add_f32 v48, v48, v52"); a("v_add_f32 v49, v49, v53")
    a("v_cvt_pk_bf16_f32 v48, v48, v49"); a("v_min_u32 v48, -2, v48")
    a(f"buffer_store_dword v48, v8, {WS}, 0 offen sc1")
    def poll1(nm):
        for s in range(4):
            a(f"buffer_load_dwordx4 v[{96+4*s}:{99+4*s}], v24, {WS}, 0 offen offset:{s*256} sc1", name=f"{nm}{s}")
    poll1("P1")
    stamp()
    a("v_max3_f32 v56, v80, v84, v88"); a("v_max_f32 v56, v56, v92")
    for r in range(4): a(f"v_sub_f32 v{80+4*r}, v{80+4*r}, v56")
    for r in range(4): a(f"v_exp_f32 v{80+4*r}, v{80+4*r}")
    a("v_mul_f32 v56, v80, v82")
    for r in range(1, 4): a(f"v_fmac_f32 v56, v{80+4*r}, v{82+4*r}")
    a("v_rcp_f32 v56, v56")
    for r in range(4): a(f"v_mul_f32 v{80+4*r}, v{80+4*r}, v56")
    a(f"v_mov_b32 v61, {TAG}"); a(f"v_mov_b32 v63, {TAG}")
    a("s_waitcnt vmcnt(0)")
    a.label("L_p1_chk")
    for s in range(4):
        for ct in range(2):
            acc = 64 + 4*ct; r = 64 + (ct*4 + s)*4
            a(f"v_mfma_f32_16x16x32_bf16 v[{acc}:{acc+3}], v[{96+4*s}:{99+4*s}], a[{r}:{r+3}], " + ("0" if s == 0 else f"v[{acc}:{acc+3}]"))
    a("v_max3_u32 v14, v96, v97, v98")
    for i in range(6): a(f"v_max3_u32 v14, v14, v{99+2*i}, v{100+2*i}")
    a("v_max_u32 v14, v14, v111")
    a("v_cmp_eq_u32 vcc, -1, v14")
    retry("L_p1", poll1)
    a("v_mul_f32 v60, v64, v80"); a("v_mul_f32 v62, v68, v80")
    for r in range(1, 4):
        a(f"v_fmac_f32 v60, v{64+r}, v{80+4*r}"); a(f"v_fmac_f32 v62, v{68+r}, v{80+4*r}")
    a(f"buffer_store_dwordx4 v[60:63], v25, {WS}, 0 offen sc1")
    stamp()
    a(f"s_cmp_eq_u32 {WAVE}, 3"); a("s_cbranch_scc0 L_fin")
    a.cond = "F"
    def poll2(nm):
        for s in range(4):
            a(f"buffer_load_dwordx4 v[{96+4*s}:{99+4*s}], v26, {WS}, 0 offen offset:{s*1024} sc1", name=f"{nm}{s}")
    poll2("P2")
    def pair_reduce(x, y, t):
        a(f"v_add_f32_dpp {x}, {x}, {x} row_ror:8 row_mask:0xf bank_mask:0xf")
        a(f"v_add_f32_dpp {y}, {y}, {y} row_ror:8 row_mask:0xf bank_mask:0xf")
        a(f"v_permlane16_swap_b32 {x}, {y}"); a(f"v_add_f32 {x}, {x}, {y}")
        a(f"v_mov_b32 {t}, {x}"); a(f"v_permlane32_swap_b32 {x}, {t}"); a(f"v_add_f32 {x}, {x}, {t}")
    a.label("L_f_chk")
    tagcheck([17, 19, 21, 23], "v14")
    retry("L_f", fgather)
    a("v_add_f32 v16, v16, v20"); a("v_add_f32 v18, v18, v22")
    pair_reduce("v16", "v18", "v17")
    bf16r("v16", "v16"); a("v_add_f32 v16, v16, v11"); bf16r("v16", "v16"); a("v_mul_f32 v16, v16, v10"); bf16r("v16", "v16")
    a("s_waitcnt vmcnt(0)")
    a.label("L_p2_chk")
    tagcheck([97 + 2*i for i in range(8)], "v14")
    retry("L_p2", poll2)
    a("v_add_f32 v96, v96, v100"); a("v_add_f32 v98, v98, v102"); a("v_add_f32 v104, v104, v108"); a("v_add_f32 v106, v106, v110")
    a("v_add_f32 v96, v96, v104"); a("v_add_f32 v98, v98, v106")
    pair_reduce("v96", "v98", "v97")
    bf16r("v96", "v96"); a("v_mul_f32 v96, v96, v9"); bf16r("v96", "v96"); a("v_add_f32 v96, v96, v16")
    a("v_cvt_pk_bf16_f32 v96, v96, v96")
    a("s_mov_b64 exec, 0x00ff00ff")
    a("global_store_short v12, v96, s[26:27]")
    a("s_cmp_eq_u32 s2, 0"); a("s_cbranch_scc0 L_noep")
    a("s_mov_b64 exec, 1")
    a(f"v_mov_b32 v97, {TAG}"); a("v_mov_b32 v98, 0")
    a(f"buffer_store_dword v97, v98, {WS}, 0 offen sc1")
    a.label("L_noep")
    a("s_mov_b64 exec, -1")
    a.cond = None
    a.label("L_fin")
    if stamps:
        stamp()
        a("s_waitcnt vmcnt(0)")
        stamp()
        a("s_waitcnt lgkmcnt(0)")
        a("s_getreg_b32 s61, hwreg(HW_REG_XCC_ID)")
        for i in range(nst[0]): a(f"v_mov_b32 v{96+i}, s{80+2*i}")
        a(f"v_mov_b32 v{96+10}, s61"); a(f"v_mov_b32 v{96+11}, {SPIN}")
        a(f"s_lshl_b32 s61, s2, 2"); a(f"s_add_u32 s61, s61, {WAVE}"); a("s_lshl_b32 s61, s61, 6"); a(f"s_add_u32 s61, s61, {STAMP}")
        a("v_mov_b32 v5, s61"); a("s_mov_b64 exec, 1")
        for i in range(3): a(f"buffer_store_dwordx4 v[{96+4*i}:{99+4*i}], v5, {WS}, 0 offen offset:{16*i}")
    a.label("L_end")
    a("s_endpgm")
    a.raw('.section .rodata,"a"'); a.raw(".p2align 6"); a.raw(f".amdhsa_kernel {NAME}")
    a.raw("  .amdhsa_next_free_vgpr 512"); a.raw("  .amdhsa_next_free_sgpr 102"); a.raw("  .amdhsa_accum_offset 256")
    a.raw("  .amdhsa_group_segment_fixed_size 0"); a.raw("  .amdhsa_kernarg_size 112"); a.raw("  .amdhsa_user_sgpr_count 2")
    a.raw("  .amdhsa_user_sgpr_kernarg_segment_ptr 1"); a.raw("  .amdhsa_system_sgpr_workgroup_id_x 1"); a.raw(".end_amdhsa_kernel")
    return a.text()

if __name__ == "__main__":
    import build
    out = sys.argv[1]
    kw = {}
    for x in sys.argv[2:]:
        k, v = x.split("=")
        kw[k] = int(v) if v.lstrip('-').isdigit() else (v.replace("+", " ") if v not in ("True", "False") else v == "True")
    open(out, "w").write(gen(**kw))
    print(build.build(out))
```

```python
import sys, struct
from asmlib import Asm

NAME = "gated_mix__gqa_block_cached__dense_activation_gelu__decode_kernel"
HEADER = open("gated_mix__gqa_block_cached__dense_activation_gelu__decode.s.ref").read().split("; Override launch")[0]

def f2u(x): return struct.unpack('<I', struct.pack('<f', x))[0]
LOG2E = 1.4426950408889634

QBUF, HBUF, MLBUF, FLBUF, OBUF, FBUF, PBUF, STAMP = 0x10000, 0x30000, 0x40000, 0x48000, 0x50000, 0x90000, 0x100000, 0x400000
L_W, L_H, L_WO, L_X, L_ML, L_RED, L_END = 0, 0x8000, 0x10000, 0x14000, 0x16100, 0x17000, 0x19000

def gen(DK=14, DV=14, DE=16, EV=40, kv="nt", wf="nt", stamps=False, wolate=True, MLG=46, spin=0x100000,
        scramble=False, local=True, prepoll=True, flushn=255, slp=0, slpn=8, fbar=True):
    a = Asm()
    a.raw(HEADER + f"; @launch grid=(256,1,1) block=(256,1,1) lds={L_END}")
    a.raw('.amdgcn_target "amdgcn-amd-amdhsa--gfx950"')
    a.raw(".text"); a.raw(f".globl {NAME}"); a.raw(".p2align 8"); a.raw(f".type {NAME},@function"); a.raw(f"{NAME}:")
    LS = "" if local else "sc1"
    def stamp(i):
        if stamps: a(f"s_memrealtime s[{80+2*i}:{81+2*i}]")
    WAVE, KVH, BB, SP, RR, TAG, SOFF, PITCH, XCC, REM = "s52", "s53", "s54", "s55", "s57", "s58", "s59", "s60", "s56", "s74"
    SPIN = "s73"
    def srd(base, lo, hi, size):
        a(f"s_mov_b32 s{base}, {lo}"); a(f"s_mov_b32 s{base+1}, {hi}"); a(f"s_mov_b32 s{base+2}, {size}"); a(f"s_mov_b32 s{base+3}, 0x20000")
    def bf16r(dst, src):
        a(f"v_cvt_pk_bf16_f32 {dst}, {src}, {src}"); a(f"v_and_b32 {dst}, 0xffff0000, {dst}")
    WS = "s[48:51]"
    def reduce_rows(v, t, op):
        a(f"v_mov_b32 {t}, {v}"); a(f"v_permlane16_swap_b32 {v}, {t}"); a(f"{op} {v}, {v}, {t}")
        a(f"v_mov_b32 {t}, {v}"); a(f"v_permlane32_swap_b32 {v}, {t}"); a(f"{op} {v}, {v}, {t}")
    def reduce_quad(v, op):
        a(f"{op}_dpp {v}, {v}, {v} quad_perm:[1,0,3,2] row_mask:0xf bank_mask:0xf")
        a(f"{op}_dpp {v}, {v}, {v} quad_perm:[2,3,0,1] row_mask:0xf bank_mask:0xf")
    def tagcheck(regs, t, mask=None):
        a(f"v_xor_b32 {t}, {TAG}, v{regs[0]}")
        for r in regs[1:]:
            a(f"v_bitop3_b32 {t}, {t}, v{r}, {TAG} bitop3:0xf6")
        if mask: a(f"v_and_b32 {t}, {mask}, {t}")
        a(f"v_cmp_ne_u32 vcc, 0, {t}")
    def retry(lbl, reissue, flush=False, sleep=False):
        a(f"s_cbranch_vccz {lbl}_ok")
        a(f"s_cmp_eq_u32 {SPIN}, 0"); a(f"s_cbranch_scc1 {lbl}_ok")
        a(f"s_sub_u32 {SPIN}, {SPIN}, 1")
        if flush and local:
            a(f"s_and_b32 s61, {SPIN}, {flushn}"); a(f"s_cbranch_scc1 {lbl}_nf")
            a("s_waitcnt vmcnt(0)"); a("buffer_wbl2 sc1")
            a.label(f"{lbl}_nf")
        if sleep and slp:
            a("s_bcnt1_i32_b64 s61, vcc"); a(f"s_cmp_le_u32 s61, {slpn}"); a(f"s_cbranch_scc1 {lbl}_ns"); a(f"s_sleep {slp}"); a.label(f"{lbl}_ns")
        old = a.cond; a.cond = "retry" + lbl
        a("s_mov_b64 exec, vcc")
        reissue("R" + lbl)
        a("s_mov_b64 exec, -1")
        a.cond = old
        a("s_waitcnt vmcnt(0)")
        a(f"s_branch {lbl}_chk")
        a.label(f"{lbl}_ok")

    stamp(0)
    a("s_cmp_ge_u32 s2, 256"); a("s_cbranch_scc1 L_end")
    a("s_load_dwordx16 s[4:19], s[0:1], 0")
    a("s_load_dwordx8 s[20:27], s[0:1], 64")
    a("s_load_dwordx4 s[28:31], s[0:1], 96")
    if scramble:
        a("s_lshr_b32 s3, s2, 3"); a("s_and_b32 s3, s3, 7"); a("s_xor_b32 s2, s2, s3")
    a("v_lshrrev_b32 v4, 6, v0"); a("v_and_b32 v1, 63, v0"); a(f"v_readfirstlane_b32 {WAVE}, v4")
    a(f"s_and_b32 {KVH}, s2, 7"); a(f"s_lshr_b32 {BB}, s2, 5"); a(f"s_bfe_u32 {SP}, s2, 0x20003"); a(f"s_lshr_b32 {RR}, s2, 3")
    a(f"s_lshl_b32 s61, {BB}, 5"); a(f"s_lshl_b32 s62, {KVH}, 2"); a("s_add_u32 s61, s61, s62"); a(f"s_add_u32 s61, s61, {SP}")
    a("s_lshl_b32 s61, s61, 18"); a(f"s_lshl_b32 s62, {WAVE}, 12"); a("s_add_u32 s61, s61, s62")
    a("v_and_b32 v2, 3, v1"); a("v_lshlrev_b32 v2, 4, v2")
    a("v_bfe_u32 v4, v1, 2, 2"); a("v_lshl_add_u32 v2, v4, 8, v2")
    a("v_lshrrev_b32 v4, 4, v1"); a("v_lshl_add_u32 v2, v4, 6, v2")
    a("v_add_u32 v2, s61, v2")
    a("v_lshl_add_u32 v3, v1, 4, s61")
    a(f"s_mov_b32 {SOFF}, 0")
    a("s_mov_b32 s34, 0x4000000"); a("s_mov_b32 s35, 0x20000")

    cur = {"soff": 0}
    kvn = []
    def kvload(which, n, D):
        off = (n >> 2) * 16384; imm = (n & 3) * 1024
        if off != cur["soff"]:
            a(f"s_mov_b32 {SOFF}, {off}"); cur["soff"] = off
        if D and len(kvn) >= D: a.wait_vm(kvn[-D])
        if which == "K":
            a(f"buffer_load_dwordx4 a[{4*n}:{4*n+3}], v2, s[32:35], {SOFF} offen offset:{imm} {kv}", name=f"K{n}")
        else:
            r = 96 + (n % 40) * 4
            a(f"buffer_load_dwordx4 v[{r}:{r+3}], v3, s[36:39], {SOFF} offen offset:{imm} {kv}", name=f"V{n}")
        kvn.append(f"{which}{n}")

    def consts():
        a(f"s_load_dword {TAG}, s[30:31], 0")
        srd(36, "s8", "s9", "0x4000000")
        srd(48, "s30", "s31", "0x10000000")
        a("s_mov_b32 s64, 0x22222222"); a("s_mov_b32 s65, 0x22222222")
        a("s_mov_b32 s66, 0x44444444"); a("s_mov_b32 s67, 0x44444444")
        a("s_mov_b32 s68, 0x88888888"); a("s_mov_b32 s69, 0x88888888")
        a("s_mov_b32 s70, 0x05040100"); a("s_mov_b32 s71, 0x07060302")
        a(f"s_mov_b32 s72, {hex(f2u(128**-0.5*LOG2E))}")
        a(f"s_mov_b32 {SPIN}, {spin}")
        a(f"s_getreg_b32 {XCC}, hwreg(HW_REG_XCC_ID, 0, 4)")
        srd(44, "s12", "s13", 4096*512*2)
        a(f"s_lshl_b32 s77, {KVH}, 5"); a(f"s_add_u32 s77, s77, {RR}")
        a("s_lshl_b32 s61, s77, 10"); a(f"s_lshl_b32 s62, {WAVE}, 8"); a("s_add_u32 s61, s61, s62"); a(f"s_add_u32 s61, s61, {OBUF}")
        a("v_lshl_add_u32 v8, v1, 2, s61")
        a(f"s_lshl_b32 s61, {KVH}, 2"); a(f"s_add_u32 s78, s61, {SP}")
        a(f"s_lshr_b32 s61, {SP}, 1"); a("s_lshl_b32 s61, s61, 5"); a(f"s_and_b32 s62, {SP}, 1"); a("s_lshl_b32 s62, s62, 3"); a("s_add_u32 s79, s61, s62")
        a("v_and_b32 v12, 3, v1"); a("v_lshlrev_b32 v12, 1, v12"); a("v_and_b32 v5, 16, v1"); a("v_add_u32 v12, v12, v5")
        a("v_lshrrev_b32 v5, 5, v1"); a("v_add3_u32 v12, v12, v5, s79")
        a("v_mov_b32 v5, -1")
        a(f"buffer_store_dword v5, v8, {WS}, 0 offen {LS}", name="CLR")
    def get_tag():
        a("s_waitcnt lgkmcnt(0)")
        a(f"s_add_u32 {TAG}, {TAG}, 1")
    def wo_dma():
        a("v_lshrrev_b32 v5, 3, v1"); a(f"s_lshl_b32 s61, {WAVE}, 5"); a("v_add_u32 v5, s61, v5"); a("v_lshlrev_b32 v5, 10, v5")
        a(f"s_and_b32 s61, {WAVE}, 1"); a("s_lshl_b32 s61, s61, 2")
        a("v_and_b32 v6, 7, v1"); a("v_xor_b32 v6, s61, v6"); a("v_lshl_add_u32 v5, v6, 4, v5"); a("v_xor_b32 v6, 32, v5")
        a("s_lshl_b32 s61, s78, 17"); a(f"s_lshl_b32 s62, {BB}, 7"); a("s_add_u32 s61, s61, s62")
        a(f"s_lshl_b32 s63, {WAVE}, 12")
        for i in range(4):
            a(f"s_add_u32 m0, s63, {L_WO + i*1024}")
            a(f"buffer_load_dwordx4 v{5+(i&1)}, s[44:47], s61 offen {wf} lds", name=f"WO{i}")
            if i < 3: a("s_add_u32 s61, s61, 8192")
    def gate_loads(p):
        a(f"s_cmp_eq_u32 {WAVE}, 3"); a(f"s_cbranch_scc0 L_f0_done{p}")
        a.cond = "F"
        a(f"s_lshl_b32 s61, {BB}, 10"); a("v_lshl_add_u32 v5, v1, 4, s61")
        a("global_load_dwordx4 v[80:83], v5, s[4:5]", name="GX")
        a("v_lshlrev_b32 v5, 4, v1")
        a("global_load_dwordx4 v[84:87], v5, s[24:25]", name="GW")
        a(f"s_lshl_b32 s62, {KVH}, 7"); a("v_lshl_add_u32 v5, v12, 1, s62")
        a("global_load_ushort v11, v5, s[22:23]", name="GB2")
        a.cond = None
        a.label(f"L_f0_done{p}")
    def gate(p):
        a(f"s_cmp_eq_u32 {WAVE}, 3"); a(f"s_cbranch_scc0 L_f1_done{p}")
        a.cond = "F"
        a.wait_vm("GB2")
        for i in range(4):
            a(f"v_lshlrev_b32 v{48+2*i}, 16, v{80+i}"); a(f"v_and_b32 v{49+2*i}, 0xffff0000, v{80+i}")
            a(f"v_lshlrev_b32 v{56+2*i}, 16, v{84+i}"); a(f"v_and_b32 v{57+2*i}, 0xffff0000, v{84+i}")
        for i in range(8): a(f"v_mul_f32 v{48+i}, v{48+i}, v{56+i}")
        for i in range(4): a(f"v_cvt_pk_bf16_f32 v{56+i}, v{48+2*i}, v{49+2*i}")
        for i in range(4):
            a(f"v_lshlrev_b32 v{48+2*i}, 16, v{56+i}"); a(f"v_and_b32 v{49+2*i}, 0xffff0000, v{56+i}")
        for i in range(4): a(f"v_add_f32 v{48+i}, v{48+i}, v{52+i}")
        a("v_add_f32 v48, v48, v50"); a("v_add_f32 v49, v49, v51"); a("v_add_f32 v48, v48, v49")
        reduce_quad("v48", "v_add_f32")
        a("v_add_f32_dpp v48, v48, v48 row_ror:4 row_mask:0xf bank_mask:0xf")
        a("v_add_f32_dpp v48, v48, v48 row_ror:8 row_mask:0xf bank_mask:0xf")
        reduce_rows("v48", "v49", "v_add_f32")
        bf16r("v48", "v48")
        a(f"v_mul_f32 v48, {hex(f2u(-LOG2E))}, v48"); a("v_exp_f32 v48, v48"); a("v_add_f32 v48, 1.0, v48"); a("v_rcp_f32 v48, v48")
        bf16r("v9", "v48")
        a("v_sub_f32 v10, 1.0, v9"); bf16r("v10", "v10")
        a("v_lshlrev_b32 v11, 16, v11")
        a.cond = None
        a.label(f"L_f1_done{p}")
    def qgather(nm):
        a(f"buffer_load_dwordx4 v[80:83], v15, {WS}, 0 offen sc1", name=nm+"0")
        a(f"buffer_load_dwordx4 v[84:87], v15, {WS}, 0 offen offset:16 sc1", name=nm+"1")
    def qaddr():
        a(f"s_lshl_b32 s61, {BB}, 14"); a(f"s_lshl_b32 s62, {KVH}, 11"); a("s_add_u32 s61, s61, s62"); a(f"s_add_u32 s61, s61, {QBUF}")
        a("v_bfe_u32 v15, v1, 2, 2"); a("v_lshlrev_b32 v15, 9, v15")
        a("v_lshrrev_b32 v6, 4, v1"); a("v_lshl_add_u32 v15, v6, 7, v15")
        a("v_and_b32 v7, 3, v1"); a("v_lshl_add_u32 v15, v7, 5, v15"); a("v_add_u32 v15, s61, v15")

    NV0 = 16
    def kphase(p):
        D = DK
        st = {"n": 0}
        def K(upto=None, cnt=None):
            end = upto if upto is not None else st["n"] + cnt
            while st["n"] < end:
                n = st["n"]
                if n < 64: kvload("K", n, D)
                else: kvload("V", n - 64, D)
                st["n"] += 1
        a("s_waitcnt lgkmcnt(0)") if p != "Q" else None
        if p == "Q":
            a(f"s_lshl_b32 s61, {KVH}, 9"); a(f"s_lshl_b32 s62, {RR}, 5"); a("s_add_u32 s61, s61, s62")
            a(f"s_mul_i32 s63, {KVH}, 224"); a("s_add_u32 s62, s62, s63"); a(f"s_sub_u32 s62, s62, {23*32}")
            a(f"s_cmp_lt_u32 {RR}, 16"); a("s_cselect_b32 s76, s61, s62")
            a(f"s_movk_i32 s61, 8192"); a(f"s_movk_i32 s62, 3584"); a(f"s_cselect_b32 {PITCH}, s61, s62")
            a(f"s_mov_b32 s61, {512*4096*2}"); a(f"s_mov_b32 s62, {512*1792*2}"); a("s_cselect_b32 s42, s61, s62"); a("s_mov_b32 s43, 0x20000")
            a("v_lshrrev_b32 v4, 2, v1"); a(f"s_lshl_b32 s61, {WAVE}, 7"); a("v_add_u32 v4, s61, v4")
            a(f"v_mul_u32_u24 v5, {PITCH}, v4")
            a("v_and_b32 v4, 3, v1"); a("v_lshrrev_b32 v6, 5, v1"); a("v_lshlrev_b32 v6, 1, v6"); a("v_xor_b32 v4, v4, v6")
            a("s_lshl_b32 s61, s76, 1"); a("v_add_u32 v5, s61, v5"); a("v_lshl_add_u32 v5, v4, 4, v5")
            a(f"s_lshl_b32 s62, {PITCH}, 4"); a(f"s_lshl_b32 s63, {WAVE}, 13"); a("s_mov_b32 s61, 0")
            a(f"s_cmp_lt_u32 {RR}, 16")
            a("s_waitcnt lgkmcnt(0)")
            a("s_cselect_b32 s40, s10, s16"); a("s_cselect_b32 s41, s11, s17")
            for n in range(8):
                a(f"s_add_u32 m0, s63, {L_W + n*1024}")
                a(f"buffer_load_dwordx4 v5, s[40:43], s61 offen {wf} lds", name=f"W{n}")
                if n < 7: a("s_add_u32 s61, s61, s62")
            a(f"s_lshl_b32 s61, {WAVE}, 11"); a("v_lshl_add_u32 v7, v1, 4, s61")
            a(f"s_mul_i32 s61, {WAVE}, 2080"); a(f"s_add_u32 m0, s61, {L_X}")
            a("global_load_lds_dwordx4 v7, s[4:5]", name="X0")
            a(f"s_add_u32 m0, s61, {L_X+16}")
            a("global_load_lds_dwordx4 v7, s[4:5] offset:1024", name="X1")
        a("s_mov_b32 s32, s6"); a("s_mov_b32 s33, s7")
        if p == "Q":
            K(upto=6)
            a("s_min_u32 s61, s76, 1760"); a(f"s_and_b32 s62, {WAVE}, 1"); a("s_lshl_b32 s62, s62, 4"); a("s_add_u32 s61, s61, s62"); a("s_lshl_b32 s61, s61, 1")
            a("v_lshrrev_b32 v7, 4, v1"); a("v_lshl_add_u32 v4, v7, 3, s61")
            a("global_load_dwordx2 v[14:15], v4, s[18:19]", name="B1")
            consts()
            a("v_lshlrev_b32 v4, 3, v7"); a("v_bfe_u32 v5, v1, 2, 2"); a("v_add_u32 v4, v4, v5"); a("v_lshlrev_b32 v4, 6, v4")
            a("v_and_b32 v5, 3, v1"); a("v_lshl_add_u32 v4, v5, 3, v4")
            a(f"v_xor_b32 v5, {WAVE}, v7"); a("v_and_b32 v5, 1, v5"); a("v_lshl_add_u32 v4, v5, 5, v4")
            a("v_and_b32 v5, 7, v1"); a("v_mul_u32_u24 v6, 1040, v5"); a("v_lshl_add_u32 v6, v7, 4, v6")
            a(f"v_add_u32 v6, {L_X}, v6")
            a(f"s_cmp_lt_u32 {RR}, 16")
            a(f"s_movk_i32 s61, 16384"); a("s_movk_i32 s62, 7168"); a("s_cselect_b32 s61, s61, s62")
            a(f"s_mov_b32 s62, {QBUF}"); a(f"s_mov_b32 s63, {HBUF}"); a("s_cselect_b32 s62, s62, s63")
            a("s_lshl_b32 s63, s76, 2"); a("s_add_u32 s62, s62, s63"); a(f"s_lshl_b32 s63, {WAVE}, 6"); a("s_add_u32 s62, s62, s63")
            a("v_mul_u32_u24 v13, s61, v5"); a("v_lshl_add_u32 v13, v7, 4, v13"); a("v_add_u32 v13, s62, v13")
            K(upto=D + 2)
            get_tag()
            a.wait_vm("X1")
            a("s_barrier")
            K(cnt=2)
            a(f"s_cmp_lt_u32 {WAVE}, 2"); a("s_cbranch_scc0 L_qh_done")
            a.cond = "QH"
            for s in range(16):
                a(f"ds_read_b64_tr_b16 v[{96+4*s}:{97+4*s}], v4 offset:{L_W + s*2048}")
                a(f"ds_read_b64_tr_b16 v[{98+4*s}:{99+4*s}], v4 offset:{L_W + s*2048 + 256}")
                a(f"ds_read_b128 v[{160+4*s}:{163+4*s}], v6 offset:{s*64}")
            a("s_waitcnt lgkmcnt(0)")
            for s in range(16):
                acc = 224 + 4*(s & 1)
                a(f"v_mfma_f32_16x16x32_bf16 v[{acc}:{acc+3}], v[{96+4*s}:{99+4*s}], v[{160+4*s}:{163+4*s}], " + ("0" if s < 2 else f"v[{acc}:{acc+3}]"))
            a(f"v_mov_b32 v237, {TAG}"); a(f"v_mov_b32 v239, {TAG}")
            for r in range(4): a(f"v_add_f32 v{224+r}, v{224+r}, v{228+r}")
            a(f"s_cmp_lt_u32 {RR}, 16"); a("s_cbranch_scc0 L_h_epi")
            a("v_cvt_pk_bf16_f32 v236, v224, v225"); a("v_cvt_pk_bf16_f32 v238, v226, v227")
            a("s_mov_b32 exec_lo, 0x00ff00ff"); a("s_mov_b32 exec_hi, 0x00ff00ff")
            a(f"buffer_store_dwordx4 v[236:239], v13, {WS}, 0 offen {LS}")
            a("s_branch L_qh_pub")
            a.label("L_h_epi")
            a.wait_vm("B1")
            a("v_lshlrev_b32 v232, 16, v14"); a("v_and_b32 v233, 0xffff0000, v14"); a("v_lshlrev_b32 v234, 16, v15"); a("v_and_b32 v235, 0xffff0000, v15")
            k1 = -2.0 * (2.0/3.141592653589793)**0.5 * LOG2E
            for r in range(4): bf16r(f"v{224+r}", f"v{224+r}")
            for r in range(4): a(f"v_add_f32 v{224+r}, v{224+r}, v{232+r}")
            for r in range(4): bf16r(f"v{224+r}", f"v{224+r}")
            for r in range(4): a(f"v_mul_f32 v{232+r}, v{224+r}, v{224+r}")
            a(f"v_mov_b32 v236, {hex(f2u(k1))}")
            for r in range(4): a(f"v_fmamk_f32 v{232+r}, v{232+r}, {hex(f2u(k1*0.044715))}, v236")
            for r in range(4): a(f"v_mul_f32 v{232+r}, v{232+r}, v{224+r}")
            for r in range(4): a(f"v_exp_f32 v{232+r}, v{232+r}")
            for r in range(4): a(f"v_add_f32 v{232+r}, 1.0, v{232+r}")
            for r in range(4): a(f"v_rcp_f32 v{232+r}, v{232+r}")
            for r in range(4): a(f"v_mul_f32 v{224+r}, v{224+r}, v{232+r}")
            a("v_cvt_pk_bf16_f32 v236, v224, v225"); a("v_cvt_pk_bf16_f32 v238, v226, v227")
            a("s_mov_b32 exec_lo, 0x00ff00ff"); a("s_mov_b32 exec_hi, 0x00ff00ff")
            a(f"buffer_store_dwordx4 v[236:239], v13, {WS}, 0 offen sc1")
            a.label("L_qh_pub")
            a("s_mov_b64 exec, -1")
            a.cond = None
            a.label("L_qh_done")
            stamp(1)
            K(upto=24)
        else:
            K(upto=D)
            consts()
            stamp(1)
            K(upto=18)
            if p == "W":
                srd(40, "s20", "s21", 1792*512*2)
                a("v_lshrrev_b32 v5, 3, v1"); a(f"s_lshl_b32 s61, {WAVE}, 6"); a("v_add_u32 v5, s61, v5"); a("v_lshlrev_b32 v5, 10, v5")
                a("v_and_b32 v4, 7, v1"); a("v_bfe_u32 v6, v1, 4, 1"); a("v_lshlrev_b32 v6, 1, v6"); a("v_xor_b32 v4, v4, v6")
                a("v_lshl_add_u32 v5, v4, 4, v5"); a("v_xor_b32 v6, 64, v5")
                a(f"s_sub_u32 s76, {RR}, 16")
                a("s_lshl_b32 s61, s76, 18"); a(f"s_lshl_b32 s62, {KVH}, 7"); a("s_add_u32 s61, s61, s62")
                a(f"s_lshl_b32 s63, {WAVE}, 13")
                for i in range(8):
                    a(f"s_add_u32 m0, s63, {L_W + i*1024}")
                    a(f"buffer_load_dwordx4 v{5+(i&1)}, s[40:43], s61 offen {wf} lds", name=f"W2_{i}")
                    if i < 7: a("s_add_u32 s61, s61, 8192")
                a("v_lshrrev_b32 v4, 4, v1"); a("v_lshlrev_b32 v4, 3, v4"); a("v_bfe_u32 v5, v1, 2, 2"); a("v_add_u32 v4, v4, v5")
                a("v_lshlrev_b32 v4, 7, v4"); a("v_and_b32 v5, 3, v1"); a("v_lshl_add_u32 v4, v5, 3, v4")
                a("v_bfe_u32 v5, v1, 3, 2"); a(f"v_xor_b32 v5, {WAVE}, v5"); a("v_lshl_add_u32 v4, v5, 5, v4")
            K(upto=24)
            get_tag()
        if not wolate: wo_dma()
        gate_loads(p)
        K(upto=44)
        gate(p)
        qaddr()
        if p == "W":
            K(upto=56)
            a("s_lshl_b32 s61, s76, 10"); a(f"s_lshl_b32 s62, {WAVE}, 8"); a("s_add_u32 s61, s61, s62"); a(f"s_add_u32 s61, s61, {HBUF}")
            a("v_and_b32 v7, 7, v1"); a("v_mul_u32_u24 v7, 7168, v7"); a("v_lshl_add_u32 v7, v6, 5, v7"); a("v_add_u32 v7, s61, v7")
            def hgather(nm):
                for i in range(4):
                    a(f"buffer_load_dwordx4 v[{16+4*i}:{19+4*i}], v7, {WS}, 0 offen offset:{(i>>1)*128 + (i&1)*16} sc1", name=f"{nm}{i}")
            hgather("HG")
            a(f"s_lshl_b32 s61, {WAVE}, 11"); a(f"s_add_u32 s61, s61, {L_H}"); a("v_lshl_add_u32 v5, v1, 4, s61")
            a("v_lshlrev_b32 v13, 4, v1")
        K(upto=64)
        qgather("QG")
        if p == "W":
            K(upto=56 + D)
            a.wait_vm("HG3")
            a.label("L_h_chk")
            tagcheck([17 + 2*i for i in range(8)], "v14")
            retry("L_h", hgather)
            for i in range(1, 8): a(f"v_mov_b32 v{16+i}, v{16+2*i}")
            a("ds_write_b128 v5, v[16:19]"); a("ds_write_b128 v5, v[20:23] offset:1024")
            K(cnt=1)
            a("s_waitcnt lgkmcnt(0)")
            a("s_barrier")
            for s in range(8):
                a(f"ds_read_b64_tr_b16 v[{192+4*s}:{193+4*s}], v4 offset:{L_W + s*4096}")
                a(f"ds_read_b64_tr_b16 v[{194+4*s}:{195+4*s}], v4 offset:{L_W + s*4096 + 512}")
                a(f"ds_read_b128 v[{224+4*s}:{227+4*s}], v13 offset:{L_H + s*1024}")
            a(f"s_lshl_b32 s61, {KVH}, 15"); a("s_lshl_b32 s62, s76, 12"); a("s_add_u32 s61, s61, s62")
            a(f"s_lshl_b32 s62, {WAVE}, 7"); a("s_add_u32 s61, s61, s62"); a(f"s_add_u32 s61, s61, {FBUF}")
            a("v_and_b32 v7, 7, v1"); a("v_lshlrev_b32 v7, 9, v7"); a("v_lshl_add_u32 v7, v6, 5, v7"); a("v_add_u32 v7, s61, v7")
            for r in range(4): a(f"v_mov_b32 v{89+2*r}, {TAG}")
            K(cnt=1)
            a("s_waitcnt lgkmcnt(0)")
            for s in range(8):
                a(f"v_mfma_f32_16x16x32_bf16 v[16:19], v[{192+4*s}:{195+4*s}], v[{224+4*s}:{227+4*s}], " + ("0" if s == 0 else "v[16:19]"))
            K(cnt=1)
            for r in range(4): a(f"v_mov_b32 v{88+2*r}, v{16+r}")
            a("s_mov_b32 exec_lo, 0x00ff00ff"); a("s_mov_b32 exec_hi, 0x00ff00ff")
            a(f"buffer_store_dwordx4 v[88:91], v7, {WS}, 0 offen {LS}")
            a(f"buffer_store_dwordx4 v[92:95], v7, {WS}, 0 offen offset:16 {LS}")
            a("s_mov_b64 exec, -1")
        K(upto=64 + NV0)

    a(f"s_cmp_ge_u32 {RR}, 30"); a("s_cbranch_scc1 L_pathN")
    a(f"s_sub_u32 s61, {RR}, 16"); a("s_cmp_lt_u32 s61, 7"); a("s_cbranch_scc1 L_pathW")
    for p in ("Q", "W", "N"):
        if p != "Q": a.label(f"L_path{p}")
        a.vm = []; kvn.clear(); cur["soff"] = 0
        kphase(p)
        if p != "N": a("s_branch L_join")
    a.label("L_join")
    a.vm = [("QG0", True, None), ("QG1", True, None)] + [(f"V{i}", True, None) for i in range(NV0)]
    nv = NV0
    def V(D):
        nonlocal nv
        kvload("V", nv, D); nv += 1

    a.wait_vm("QG1")
    stamp(2)
    a.label("L_q_chk")
    tagcheck([81, 83, 85, 87], "v14")
    retry("L_q", qgather, flush=True)
    for i in range(4): a(f"v_mov_b32 v{40+i}, v{80+2*i}")
    def qk_mfma(u):
        for t in range(4):
            d = 48 + (u & 1)*16 + 4*t; k = 4*(4*u + t)
            a(f"v_mfma_f32_16x16x32_bf16 v[{d}:{d+3}], a[{k}:{k+3}], v[40:43], 0")
    def qk_red(u):
        base = 48 + (u & 1)*16
        for step in range(1, 4):
            for t in range(4):
                c = (t + step) & 3
                d = base + 4*t
                dst = f"v{16+u}" if (t == 0 and step == 3) else f"v{d+t}"
                a(f"v_add_f32_dpp {dst}, v{d+c}, v{d+t} quad_perm:[{c},{c},{c},{c}] row_mask:0xf bank_mask:0xf")
        for t in range(1, 4):
            a(f"v_cndmask_b32 v{16+u}, v{16+u}, v{base+5*t}, s[{62+2*t}:{63+2*t}]")
    qk_mfma(0)
    for u in range(16):
        if u < 15: qk_mfma(u+1)
        qk_red(u)
        if u % 2 == 1: V(DV)
    a("v_max3_f32 v48, v16, v17, v18")
    for i in range(6): a(f"v_max3_f32 v48, v48, v{19+2*i}, v{20+2*i}")
    a("v_max_f32 v48, v48, v31")
    reduce_quad("v48", "v_max_f32")
    reduce_rows("v48", "v49", "v_max_f32")
    a("v_mul_f32 v48, s72, v48")
    for u in range(16): a(f"v_fma_f32 v{16+u}, v{16+u}, s72, -v48")
    V(DV)
    for u in range(16): a(f"v_exp_f32 v{16+u}, v{16+u}")
    for i in range(8): a(f"v_add_f32 v{52+i}, v{16+2*i}, v{17+2*i}")
    for i in range(4): a(f"v_add_f32 v{52+i}, v{52+i}, v{56+i}")
    a("v_add_f32 v52, v52, v54"); a("v_add_f32 v53, v53, v55"); a("v_add_f32 v49, v52, v53")
    V(DV)
    reduce_quad("v49", "v_add_f32")
    reduce_rows("v49", "v50", "v_add_f32")
    a(f"s_lshl_b32 s61, {WAVE}, 9"); a(f"s_add_u32 s61, s61, {L_ML}")
    a("v_lshl_add_u32 v50, v1, 3, s61"); a("v_lshlrev_b32 v51, 3, v1"); a(f"v_add_u32 v51, {L_ML}, v51")
    a("ds_write_b64 v50, v[48:49]")
    V(DV)
    a("s_waitcnt lgkmcnt(0)")
    a("s_barrier")
    for w in range(4): a(f"ds_read_b64 v[{52+2*w}:{53+2*w}], v51 offset:{w*512}")
    a("v_lshrrev_b32 v4, 4, v1"); a("v_lshlrev_b32 v4, 5, v4"); a("v_bfe_u32 v6, v1, 3, 1"); a("v_lshl_add_u32 v4, v6, 3, v4")
    a("v_bfe_u32 v6, v1, 2, 1"); a("v_add_u32 v4, v4, v6"); a("v_lshlrev_b32 v4, 7, v4")
    a("v_and_b32 v6, 3, v1"); a("v_lshl_add_u32 v4, v6, 3, v4")
    a(f"s_and_b32 s61, {WAVE}, 2"); a("v_bfe_u32 v6, v1, 3, 2"); a("v_xor_b32 v6, s61, v6"); a("v_lshl_add_u32 v4, v6, 5, v4")
    a(f"v_add_u32 v4, {L_WO}, v4"); a("v_xor_b32 v13, 32, v4")
    def wo_frags():
        for s in range(4):
            for ct in range(2):
                r = 64 + (ct*4 + s)*4
                ad = "v4" if ct == 0 else "v13"
                a(f"ds_read_b64_tr_b16 a[{r}:{r+1}], {ad} offset:{s*256}")
                a(f"ds_read_b64_tr_b16 a[{r+2}:{r+3}], {ad} offset:{s*256 + 2048}")
    V(DV)
    a("s_waitcnt lgkmcnt(0)")
    if not wolate: wo_frags()
    a("v_max3_f32 v60, v52, v54, v56"); a("v_max_f32 v60, v60, v58")
    a("v_sub_f32 v48, v48, v60"); a("v_exp_f32 v48, v48")
    for w in range(4): a(f"v_sub_f32 v{52+2*w}, v{52+2*w}, v60")
    for w in range(4): a(f"v_exp_f32 v{52+2*w}, v{52+2*w}")
    a("v_mul_f32 v62, v52, v53")
    for w in range(1, 4): a(f"v_fmac_f32 v62, v{52+2*w}, v{53+2*w}")
    a(f"s_cmp_eq_u32 {WAVE}, 2"); a("s_cbranch_scc0 L_ml_done")
    a.cond = "W0"
    a(f"v_mov_b32 v61, {TAG}"); a(f"v_mov_b32 v63, {TAG}")
    a(f"v_writelane_b32 v60, {XCC}, 16")
    a("s_lshl_b32 s61, s77, 7"); a(f"s_add_u32 s61, s61, {MLBUF}"); a("v_lshl_add_u32 v5, v1, 2, s61")
    a("s_mov_b64 exec, 0x11111")
    a(f"buffer_store_dwordx4 v[60:63], v5, {WS}, 0 offen sc1")
    a("s_mov_b64 exec, -1")
    a.cond = None
    a.label("L_ml_done")
    for u in range(16): a(f"v_mul_f32 v{16+u}, v{16+u}, v48")
    for t in range(8): a(f"v_cvt_pk_bf16_f32 v{32+t}, v{16+2*t}, v{17+2*t}")
    V(DV)
    stamp(4)
    a(f"s_and_b32 s61, {WAVE}, 1"); a("s_lshl_b32 s61, s61, 4"); a(f"s_lshl_b32 s62, {KVH}, 5"); a("s_add_u32 s61, s61, s62")
    a("v_lshrrev_b32 v6, 4, v1"); a("v_and_b32 v7, 15, v1")
    a("s_lshl_b32 s62, s61, 10"); a(f"s_lshl_b32 s63, {SP}, 6"); a("s_add_u32 s62, s62, s63"); a(f"s_add_u32 s62, s62, {OBUF}")
    a("v_lshlrev_b32 v24, 10, v7"); a("v_lshl_add_u32 v24, v6, 4, v24"); a("v_add_u32 v24, s62, v24")
    a("s_lshl_b32 s62, s61, 7"); a(f"s_lshl_b32 s63, {SP}, 4"); a("s_add_u32 s62, s62, s63"); a(f"s_add_u32 s62, s62, {MLBUF}")
    a("v_lshl_add_u32 v30, v6, 9, s62")
    a(f"s_lshl_b32 s62, {KVH}, 12"); a(f"s_add_u32 s62, s62, {MLBUF+64}"); a("v_and_b32 v29, 31, v1"); a("v_lshl_add_u32 v29, v29, 7, s62")
    a(f"s_and_b32 s61, {WAVE}, 1"); a("s_lshl_b32 s61, s61, 15"); a(f"s_lshl_b32 s62, {BB}, 16"); a("s_add_u32 s61, s61, s62")
    a(f"s_lshr_b32 s62, {WAVE}, 1"); a("s_lshl_b32 s62, s62, 12"); a("s_add_u32 s61, s61, s62")
    a("s_lshl_b32 s62, s78, 6"); a("s_add_u32 s61, s61, s62"); a(f"s_add_u32 s61, s61, {PBUF}")
    a("v_lshlrev_b32 v25, 13, v6"); a("v_bfe_u32 v7, v1, 3, 1"); a("v_lshl_add_u32 v25, v7, 11, v25")
    a("v_and_b32 v7, 7, v1"); a("v_lshl_add_u32 v25, v7, 3, v25"); a("v_add_u32 v25, s61, v25")
    a("s_lshl_b32 s61, s77, 11"); a(f"s_add_u32 s61, s61, {PBUF}"); a("v_lshl_add_u32 v26, v1, 4, s61")
    a(f"s_lshl_b32 s61, {WAVE}, 11"); a(f"s_add_u32 s61, s61, {L_RED}"); a("v_lshl_add_u32 v27, v1, 2, s61")
    a(f"s_lshl_b32 s61, {WAVE}, 9"); a(f"s_add_u32 s61, s61, {L_RED}"); a("v_lshl_add_u32 v28, v1, 2, s61")
    a(f"s_lshl_b32 s61, {KVH}, 15"); a(f"s_lshl_b32 s62, {BB}, 9"); a("s_add_u32 s61, s61, s62"); a(f"s_add_u32 s61, s61, {FBUF}")
    a("v_bfe_u32 v31, v1, 2, 2"); a("v_lshlrev_b32 v31, 12, v31"); a("v_lshl_add_u32 v31, v12, 3, v31"); a("v_add_u32 v31, s61, v31")
    a(f"s_lshl_b32 s61, {BB}, 10"); a(f"s_lshl_b32 s62, {KVH}, 7"); a("s_add_u32 s61, s61, s62"); a("v_lshl_add_u32 v12, v12, 1, s61")
    a(f"s_and_b32 s75, {TAG}, 0x3ff")
    V(DV)

    def mlgather(nm):
        for r in range(4):
            a(f"buffer_load_dwordx4 v[{80+4*r}:{83+4*r}], v30, {WS}, 0 offen offset:{r*128} sc1", name=f"{nm}{r}")
        a(f"buffer_load_dwordx2 v[20:21], v29, {WS}, 0 offen sc1", name=f"{nm}4")
    def fgather(nm):
        a(f"s_movk_i32 s61, {4*4096}")
        a(f"buffer_load_dwordx2 v[16:17], v31, {WS}, 0 offen sc1", name=nm+"0")
        a("s_and_b32 exec_lo, exec_lo, 0x0fff0fff"); a("s_and_b32 exec_hi, exec_hi, 0x0fff0fff")
        a(f"s_cbranch_execz L_fg_skip{nm}")
        a(f"buffer_load_dwordx2 v[18:19], v31, {WS}, s61 offen sc1", name=nm+"1")
        a.label(f"L_fg_skip{nm}")
        a("s_mov_b64 exec, -1")
    PB = 192
    def poll1(nm):
        for s in range(4):
            a(f"buffer_load_dwordx4 v[{PB+4*s}:{PB+3+4*s}], v24, {WS}, 0 offen offset:{s*256} sc1", name=f"{nm}{s}")
    def flgather(nm):
        a(f"buffer_load_dwordx2 v[20:21], v7, {WS}, 0 offen sc1", name=nm+"0")
    def ml_check():
        a.wait_vm("ML4")
        a.label("L_ml_chk")
        tagcheck([81 + 2*i for i in range(8)] + [21], "v14")
        retry("L_ml", mlgather, flush=True)
        a(f"s_mov_b32 {REM}, 0")
        if local:
            a(f"v_cmp_ne_u32 vcc, {XCC}, v20")
            a("s_cbranch_vccz L_samedie")
            a.cond = "rem"
            a(f"s_mov_b32 {REM}, 1")
            a("s_waitcnt vmcnt(0)"); a("buffer_wbl2 sc1"); a("s_waitcnt vmcnt(0)")
            a("s_lshl_b32 s61, s77, 4"); a(f"s_lshl_b32 s62, {WAVE}, 2"); a("s_add_u32 s61, s61, s62"); a(f"s_add_u32 s61, s61, {FLBUF}")
            a("v_mov_b32 v7, s61"); a(f"v_mov_b32 v14, {TAG}")
            a("s_mov_b64 exec, 1")
            a(f"buffer_store_dword v14, v7, {WS}, 0 offen sc1")
            a("s_mov_b64 exec, -1")
            a(f"s_lshl_b32 s61, {KVH}, 9"); a(f"s_add_u32 s61, s61, {FLBUF}"); a("v_lshl_add_u32 v7, v1, 3, s61")
            flgather("FL")
            a("s_waitcnt vmcnt(0)")
            a.label("L_fl_chk")
            tagcheck([20, 21], "v14")
            retry("L_fl", flgather)
            a.cond = None
            a.label("L_samedie")
        a("v_max3_f32 v14, v80, v84, v88"); a("v_max_f32 v14, v14, v92")
        for r in range(4): a(f"v_sub_f32 v{80+4*r}, v{80+4*r}, v14")
        for r in range(4): a(f"v_exp_f32 v{80+4*r}, v{80+4*r}")
        a("v_mul_f32 v14, v80, v82")
        for r in range(1, 4): a(f"v_fmac_f32 v14, v{80+4*r}, v{82+4*r}")
        a("v_rcp_f32 v14, v14")
        a("v_mov_b32 v42, 0xfffffc00")
        for r in range(4): a(f"v_mul_f32 v{80+4*r}, v{80+4*r}, v14")
    gathered = 0
    for tau in range(8):
        vb = 96 + (tau % 5)*32
        for w in range(4):
            needi = 8*tau + 4 + w
            while nv < 64 and nv <= needi + (DV if nv < EV else DE) and (nv - 40) < 8*tau:
                V(DV if nv < EV else DE)
                if nv == MLG:
                    gathered = 1
                    mlgather("ML")
            if nv == 64 and gathered == 1:
                gathered = 2
                assert tau >= 5
                if wolate: wo_dma()
                a(f"s_cmp_eq_u32 {WAVE}, 3"); a("s_cbranch_scc0 L_fg_done")
                a.cond = "F"
                a("v_mov_b32 v18, 0"); a(f"v_mov_b32 v19, {TAG}")
                fgather("FG")
                a.cond = None
                a.label("L_fg_done")
                ml_check()
            if prepoll and tau == 7 and w == 0:
                assert gathered == 2
                poll1("P0")
            if w == 0:
                for x in range(4):
                    a(f"v_mov_b32_dpp v{44+x}, v{32+tau} quad_perm:[{x},{x},{x},{x}] row_mask:0xf bank_mask:0xf")
            a.wait_vm(f"V{needi}")
            if tau == 7 and w == 3: stamp(5)
            ra = vb + 4*w; rb = vb + 4*(4 + w)
            def perm(m):
                a(f"v_perm_b32 v{48+4*m+w}, v{rb+(m>>1)}, v{ra+(m>>1)}, s{70+(m&1)}")
            def mf(m):
                a(f"v_mfma_f32_16x16x32_bf16 a[{32+4*m}:{35+4*m}], v[44:47], v[{48+4*m}:{51+4*m}], " + ("0" if tau == 0 else f"a[{32+4*m}:{35+4*m}]"))
            if w < 3:
                for m in range(8): perm(m)
            else:
                perm(0); perm(1); perm(2)
                for m in range(8):
                    mf(m)
                    if m + 3 < 8: perm(m + 3)
    assert nv == 64 and gathered == 2
    def sentinel():
        a(f"v_max3_u32 v14, v{PB}, v{PB+1}, v{PB+2}")
        for i in range(6): a(f"v_max3_u32 v14, v14, v{PB+3+2*i}, v{PB+4+2*i}")
        a(f"v_max_u32 v14, v14, v{PB+15}")
        a("v_cmp_eq_u32 vcc, -1, v14")
    for m in range(0, 8, 2):
        a(f"ds_write2st64_b32 v27, a{32+4*m}, a{36+4*m} offset0:{m} offset1:{m+1}")
    if wolate: a.wait_vm("WO3")
    a("s_waitcnt lgkmcnt(0)")
    a("s_barrier")
    for w in range(4): a(f"ds_read2st64_b32 v[{48+2*w}:{49+2*w}], v28 offset0:{w*8} offset1:{w*8+1}")
    a("s_waitcnt lgkmcnt(0)")
    a("v_add_f32 v48, v48, v50"); a("v_add_f32 v49, v49, v51"); a("v_add_f32 v52, v52, v54"); a("v_add_f32 v53, v53, v55")
    a("v_add_f32 v48, v48, v52"); a("v_add_f32 v49, v49, v53")
    a("v_cvt_pk_bf16_f32 v48, v48, v49"); a("v_min_u32 v48, -2, v48")
    a(f"buffer_store_dword v48, v8, {WS}, 0 offen {LS}")
    stamp(6)
    if wolate: wo_frags()
    if local:
        a(f"s_cmp_eq_u32 {REM}, 0"); a("s_cbranch_scc1 L_noflush")
        a("s_waitcnt vmcnt(0)"); a("buffer_wbl2 sc1")
        a.label("L_noflush")
    if prepoll:
        a("s_waitcnt vmcnt(1)")
        sentinel()
        a("s_mov_b64 exec, vcc")
        a("s_cbranch_execz L_p1_skip")
        poll1("P1")
        a.label("L_p1_skip")
        a("s_mov_b64 exec, -1")
    else:
        poll1("P1")
    a("s_waitcnt vmcnt(0) lgkmcnt(0)")
    stamp(3)
    a.label("L_p1_chk")
    for s in range(4):
        for ct in range(2):
            acc = 64 + 4*ct; r = 64 + (ct*4 + s)*4
            a(f"v_mfma_f32_16x16x32_bf16 v[{acc}:{acc+3}], v[{PB+4*s}:{PB+3+4*s}], a[{r}:{r+3}], " + ("0" if s == 0 else f"v[{acc}:{acc+3}]"))
    sentinel()
    retry("L_p1", poll1, sleep=True)
    a("v_mul_f32 v40, v64, v80"); a("v_mul_f32 v41, v68, v80")
    for r in range(1, 4):
        a(f"v_fmac_f32 v40, v{64+r}, v{80+4*r}"); a(f"v_fmac_f32 v41, v{68+r}, v{80+4*r}")
    a("v_and_or_b32 v40, v40, v42, s75"); a("v_and_or_b32 v41, v41, v42, s75")
    a(f"buffer_store_dwordx2 v[40:41], v25, {WS}, 0 offen sc1")
    stamp(7)
    if fbar: a("s_barrier")
    a(f"s_cmp_eq_u32 {WAVE}, 3"); a("s_cbranch_scc0 L_fin")
    a.cond = "F"
    def poll2(nm):
        for s in range(2):
            a(f"buffer_load_dwordx4 v[{96+4*s}:{99+4*s}], v26, {WS}, 0 offen offset:{s*1024} sc1", name=f"{nm}{s}")
    poll2("P2")
    a.label("L_f_chk")
    tagcheck([17, 19], "v14")
    retry("L_f", fgather)
    a("v_add_f32 v16, v16, v18")
    a("v_add_f32_dpp v16, v16, v16 row_ror:4 row_mask:0xf bank_mask:0xf")
    a("v_add_f32_dpp v16, v16, v16 row_ror:8 row_mask:0xf bank_mask:0xf")
    bf16r("v16", "v16"); a("v_add_f32 v16, v16, v11"); bf16r("v16", "v16"); a("v_mul_f32 v16, v16, v10"); bf16r("v16", "v16")
    a("s_waitcnt vmcnt(0)")
    a.label("L_p2_chk")
    tagcheck([96 + i for i in range(8)], "v14", mask="0x3ff")
    retry("L_p2", poll2)
    for i in range(4): a(f"v_add_f32 v{96+i}, v{96+i}, v{100+i}")
    a("v_permlane16_swap_b32 v96, v97"); a("v_permlane16_swap_b32 v98, v99")
    a("v_add_f32 v96, v96, v97"); a("v_add_f32 v98, v98, v99")
    a("v_permlane32_swap_b32 v96, v98"); a("v_add_f32 v96, v96, v98")
    a("v_add_f32_dpp v96, v96, v96 row_ror:4 row_mask:0xf bank_mask:0xf")
    a("v_add_f32_dpp v96, v96, v96 row_ror:8 row_mask:0xf bank_mask:0xf")
    bf16r("v96", "v96"); a("v_mul_f32 v96, v96, v9"); bf16r("v96", "v96"); a("v_add_f32 v96, v96, v16")
    a("v_cvt_pk_bf16_f32 v96, v96, v96")
    a("s_mov_b32 exec_lo, 0x000f000f"); a("s_mov_b32 exec_hi, 0x000f000f")
    a("global_store_short v12, v96, s[26:27]")
    a("s_cmp_eq_u32 s2, 0"); a("s_cbranch_scc0 L_noep")
    a("s_mov_b64 exec, 1")
    a(f"v_mov_b32 v97, {TAG}"); a("v_mov_b32 v98, 0")
    a(f"buffer_store_dword v97, v98, {WS}, 0 offen sc1")
    a.label("L_noep")
    a("s_mov_b64 exec, -1")
    a.cond = None
    a.label("L_fin")
    if stamps:
        stamp(8)
        a("s_waitcnt vmcnt(0)")
        stamp(9)
        a("s_waitcnt lgkmcnt(0)")
        for i in range(10): a(f"v_mov_b32 v{96+i}, s{80+2*i}")
        a("s_getreg_b32 s61, hwreg(HW_REG_HW_ID)"); a("s_lshl_b32 s61, s61, 4"); a(f"s_or_b32 s61, s61, {XCC}")
        a(f"v_mov_b32 v{96+10}, s61"); a(f"v_mov_b32 v{96+11}, {SPIN}")
        a(f"s_lshl_b32 s61, s2, 2"); a(f"s_add_u32 s61, s61, {WAVE}"); a("s_lshl_b32 s61, s61, 6"); a(f"s_add_u32 s61, s61, {STAMP}")
        a("v_mov_b32 v5, s61"); a("s_mov_b64 exec, 1")
        for i in range(3): a(f"buffer_store_dwordx4 v[{96+4*i}:{99+4*i}], v5, {WS}, 0 offen offset:{16*i}")
    a.label("L_end")
    a("s_endpgm")
    a.raw('.section .rodata,"a"'); a.raw(".p2align 6"); a.raw(f".amdhsa_kernel {NAME}")
    a.raw("  .amdhsa_next_free_vgpr 512"); a.raw("  .amdhsa_next_free_sgpr 102"); a.raw("  .amdhsa_accum_offset 256")
    a.raw("  .amdhsa_group_segment_fixed_size 0"); a.raw("  .amdhsa_kernarg_size 112"); a.raw("  .amdhsa_user_sgpr_count 2")
    a.raw("  .amdhsa_user_sgpr_kernarg_segment_ptr 1"); a.raw("  .amdhsa_system_sgpr_workgroup_id_x 1"); a.raw(".end_amdhsa_kernel")
    return a.text()

def parse(args):
    kw = {}
    for x in args:
        k, v = x.split("=")
        kw[k] = int(v) if v.lstrip('-').isdigit() else (v.replace("+", " ") if v not in ("True", "False") else v == "True")
    return kw
if __name__ == "__main__":
    import build
    out = sys.argv[1]
    open(out, "w").write(gen(**parse(sys.argv[2:])))
    print(build.build(out))
```

```python
import sys, struct
from asmlib import Asm

NAME = "gated_mix__gqa_block_cached__dense_activation_gelu__decode_kernel"
HEADER = open("gated_mix__gqa_block_cached__dense_activation_gelu__decode.s.ref").read().split("; Override launch")[0]

def f2u(x): return struct.unpack('<I', struct.pack('<f', x))[0]
LOG2E = 1.4426950408889634

QBUF, HBUF, MLBUF, FLBUF, OBUF, FBUF, PBUF, STAMP = 0x10000, 0x30000, 0x40000, 0x48000, 0x50000, 0x90000, 0x100000, 0x400000
L_W, L_H, L_WO, L_X, L_ML, L_RED, L_END = 0, 0x8000, 0x10000, 0x14000, 0x16100, 0x17000, 0x19000

def gen(DK=14, DV=14, DE=16, EV=40, kv="nt", wf="nt", stamps=False, wolate=True, MLG=46, spin=0x100000,
        scramble=False, local=True, prepoll=True, flushn=255, slp=0, slpn=8, fbar=True, dbg=False):
    a = Asm()
    a.raw(HEADER + f"; @launch grid=(256,1,1) block=(256,1,1) lds={L_END}")
    a.raw('.amdgcn_target "amdgcn-amd-amdhsa--gfx950"')
    a.raw(".text"); a.raw(f".globl {NAME}"); a.raw(".p2align 8"); a.raw(f".type {NAME},@function"); a.raw(f"{NAME}:")
    LS = "" if local else "sc1"
    def stamp(i):
        if stamps: a(f"s_memrealtime s[{80+2*i}:{81+2*i}]")
    WAVE, KVH, BB, SP, RR, TAG, SOFF, PITCH, XCC, REM = "s52", "s53", "s54", "s55", "s57", "s58", "s59", "s60", "s56", "s74"
    SPIN = "s73"
    def srd(base, lo, hi, size):
        a(f"s_mov_b32 s{base}, {lo}"); a(f"s_mov_b32 s{base+1}, {hi}"); a(f"s_mov_b32 s{base+2}, {size}"); a(f"s_mov_b32 s{base+3}, 0x20000")
    def bf16r(dst, src):
        a(f"v_cvt_pk_bf16_f32 {dst}, {src}, {src}"); a(f"v_and_b32 {dst}, 0xffff0000, {dst}")
    WS = "s[48:51]"
    def reduce_rows(v, t, op):
        a(f"v_mov_b32 {t}, {v}"); a(f"v_permlane16_swap_b32 {v}, {t}"); a(f"{op} {v}, {v}, {t}")
        a(f"v_mov_b32 {t}, {v}"); a(f"v_permlane32_swap_b32 {v}, {t}"); a(f"{op} {v}, {v}, {t}")
    def reduce_quad(v, op):
        a(f"{op}_dpp {v}, {v}, {v} quad_perm:[1,0,3,2] row_mask:0xf bank_mask:0xf")
        a(f"{op}_dpp {v}, {v}, {v} quad_perm:[2,3,0,1] row_mask:0xf bank_mask:0xf")
    def tagcheck(regs, t, mask=None):
        a(f"v_xor_b32 {t}, {TAG}, v{regs[0]}")
        for r in regs[1:]:
            a(f"v_bitop3_b32 {t}, {t}, v{r}, {TAG} bitop3:0xf6")
        if mask: a(f"v_and_b32 {t}, {mask}, {t}")
        a(f"v_cmp_ne_u32 vcc, 0, {t}")
    def retry(lbl, reissue, flush=False, sleep=False):
        a(f"s_cbranch_vccz {lbl}_ok")
        a(f"s_cmp_eq_u32 {SPIN}, 0"); a(f"s_cbranch_scc1 {lbl}_ok")
        a(f"s_sub_u32 {SPIN}, {SPIN}, 1")
        if flush and local:
            a(f"s_and_b32 s61, {SPIN}, {flushn}"); a(f"s_cbranch_scc1 {lbl}_nf")
            a("s_waitcnt vmcnt(0)"); a("buffer_wbl2 sc1")
            a.label(f"{lbl}_nf")
        if sleep and slp:
            a("s_bcnt1_i32_b64 s61, vcc"); a(f"s_cmp_le_u32 s61, {slpn}"); a(f"s_cbranch_scc1 {lbl}_ns"); a(f"s_sleep {slp}"); a.label(f"{lbl}_ns")
        old = a.cond; a.cond = "retry" + lbl
        a("s_mov_b64 exec, vcc")
        reissue("R" + lbl)
        a("s_mov_b64 exec, -1")
        a.cond = old
        a("s_waitcnt vmcnt(0)")
        a(f"s_branch {lbl}_chk")
        a.label(f"{lbl}_ok")

    stamp(0)
    a("s_cmp_ge_u32 s2, 256"); a("s_cbranch_scc1 L_end")
    a("s_load_dwordx16 s[4:19], s[0:1], 0")
    a("s_load_dwordx8 s[20:27], s[0:1], 64")
    a("s_load_dwordx4 s[28:31], s[0:1], 96")
    if scramble:
        a("s_lshr_b32 s3, s2, 3"); a("s_and_b32 s3, s3, 7"); a("s_xor_b32 s2, s2, s3")
    a("v_lshrrev_b32 v4, 6, v0"); a("v_and_b32 v1, 63, v0"); a(f"v_readfirstlane_b32 {WAVE}, v4")
    a(f"s_and_b32 {KVH}, s2, 7"); a(f"s_lshr_b32 {BB}, s2, 5"); a(f"s_bfe_u32 {SP}, s2, 0x20003"); a(f"s_lshr_b32 {RR}, s2, 3")
    a(f"s_lshl_b32 s61, {BB}, 5"); a(f"s_lshl_b32 s62, {KVH}, 2"); a("s_add_u32 s61, s61, s62"); a(f"s_add_u32 s61, s61, {SP}")
    a("s_lshl_b32 s61, s61, 18"); a(f"s_lshl_b32 s62, {WAVE}, 12"); a("s_add_u32 s61, s61, s62")
    a("v_and_b32 v2, 3, v1"); a("v_lshlrev_b32 v2, 4, v2")
    a("v_bfe_u32 v4, v1, 2, 2"); a("v_lshl_add_u32 v2, v4, 8, v2")
    a("v_lshrrev_b32 v4, 4, v1"); a("v_lshl_add_u32 v2, v4, 6, v2")
    a("v_add_u32 v2, s61, v2")
    a("v_lshl_add_u32 v3, v1, 4, s61")
    a(f"s_mov_b32 {SOFF}, 0")
    a("s_mov_b32 s34, 0x4000000"); a("s_mov_b32 s35, 0x20000")

    cur = {"soff": 0}
    kvn = []
    def kvload(which, n, D):
        off = (n >> 2) * 16384; imm = (n & 3) * 1024
        if off != cur["soff"]:
            a(f"s_mov_b32 {SOFF}, {off}"); cur["soff"] = off
        if D and len(kvn) >= D: a.wait_vm(kvn[-D])
        if which == "K":
            a(f"buffer_load_dwordx4 a[{4*n}:{4*n+3}], v2, s[32:35], {SOFF} offen offset:{imm} {kv}", name=f"K{n}")
        else:
            r = 96 + (n % 40) * 4
            a(f"buffer_load_dwordx4 v[{r}:{r+3}], v3, s[36:39], {SOFF} offen offset:{imm} {kv}", name=f"V{n}")
        kvn.append(f"{which}{n}")

    def consts():
        a(f"s_load_dword {TAG}, s[30:31], 0")
        srd(36, "s8", "s9", "0x4000000")
        srd(48, "s30", "s31", "0x10000000")
        a("s_mov_b32 s64, 0x22222222"); a("s_mov_b32 s65, 0x22222222")
        a("s_mov_b32 s66, 0x44444444"); a("s_mov_b32 s67, 0x44444444")
        a("s_mov_b32 s68, 0x88888888"); a("s_mov_b32 s69, 0x88888888")
        a("s_mov_b32 s70, 0x05040100"); a("s_mov_b32 s71, 0x07060302")
        a(f"s_mov_b32 s72, {hex(f2u(128**-0.5*LOG2E))}")
        a(f"s_mov_b32 {SPIN}, {spin}")
        a(f"s_getreg_b32 {XCC}, hwreg(HW_REG_XCC_ID, 0, 4)")
        srd(44, "s12", "s13", 4096*512*2)
        a(f"s_lshl_b32 s77, {KVH}, 5"); a(f"s_add_u32 s77, s77, {RR}")
        a("s_lshl_b32 s61, s77, 10"); a(f"s_lshl_b32 s62, {WAVE}, 8"); a("s_add_u32 s61, s61, s62"); a(f"s_add_u32 s61, s61, {OBUF}")
        a("v_lshl_add_u32 v8, v1, 2, s61")
        a(f"s_lshl_b32 s61, {KVH}, 2"); a(f"s_add_u32 s78, s61, {SP}")
        a(f"s_lshr_b32 s61, {SP}, 1"); a("s_lshl_b32 s61, s61, 5"); a(f"s_and_b32 s62, {SP}, 1"); a("s_lshl_b32 s62, s62, 3"); a("s_add_u32 s79, s61, s62")
        a("v_and_b32 v12, 3, v1"); a("v_lshlrev_b32 v12, 1, v12"); a("v_and_b32 v5, 16, v1"); a("v_add_u32 v12, v12, v5")
        a("v_lshrrev_b32 v5, 5, v1"); a("v_add3_u32 v12, v12, v5, s79")
        a("v_mov_b32 v5, -1")
        a(f"buffer_store_dword v5, v8, {WS}, 0 offen {LS}", name="CLR")
    def get_tag():
        a("s_waitcnt lgkmcnt(0)")
        a(f"s_add_u32 {TAG}, {TAG}, 1")
    def wo_dma():
        a("v_lshrrev_b32 v5, 3, v1"); a(f"s_lshl_b32 s61, {WAVE}, 5"); a("v_add_u32 v5, s61, v5"); a("v_lshlrev_b32 v5, 10, v5")
        a(f"s_and_b32 s61, {WAVE}, 1"); a("s_lshl_b32 s61, s61, 2")
        a("v_and_b32 v6, 7, v1"); a("v_xor_b32 v6, s61, v6"); a("v_lshl_add_u32 v5, v6, 4, v5"); a("v_xor_b32 v6, 32, v5")
        a("s_lshl_b32 s61, s78, 17"); a(f"s_lshl_b32 s62, {BB}, 7"); a("s_add_u32 s61, s61, s62")
        a(f"s_lshl_b32 s63, {WAVE}, 12")
        for i in range(4):
            a(f"s_add_u32 m0, s63, {L_WO + i*1024}")
            a(f"buffer_load_dwordx4 v{5+(i&1)}, s[44:47], s61 offen {wf} lds", name=f"WO{i}")
            if i < 3: a("s_add_u32 s61, s61, 8192")
    def gate_loads(p):
        a(f"s_cmp_eq_u32 {WAVE}, 3"); a(f"s_cbranch_scc0 L_f0_done{p}")
        a.cond = "F"
        a(f"s_lshl_b32 s61, {BB}, 10"); a("v_lshl_add_u32 v5, v1, 4, s61")
        a("global_load_dwordx4 v[80:83], v5, s[4:5]", name="GX")
        a("v_lshlrev_b32 v5, 4, v1")
        a("global_load_dwordx4 v[84:87], v5, s[24:25]", name="GW")
        a(f"s_lshl_b32 s62, {KVH}, 7"); a("v_lshl_add_u32 v5, v12, 1, s62")
        a("global_load_ushort v11, v5, s[22:23]", name="GB2")
        a.cond = None
        a.label(f"L_f0_done{p}")
    def gate(p):
        a(f"s_cmp_eq_u32 {WAVE}, 3"); a(f"s_cbranch_scc0 L_f1_done{p}")
        a.cond = "F"
        a.wait_vm("GB2")
        for i in range(4):
            a(f"v_lshlrev_b32 v{48+2*i}, 16, v{80+i}"); a(f"v_and_b32 v{49+2*i}, 0xffff0000, v{80+i}")
            a(f"v_lshlrev_b32 v{56+2*i}, 16, v{84+i}"); a(f"v_and_b32 v{57+2*i}, 0xffff0000, v{84+i}")
        for i in range(8): a(f"v_mul_f32 v{48+i}, v{48+i}, v{56+i}")
        for i in range(4): a(f"v_cvt_pk_bf16_f32 v{56+i}, v{48+2*i}, v{49+2*i}")
        for i in range(4):
            a(f"v_lshlrev_b32 v{48+2*i}, 16, v{56+i}"); a(f"v_and_b32 v{49+2*i}, 0xffff0000, v{56+i}")
        for i in range(4): a(f"v_add_f32 v{48+i}, v{48+i}, v{52+i}")
        a("v_add_f32 v48, v48, v50"); a("v_add_f32 v49, v49, v51"); a("v_add_f32 v48, v48, v49")
        reduce_quad("v48", "v_add_f32")
        a("v_add_f32_dpp v48, v48, v48 row_ror:4 row_mask:0xf bank_mask:0xf")
        a("v_add_f32_dpp v48, v48, v48 row_ror:8 row_mask:0xf bank_mask:0xf")
        reduce_rows("v48", "v49", "v_add_f32")
        bf16r("v48", "v48")
        a(f"v_mul_f32 v48, {hex(f2u(-LOG2E))}, v48"); a("v_exp_f32 v48, v48"); a("v_add_f32 v48, 1.0, v48"); a("v_rcp_f32 v48, v48")
        bf16r("v9", "v48")
        a("v_sub_f32 v10, 1.0, v9"); bf16r("v10", "v10")
        a("v_lshlrev_b32 v11, 16, v11")
        a.cond = None
        a.label(f"L_f1_done{p}")
    def qgather(nm):
        a(f"buffer_load_dwordx4 v[80:83], v15, {WS}, 0 offen sc1", name=nm+"0")
        a(f"buffer_load_dwordx4 v[84:87], v15, {WS}, 0 offen offset:16 sc1", name=nm+"1")
    def qaddr():
        a(f"s_lshl_b32 s61, {BB}, 14"); a(f"s_lshl_b32 s62, {KVH}, 11"); a("s_add_u32 s61, s61, s62"); a(f"s_add_u32 s61, s61, {QBUF}")
        a("v_bfe_u32 v15, v1, 2, 2"); a("v_lshlrev_b32 v15, 9, v15")
        a("v_lshrrev_b32 v6, 4, v1"); a("v_lshl_add_u32 v15, v6, 7, v15")
        a("v_and_b32 v7, 3, v1"); a("v_lshl_add_u32 v15, v7, 5, v15"); a("v_add_u32 v15, s61, v15")

    NV0 = 16
    def kphase(p):
        D = DK
        st = {"n": 0}
        def K(upto=None, cnt=None):
            end = upto if upto is not None else st["n"] + cnt
            while st["n"] < end:
                n = st["n"]
                if n < 64: kvload("K", n, D)
                else: kvload("V", n - 64, D)
                st["n"] += 1
        a("s_waitcnt lgkmcnt(0)") if p != "Q" else None
        if p == "Q":
            a(f"s_lshl_b32 s61, {KVH}, 9"); a(f"s_lshl_b32 s62, {RR}, 5"); a("s_add_u32 s61, s61, s62")
            a(f"s_mul_i32 s63, {KVH}, 224"); a("s_add_u32 s62, s62, s63"); a(f"s_sub_u32 s62, s62, {23*32}")
            a(f"s_cmp_lt_u32 {RR}, 16"); a("s_cselect_b32 s76, s61, s62")
            a(f"s_movk_i32 s61, 8192"); a(f"s_movk_i32 s62, 3584"); a(f"s_cselect_b32 {PITCH}, s61, s62")
            a(f"s_mov_b32 s61, {512*4096*2}"); a(f"s_mov_b32 s62, {512*1792*2}"); a("s_cselect_b32 s42, s61, s62"); a("s_mov_b32 s43, 0x20000")
            a("v_lshrrev_b32 v4, 2, v1"); a(f"s_lshl_b32 s61, {WAVE}, 7"); a("v_add_u32 v4, s61, v4")
            a(f"v_mul_u32_u24 v5, {PITCH}, v4")
            a("v_and_b32 v4, 3, v1"); a("v_lshrrev_b32 v6, 5, v1"); a("v_lshlrev_b32 v6, 1, v6"); a("v_xor_b32 v4, v4, v6")
            a("s_lshl_b32 s61, s76, 1"); a("v_add_u32 v5, s61, v5"); a("v_lshl_add_u32 v5, v4, 4, v5")
            a(f"s_lshl_b32 s62, {PITCH}, 4"); a(f"s_lshl_b32 s63, {WAVE}, 13"); a("s_mov_b32 s61, 0")
            a(f"s_cmp_lt_u32 {RR}, 16")
            a("s_waitcnt lgkmcnt(0)")
            a("s_cselect_b32 s40, s10, s16"); a("s_cselect_b32 s41, s11, s17")
            for n in range(8):
                a(f"s_add_u32 m0, s63, {L_W + n*1024}")
                a(f"buffer_load_dwordx4 v5, s[40:43], s61 offen {wf} lds", name=f"W{n}")
                if n < 7: a("s_add_u32 s61, s61, s62")
            a(f"s_lshl_b32 s61, {WAVE}, 11"); a("v_lshl_add_u32 v7, v1, 4, s61")
            a(f"s_mul_i32 s61, {WAVE}, 2080"); a(f"s_add_u32 m0, s61, {L_X}")
            a("global_load_lds_dwordx4 v7, s[4:5]", name="X0")
            a(f"s_add_u32 m0, s61, {L_X+16}")
            a("global_load_lds_dwordx4 v7, s[4:5] offset:1024", name="X1")
        a("s_mov_b32 s32, s6"); a("s_mov_b32 s33, s7")
        if p == "Q":
            K(upto=6)
            a("s_min_u32 s61, s76, 1760"); a(f"s_and_b32 s62, {WAVE}, 1"); a("s_lshl_b32 s62, s62, 4"); a("s_add_u32 s61, s61, s62"); a("s_lshl_b32 s61, s61, 1")
            a("v_lshrrev_b32 v7, 4, v1"); a("v_lshl_add_u32 v4, v7, 3, s61")
            a("global_load_dwordx2 v[14:15], v4, s[18:19]", name="B1")
            consts()
            a("v_lshlrev_b32 v4, 3, v7"); a("v_bfe_u32 v5, v1, 2, 2"); a("v_add_u32 v4, v4, v5"); a("v_lshlrev_b32 v4, 6, v4")
            a("v_and_b32 v5, 3, v1"); a("v_lshl_add_u32 v4, v5, 3, v4")
            a(f"v_xor_b32 v5, {WAVE}, v7"); a("v_and_b32 v5, 1, v5"); a("v_lshl_add_u32 v4, v5, 5, v4")
            a("v_and_b32 v5, 7, v1"); a("v_mul_u32_u24 v6, 1040, v5"); a("v_lshl_add_u32 v6, v7, 4, v6")
            a(f"v_add_u32 v6, {L_X}, v6")
            a(f"s_cmp_lt_u32 {RR}, 16")
            a(f"s_movk_i32 s61, 16384"); a("s_movk_i32 s62, 7168"); a("s_cselect_b32 s61, s61, s62")
            a(f"s_mov_b32 s62, {QBUF}"); a(f"s_mov_b32 s63, {HBUF}"); a("s_cselect_b32 s62, s62, s63")
            a("s_lshl_b32 s63, s76, 2"); a("s_add_u32 s62, s62, s63"); a(f"s_lshl_b32 s63, {WAVE}, 6"); a("s_add_u32 s62, s62, s63")
            a("v_mul_u32_u24 v13, s61, v5"); a("v_lshl_add_u32 v13, v7, 4, v13"); a("v_add_u32 v13, s62, v13")
            K(upto=D + 2)
            get_tag()
            a.wait_vm("X1")
            a("s_barrier")
            K(cnt=2)
            a(f"s_cmp_lt_u32 {WAVE}, 2"); a("s_cbranch_scc0 L_qh_done")
            a.cond = "QH"
            for s in range(16):
                a(f"ds_read_b64_tr_b16 v[{96+4*s}:{97+4*s}], v4 offset:{L_W + s*2048}")
                a(f"ds_read_b64_tr_b16 v[{98+4*s}:{99+4*s}], v4 offset:{L_W + s*2048 + 256}")
                a(f"ds_read_b128 v[{160+4*s}:{163+4*s}], v6 offset:{s*64}")
            a("s_waitcnt lgkmcnt(0)")
            for s in range(16):
                acc = 224 + 4*(s & 1)
                a(f"v_mfma_f32_16x16x32_bf16 v[{acc}:{acc+3}], v[{96+4*s}:{99+4*s}], v[{160+4*s}:{163+4*s}], " + ("0" if s < 2 else f"v[{acc}:{acc+3}]"))
            a(f"v_mov_b32 v237, {TAG}"); a(f"v_mov_b32 v239, {TAG}")
            for r in range(4): a(f"v_add_f32 v{224+r}, v{224+r}, v{228+r}")
            a(f"s_cmp_lt_u32 {RR}, 16"); a("s_cbranch_scc0 L_h_epi")
            a("v_cvt_pk_bf16_f32 v236, v224, v225"); a("v_cvt_pk_bf16_f32 v238, v226, v227")
            a("s_mov_b32 exec_lo, 0x00ff00ff"); a("s_mov_b32 exec_hi, 0x00ff00ff")
            a(f"buffer_store_dwordx4 v[236:239], v13, {WS}, 0 offen {LS}")
            a("s_branch L_qh_pub")
            a.label("L_h_epi")
            a.wait_vm("B1")
            a("v_lshlrev_b32 v232, 16, v14"); a("v_and_b32 v233, 0xffff0000, v14"); a("v_lshlrev_b32 v234, 16, v15"); a("v_and_b32 v235, 0xffff0000, v15")
            k1 = -2.0 * (2.0/3.141592653589793)**0.5 * LOG2E
            for r in range(4): bf16r(f"v{224+r}", f"v{224+r}")
            for r in range(4): a(f"v_add_f32 v{224+r}, v{224+r}, v{232+r}")
            for r in range(4): bf16r(f"v{224+r}", f"v{224+r}")
            for r in range(4): a(f"v_mul_f32 v{232+r}, v{224+r}, v{224+r}")
            a(f"v_mov_b32 v236, {hex(f2u(k1))}")
            for r in range(4): a(f"v_fmamk_f32 v{232+r}, v{232+r}, {hex(f2u(k1*0.044715))}, v236")
            for r in range(4): a(f"v_mul_f32 v{232+r}, v{232+r}, v{224+r}")
            for r in range(4): a(f"v_exp_f32 v{232+r}, v{232+r}")
            for r in range(4): a(f"v_add_f32 v{232+r}, 1.0, v{232+r}")
            for r in range(4): a(f"v_rcp_f32 v{232+r}, v{232+r}")
            for r in range(4): a(f"v_mul_f32 v{224+r}, v{224+r}, v{232+r}")
            a("v_cvt_pk_bf16_f32 v236, v224, v225"); a("v_cvt_pk_bf16_f32 v238, v226, v227")
            a("s_mov_b32 exec_lo, 0x00ff00ff"); a("s_mov_b32 exec_hi, 0x00ff00ff")
            a(f"buffer_store_dwordx4 v[236:239], v13, {WS}, 0 offen sc1")
            a.label("L_qh_pub")
            a("s_mov_b64 exec, -1")
            a.cond = None
            a.label("L_qh_done")
            stamp(1)
            K(upto=24)
        else:
            K(upto=D)
            consts()
            stamp(1)
            K(upto=18)
            if p == "W":
                srd(40, "s20", "s21", 1792*512*2)
                a("v_lshrrev_b32 v5, 3, v1"); a(f"s_lshl_b32 s61, {WAVE}, 6"); a("v_add_u32 v5, s61, v5"); a("v_lshlrev_b32 v5, 10, v5")
                a("v_and_b32 v4, 7, v1"); a("v_bfe_u32 v6, v1, 4, 1"); a("v_lshlrev_b32 v6, 1, v6"); a("v_xor_b32 v4, v4, v6")
                a("v_lshl_add_u32 v5, v4, 4, v5"); a("v_xor_b32 v6, 64, v5")
                a(f"s_sub_u32 s76, {RR}, 16")
                a("s_lshl_b32 s61, s76, 18"); a(f"s_lshl_b32 s62, {KVH}, 7"); a("s_add_u32 s61, s61, s62")
                a(f"s_lshl_b32 s63, {WAVE}, 13")
                for i in range(8):
                    a(f"s_add_u32 m0, s63, {L_W + i*1024}")
                    a(f"buffer_load_dwordx4 v{5+(i&1)}, s[40:43], s61 offen {wf} lds", name=f"W2_{i}")
                    if i < 7: a("s_add_u32 s61, s61, 8192")
                a("v_lshrrev_b32 v4, 4, v1"); a("v_lshlrev_b32 v4, 3, v4"); a("v_bfe_u32 v5, v1, 2, 2"); a("v_add_u32 v4, v4, v5")
                a("v_lshlrev_b32 v4, 7, v4"); a("v_and_b32 v5, 3, v1"); a("v_lshl_add_u32 v4, v5, 3, v4")
                a("v_bfe_u32 v5, v1, 3, 2"); a(f"v_xor_b32 v5, {WAVE}, v5"); a("v_lshl_add_u32 v4, v5, 5, v4")
            K(upto=24)
            get_tag()
        if not wolate: wo_dma()
        gate_loads(p)
        K(upto=44)
        gate(p)
        qaddr()
        if p == "W":
            K(upto=56)
            a("s_lshl_b32 s61, s76, 10"); a(f"s_lshl_b32 s62, {WAVE}, 8"); a("s_add_u32 s61, s61, s62"); a(f"s_add_u32 s61, s61, {HBUF}")
            a("v_and_b32 v7, 7, v1"); a("v_mul_u32_u24 v7, 7168, v7"); a("v_lshl_add_u32 v7, v6, 5, v7"); a("v_add_u32 v7, s61, v7")
            def hgather(nm):
                for i in range(4):
                    a(f"buffer_load_dwordx4 v[{16+4*i}:{19+4*i}], v7, {WS}, 0 offen offset:{(i>>1)*128 + (i&1)*16} sc1", name=f"{nm}{i}")
            hgather("HG")
            a(f"s_lshl_b32 s61, {WAVE}, 11"); a(f"s_add_u32 s61, s61, {L_H}"); a("v_lshl_add_u32 v5, v1, 4, s61")
            a("v_lshlrev_b32 v13, 4, v1")
        K(upto=64)
        qgather("QG")
        if p == "W":
            K(upto=56 + D)
            a.wait_vm("HG3")
            a.label("L_h_chk")
            tagcheck([17 + 2*i for i in range(8)], "v14")
            retry("L_h", hgather)
            for i in range(1, 8): a(f"v_mov_b32 v{16+i}, v{16+2*i}")
            a("ds_write_b128 v5, v[16:19]"); a("ds_write_b128 v5, v[20:23] offset:1024")
            K(cnt=1)
            a("s_waitcnt lgkmcnt(0)")
            a("s_barrier")
            for s in range(8):
                a(f"ds_read_b64_tr_b16 v[{192+4*s}:{193+4*s}], v4 offset:{L_W + s*4096}")
                a(f"ds_read_b64_tr_b16 v[{194+4*s}:{195+4*s}], v4 offset:{L_W + s*4096 + 512}")
                a(f"ds_read_b128 v[{224+4*s}:{227+4*s}], v13 offset:{L_H + s*1024}")
            a(f"s_lshl_b32 s61, {KVH}, 15"); a("s_lshl_b32 s62, s76, 12"); a("s_add_u32 s61, s61, s62")
            a(f"s_lshl_b32 s62, {WAVE}, 7"); a("s_add_u32 s61, s61, s62"); a(f"s_add_u32 s61, s61, {FBUF}")
            a("v_and_b32 v7, 7, v1"); a("v_lshlrev_b32 v7, 9, v7"); a("v_lshl_add_u32 v7, v6, 5, v7"); a("v_add_u32 v7, s61, v7")
            for r in range(4): a(f"v_mov_b32 v{89+2*r}, {TAG}")
            K(cnt=1)
            a("s_waitcnt lgkmcnt(0)")
            for s in range(8):
                a(f"v_mfma_f32_16x16x32_bf16 v[16:19], v[{192+4*s}:{195+4*s}], v[{224+4*s}:{227+4*s}], " + ("0" if s == 0 else "v[16:19]"))
            K(cnt=1)
            for r in range(4): a(f"v_mov_b32 v{88+2*r}, v{16+r}")
            a("s_mov_b32 exec_lo, 0x00ff00ff"); a("s_mov_b32 exec_hi, 0x00ff00ff")
            a(f"buffer_store_dwordx4 v[88:91], v7, {WS}, 0 offen {LS}")
            a(f"buffer_store_dwordx4 v[92:95], v7, {WS}, 0 offen offset:16 {LS}")
            a("s_mov_b64 exec, -1")
        K(upto=64 + NV0)

    a(f"s_cmp_ge_u32 {RR}, 30"); a("s_cbranch_scc1 L_pathN")
    a(f"s_sub_u32 s61, {RR}, 16"); a("s_cmp_lt_u32 s61, 7"); a("s_cbranch_scc1 L_pathW")
    for p in ("Q", "W", "N"):
        if p != "Q": a.label(f"L_path{p}")
        a.vm = []; kvn.clear(); cur["soff"] = 0
        kphase(p)
        if p != "N": a("s_branch L_join")
    a.label("L_join")
    a.vm = [("QG0", True, None), ("QG1", True, None)] + [(f"V{i}", True, None) for i in range(NV0)]
    nv = NV0
    def V(D):
        nonlocal nv
        kvload("V", nv, D); nv += 1

    a.wait_vm("QG1")
    stamp(2)
    a.label("L_q_chk")
    tagcheck([81, 83, 85, 87], "v14")
    retry("L_q", qgather, flush=True)
    for i in range(4): a(f"v_mov_b32 v{40+i}, v{80+2*i}")
    def qk_mfma(u):
        for t in range(4):
            d = 48 + (u & 1)*16 + 4*t; k = 4*(4*u + t)
            a(f"v_mfma_f32_16x16x32_bf16 v[{d}:{d+3}], a[{k}:{k+3}], v[40:43], 0")
    def qk_red(u):
        base = 48 + (u & 1)*16
        for step in range(1, 4):
            for t in range(4):
                c = (t + step) & 3
                d = base + 4*t
                dst = f"v{16+u}" if (t == 0 and step == 3) else f"v{d+t}"
                a(f"v_add_f32_dpp {dst}, v{d+c}, v{d+t} quad_perm:[{c},{c},{c},{c}] row_mask:0xf bank_mask:0xf")
        for t in range(1, 4):
            a(f"v_cndmask_b32 v{16+u}, v{16+u}, v{base+5*t}, s[{62+2*t}:{63+2*t}]")
    qk_mfma(0)
    for u in range(16):
        if u < 15: qk_mfma(u+1)
        qk_red(u)
        if u % 2 == 1: V(DV)
    a("v_max3_f32 v48, v16, v17, v18")
    for i in range(6): a(f"v_max3_f32 v48, v48, v{19+2*i}, v{20+2*i}")
    a("v_max_f32 v48, v48, v31")
    reduce_quad("v48", "v_max_f32")
    reduce_rows("v48", "v49", "v_max_f32")
    a("v_mul_f32 v48, s72, v48")
    for u in range(16): a(f"v_fma_f32 v{16+u}, v{16+u}, s72, -v48")
    V(DV)
    for u in range(16): a(f"v_exp_f32 v{16+u}, v{16+u}")
    for i in range(8): a(f"v_add_f32 v{52+i}, v{16+2*i}, v{17+2*i}")
    for i in range(4): a(f"v_add_f32 v{52+i}, v{52+i}, v{56+i}")
    a("v_add_f32 v52, v52, v54"); a("v_add_f32 v53, v53, v55"); a("v_add_f32 v49, v52, v53")
    V(DV)
    reduce_quad("v49", "v_add_f32")
    reduce_rows("v49", "v50", "v_add_f32")
    a(f"s_lshl_b32 s61, {WAVE}, 9"); a(f"s_add_u32 s61, s61, {L_ML}")
    a("v_lshl_add_u32 v50, v1, 3, s61"); a("v_lshlrev_b32 v51, 3, v1"); a(f"v_add_u32 v51, {L_ML}, v51")
    a("ds_write_b64 v50, v[48:49]")
    V(DV)
    a("s_waitcnt lgkmcnt(0)")
    a("s_barrier")
    for w in range(4): a(f"ds_read_b64 v[{52+2*w}:{53+2*w}], v51 offset:{w*512}")
    a("v_lshrrev_b32 v4, 4, v1"); a("v_lshlrev_b32 v4, 5, v4"); a("v_bfe_u32 v6, v1, 3, 1"); a("v_lshl_add_u32 v4, v6, 3, v4")
    a("v_bfe_u32 v6, v1, 2, 1"); a("v_add_u32 v4, v4, v6"); a("v_lshlrev_b32 v4, 7, v4")
    a("v_and_b32 v6, 3, v1"); a("v_lshl_add_u32 v4, v6, 3, v4")
    a(f"s_and_b32 s61, {WAVE}, 2"); a("v_bfe_u32 v6, v1, 3, 2"); a("v_xor_b32 v6, s61, v6"); a("v_lshl_add_u32 v4, v6, 5, v4")
    a(f"v_add_u32 v4, {L_WO}, v4"); a("v_xor_b32 v13, 32, v4")
    def wo_frags():
        for s in range(4):
            for ct in range(2):
                r = 64 + (ct*4 + s)*4
                ad = "v4" if ct == 0 else "v13"
                a(f"ds_read_b64_tr_b16 a[{r}:{r+1}], {ad} offset:{s*256}")
                a(f"ds_read_b64_tr_b16 a[{r+2}:{r+3}], {ad} offset:{s*256 + 2048}")
    V(DV)
    a("s_waitcnt lgkmcnt(0)")
    if not wolate: wo_frags()
    a("v_max3_f32 v60, v52, v54, v56"); a("v_max_f32 v60, v60, v58")
    a("v_sub_f32 v48, v48, v60"); a("v_exp_f32 v48, v48")
    for w in range(4): a(f"v_sub_f32 v{52+2*w}, v{52+2*w}, v60")
    for w in range(4): a(f"v_exp_f32 v{52+2*w}, v{52+2*w}")
    a("v_mul_f32 v62, v52, v53")
    for w in range(1, 4): a(f"v_fmac_f32 v62, v{52+2*w}, v{53+2*w}")
    a(f"s_cmp_eq_u32 {WAVE}, 2"); a("s_cbranch_scc0 L_ml_done")
    a.cond = "W0"
    a(f"v_mov_b32 v61, {TAG}"); a(f"v_mov_b32 v63, {TAG}")
    a(f"v_writelane_b32 v60, {XCC}, 16")
    a("s_lshl_b32 s61, s77, 7"); a(f"s_add_u32 s61, s61, {MLBUF}"); a("v_lshl_add_u32 v5, v1, 2, s61")
    a("s_mov_b64 exec, 0x11111")
    a(f"buffer_store_dwordx4 v[60:63], v5, {WS}, 0 offen sc1")
    a("s_mov_b64 exec, -1")
    a.cond = None
    a.label("L_ml_done")
    for u in range(16): a(f"v_mul_f32 v{16+u}, v{16+u}, v48")
    for t in range(8): a(f"v_cvt_pk_bf16_f32 v{32+t}, v{16+2*t}, v{17+2*t}")
    V(DV)
    stamp(4)
    a(f"s_and_b32 s61, {WAVE}, 1"); a("s_lshl_b32 s61, s61, 4"); a(f"s_lshl_b32 s62, {KVH}, 5"); a("s_add_u32 s61, s61, s62")
    a("v_lshrrev_b32 v6, 4, v1"); a("v_and_b32 v7, 15, v1")
    a("s_lshl_b32 s62, s61, 10"); a(f"s_lshl_b32 s63, {SP}, 6"); a("s_add_u32 s62, s62, s63"); a(f"s_add_u32 s62, s62, {OBUF}")
    a("v_lshlrev_b32 v24, 10, v7"); a("v_lshl_add_u32 v24, v6, 4, v24"); a("v_add_u32 v24, s62, v24")
    a("s_lshl_b32 s62, s61, 7"); a(f"s_lshl_b32 s63, {SP}, 4"); a("s_add_u32 s62, s62, s63"); a(f"s_add_u32 s62, s62, {MLBUF}")
    a("v_lshl_add_u32 v30, v6, 9, s62")
    a(f"s_lshl_b32 s62, {KVH}, 12"); a(f"s_add_u32 s62, s62, {MLBUF+64}"); a("v_and_b32 v29, 31, v1"); a("v_lshl_add_u32 v29, v29, 7, s62")
    a(f"s_and_b32 s61, {WAVE}, 1"); a("s_lshl_b32 s61, s61, 15"); a(f"s_lshl_b32 s62, {BB}, 16"); a("s_add_u32 s61, s61, s62")
    a(f"s_lshr_b32 s62, {WAVE}, 1"); a("s_lshl_b32 s62, s62, 12"); a("s_add_u32 s61, s61, s62")
    a("s_lshl_b32 s62, s78, 6"); a("s_add_u32 s61, s61, s62"); a(f"s_add_u32 s61, s61, {PBUF}")
    a("v_lshlrev_b32 v25, 13, v6"); a("v_bfe_u32 v7, v1, 3, 1"); a("v_lshl_add_u32 v25, v7, 11, v25")
    a("v_and_b32 v7, 7, v1"); a("v_lshl_add_u32 v25, v7, 3, v25"); a("v_add_u32 v25, s61, v25")
    a("s_lshl_b32 s61, s77, 11"); a(f"s_add_u32 s61, s61, {PBUF}"); a("v_lshl_add_u32 v26, v1, 4, s61")
    a(f"s_lshl_b32 s61, {WAVE}, 11"); a(f"s_add_u32 s61, s61, {L_RED}"); a("v_lshl_add_u32 v27, v1, 2, s61")
    a(f"s_lshl_b32 s61, {WAVE}, 9"); a(f"s_add_u32 s61, s61, {L_RED}"); a("v_lshl_add_u32 v28, v1, 2, s61")
    a(f"s_lshl_b32 s61, {KVH}, 15"); a(f"s_lshl_b32 s62, {BB}, 9"); a("s_add_u32 s61, s61, s62"); a(f"s_add_u32 s61, s61, {FBUF}")
    a("v_bfe_u32 v31, v1, 2, 2"); a("v_lshlrev_b32 v31, 12, v31"); a("v_lshl_add_u32 v31, v12, 3, v31"); a("v_add_u32 v31, s61, v31")
    a(f"s_lshl_b32 s61, {BB}, 10"); a(f"s_lshl_b32 s62, {KVH}, 7"); a("s_add_u32 s61, s61, s62"); a("v_lshl_add_u32 v12, v12, 1, s61")
    a(f"s_and_b32 s75, {TAG}, 0x3ff")
    V(DV)

    def mlgather(nm):
        for r in range(4):
            a(f"buffer_load_dwordx4 v[{80+4*r}:{83+4*r}], v30, {WS}, 0 offen offset:{r*128} sc1", name=f"{nm}{r}")
        a(f"buffer_load_dwordx2 v[20:21], v29, {WS}, 0 offen sc1", name=f"{nm}4")
    def fgather(nm):
        a(f"s_movk_i32 s61, {4*4096}")
        a(f"buffer_load_dwordx2 v[16:17], v31, {WS}, 0 offen sc1", name=nm+"0")
        a("s_and_b32 exec_lo, exec_lo, 0x0fff0fff"); a("s_and_b32 exec_hi, exec_hi, 0x0fff0fff")
        a(f"s_cbranch_execz L_fg_skip{nm}")
        a(f"buffer_load_dwordx2 v[18:19], v31, {WS}, s61 offen sc1", name=nm+"1")
        a.label(f"L_fg_skip{nm}")
        a("s_mov_b64 exec, -1")
    PB = 192
    def poll1(nm):
        for s in range(4):
            a(f"buffer_load_dwordx4 v[{PB+4*s}:{PB+3+4*s}], v24, {WS}, 0 offen offset:{s*256} sc1", name=f"{nm}{s}")
    def flgather(nm):
        a(f"buffer_load_dwordx2 v[20:21], v7, {WS}, 0 offen sc1", name=nm+"0")
    def ml_check():
        a.wait_vm("ML4")
        a.label("L_ml_chk")
        tagcheck([81 + 2*i for i in range(8)] + [21], "v14")
        retry("L_ml", mlgather, flush=True)
        a(f"s_mov_b32 {REM}, 0")
        if local:
            a(f"v_cmp_ne_u32 vcc, {XCC}, v20")
            a("s_cbranch_vccz L_samedie")
            a.cond = "rem"
            a(f"s_mov_b32 {REM}, 1")
            a("s_waitcnt vmcnt(0)"); a("buffer_wbl2 sc1"); a("s_waitcnt vmcnt(0)")
            a("s_lshl_b32 s61, s77, 4"); a(f"s_lshl_b32 s62, {WAVE}, 2"); a("s_add_u32 s61, s61, s62"); a(f"s_add_u32 s61, s61, {FLBUF}")
            a("v_mov_b32 v7, s61"); a(f"v_mov_b32 v14, {TAG}")
            a("s_mov_b64 exec, 1")
            a(f"buffer_store_dword v14, v7, {WS}, 0 offen sc1")
            a("s_mov_b64 exec, -1")
            a(f"s_lshl_b32 s61, {KVH}, 9"); a(f"s_add_u32 s61, s61, {FLBUF}"); a("v_lshl_add_u32 v7, v1, 3, s61")
            flgather("FL")
            a("s_waitcnt vmcnt(0)")
            a.label("L_fl_chk")
            tagcheck([20, 21], "v14")
            retry("L_fl", flgather)
            a.cond = None
            a.label("L_samedie")
        a("v_max3_f32 v14, v80, v84, v88"); a("v_max_f32 v14, v14, v92")
        for r in range(4): a(f"v_sub_f32 v{80+4*r}, v{80+4*r}, v14")
        for r in range(4): a(f"v_exp_f32 v{80+4*r}, v{80+4*r}")
        a("v_mul_f32 v14, v80, v82")
        for r in range(1, 4): a(f"v_fmac_f32 v14, v{80+4*r}, v{82+4*r}")
        a("v_rcp_f32 v14, v14")
        a("v_mov_b32 v42, 0xfffffc00")
        for r in range(4): a(f"v_mul_f32 v{80+4*r}, v{80+4*r}, v14")
    gathered = 0
    for tau in range(8):
        vb = 96 + (tau % 5)*32
        for w in range(4):
            needi = 8*tau + 4 + w
            while nv < 64 and nv <= needi + (DV if nv < EV else DE) and (nv - 40) < 8*tau:
                V(DV if nv < EV else DE)
                if nv == MLG:
                    gathered = 1
                    mlgather("ML")
            if nv == 64 and gathered == 1:
                gathered = 2
                assert tau >= 5
                if wolate: wo_dma()
                a(f"s_cmp_eq_u32 {WAVE}, 3"); a("s_cbranch_scc0 L_fg_done")
                a.cond = "F"
                a("v_mov_b32 v18, 0"); a(f"v_mov_b32 v19, {TAG}")
                fgather("FG")
                a.cond = None
                a.label("L_fg_done")
                ml_check()
            if prepoll and tau == 7 and w == 0:
                assert gathered == 2
                poll1("P0")
            if w == 0:
                for x in range(4):
                    a(f"v_mov_b32_dpp v{44+x}, v{32+tau} quad_perm:[{x},{x},{x},{x}] row_mask:0xf bank_mask:0xf")
            a.wait_vm(f"V{needi}")
            if tau == 7 and w == 3: stamp(5)
            ra = vb + 4*w; rb = vb + 4*(4 + w)
            def perm(m):
                a(f"v_perm_b32 v{48+4*m+w}, v{rb+(m>>1)}, v{ra+(m>>1)}, s{70+(m&1)}")
            def mf(m):
                a(f"v_mfma_f32_16x16x32_bf16 a[{32+4*m}:{35+4*m}], v[44:47], v[{48+4*m}:{51+4*m}], " + ("0" if tau == 0 else f"a[{32+4*m}:{35+4*m}]"))
            if w < 3:
                for m in range(8): perm(m)
            else:
                perm(0); perm(1); perm(2)
                for m in range(8):
                    mf(m)
                    if m + 3 < 8: perm(m + 3)
    assert nv == 64 and gathered == 2
    def sentinel():
        a(f"v_max3_u32 v14, v{PB}, v{PB+1}, v{PB+2}")
        for i in range(6): a(f"v_max3_u32 v14, v14, v{PB+3+2*i}, v{PB+4+2*i}")
        a(f"v_max_u32 v14, v14, v{PB+15}")
        a("v_cmp_eq_u32 vcc, -1, v14")
    for m in range(0, 8, 2):
        a(f"ds_write2st64_b32 v27, a{32+4*m}, a{36+4*m} offset0:{m} offset1:{m+1}")
    if wolate: a.wait_vm("WO3")
    a("s_waitcnt lgkmcnt(0)")
    a("s_barrier")
    for w in range(4): a(f"ds_read2st64_b32 v[{48+2*w}:{49+2*w}], v28 offset0:{w*8} offset1:{w*8+1}")
    a("s_waitcnt lgkmcnt(0)")
    a("v_add_f32 v48, v48, v50"); a("v_add_f32 v49, v49, v51"); a("v_add_f32 v52, v52, v54"); a("v_add_f32 v53, v53, v55")
    a("v_add_f32 v48, v48, v52"); a("v_add_f32 v49, v49, v53")
    a("v_cvt_pk_bf16_f32 v48, v48, v49"); a("v_min_u32 v48, -2, v48")
    a(f"buffer_store_dword v48, v8, {WS}, 0 offen {LS}")
    stamp(6)
    if wolate: wo_frags()
    if local:
        a(f"s_cmp_eq_u32 {REM}, 0"); a("s_cbranch_scc1 L_noflush")
        a("s_waitcnt vmcnt(0)"); a("buffer_wbl2 sc1")
        a.label("L_noflush")
    if prepoll:
        a("s_waitcnt vmcnt(1)")
        sentinel()
        a("s_mov_b64 exec, vcc")
        a("s_cbranch_execz L_p1_skip")
        poll1("P1")
        a.label("L_p1_skip")
        a("s_mov_b64 exec, -1")
    else:
        poll1("P1")
    a("s_waitcnt vmcnt(0) lgkmcnt(0)")
    stamp(3)
    a.label("L_p1_chk")
    for s in range(4):
        for ct in range(2):
            acc = 64 + 4*ct; r = 64 + (ct*4 + s)*4
            a(f"v_mfma_f32_16x16x32_bf16 v[{acc}:{acc+3}], v[{PB+4*s}:{PB+3+4*s}], a[{r}:{r+3}], " + ("0" if s == 0 else f"v[{acc}:{acc+3}]"))
    sentinel()
    retry("L_p1", poll1, sleep=True)
    a("v_mul_f32 v40, v64, v80"); a("v_mul_f32 v41, v68, v80")
    for r in range(1, 4):
        a(f"v_fmac_f32 v40, v{64+r}, v{80+4*r}"); a(f"v_fmac_f32 v41, v{68+r}, v{80+4*r}")
    a("v_and_or_b32 v40, v40, v42, s75"); a("v_and_or_b32 v41, v41, v42, s75")
    a(f"buffer_store_dwordx2 v[40:41], v25, {WS}, 0 offen sc1")
    stamp(7)
    if fbar: a("s_barrier")
    a(f"s_cmp_eq_u32 {WAVE}, 3"); a("s_cbranch_scc0 L_fin")
    a.cond = "F"
    def poll2(nm):
        for s in range(2):
            a(f"buffer_load_dwordx4 v[{96+4*s}:{99+4*s}], v26, {WS}, 0 offen offset:{s*1024} sc1", name=f"{nm}{s}")
    poll2("P2")
    a.label("L_f_chk")
    tagcheck([17, 19], "v14")
    retry("L_f", fgather)
    a("v_add_f32 v16, v16, v18")
    a("v_add_f32_dpp v16, v16, v16 row_ror:4 row_mask:0xf bank_mask:0xf")
    a("v_add_f32_dpp v16, v16, v16 row_ror:8 row_mask:0xf bank_mask:0xf")
    bf16r("v16", "v16"); a("v_add_f32 v16, v16, v11"); bf16r("v16", "v16"); a("v_mul_f32 v16, v16, v10"); bf16r("v16", "v16")
    a("s_waitcnt vmcnt(0)")
    a.label("L_p2_chk")
    tagcheck([96 + i for i in range(8)], "v14", mask="0x3ff")
    retry("L_p2", poll2)
    for i in range(4): a(f"v_add_f32 v{96+i}, v{96+i}, v{100+i}")
    a("v_permlane16_swap_b32 v96, v97"); a("v_permlane16_swap_b32 v98, v99")
    a("v_add_f32 v96, v96, v97"); a("v_add_f32 v98, v98, v99")
    a("v_permlane32_swap_b32 v96, v98"); a("v_add_f32 v96, v96, v98")
    a("v_add_f32_dpp v96, v96, v96 row_ror:4 row_mask:0xf bank_mask:0xf")
    a("v_add_f32_dpp v96, v96, v96 row_ror:8 row_mask:0xf bank_mask:0xf")
    bf16r("v96", "v96"); a("v_mul_f32 v96, v96, v9"); bf16r("v96", "v96"); a("v_add_f32 v96, v96, v16")
    a("v_cvt_pk_bf16_f32 v96, v96, v96")
    a("s_mov_b32 exec_lo, 0x000f000f"); a("s_mov_b32 exec_hi, 0x000f000f")
    a("global_store_short v12, v96, s[26:27]")
    a("s_cmp_eq_u32 s2, 0"); a("s_cbranch_scc0 L_noep")
    a("s_mov_b64 exec, 1")
    a(f"v_mov_b32 v97, {TAG}"); a("v_mov_b32 v98, 0")
    a(f"buffer_store_dword v97, v98, {WS}, 0 offen sc1")
    a.label("L_noep")
    a("s_mov_b64 exec, -1")
    a.cond = None
    a.label("L_fin")
    if stamps:
        stamp(8)
        a("s_waitcnt vmcnt(0)")
        stamp(9)
        a("s_waitcnt lgkmcnt(0)")
        for i in range(10): a(f"v_mov_b32 v{96+i}, s{80+2*i}")
        a("s_getreg_b32 s61, hwreg(HW_REG_HW_ID)"); a("s_lshl_b32 s61, s61, 4"); a(f"s_or_b32 s61, s61, {XCC}")
        a(f"v_mov_b32 v{96+10}, s61"); a(f"v_mov_b32 v{96+11}, {SPIN}")
        a(f"s_lshl_b32 s61, s2, 2"); a(f"s_add_u32 s61, s61, {WAVE}"); a("s_lshl_b32 s61, s61, 6"); a(f"s_add_u32 s61, s61, {STAMP}")
        a("v_mov_b32 v5, s61"); a("s_mov_b64 exec, 1")
        for i in range(3): a(f"buffer_store_dwordx4 v[{96+4*i}:{99+4*i}], v5, {WS}, 0 offen offset:{16*i}")
        if dbg:
            srd(40, "s28", "s29", 256)
            a("v_not_b32 v110, v96"); a("v_mov_b32 v5, 0")
            a("buffer_atomic_umax v110, v5, s[40:43], 0 offen")
            for i in range(10): a(f"buffer_atomic_umax v{96+i}, v5, s[40:43], 0 offen offset:{4+4*i}")
    a.label("L_end")
    a("s_endpgm")
    a.raw('.section .rodata,"a"'); a.raw(".p2align 6"); a.raw(f".amdhsa_kernel {NAME}")
    a.raw("  .amdhsa_next_free_vgpr 512"); a.raw("  .amdhsa_next_free_sgpr 102"); a.raw("  .amdhsa_accum_offset 256")
    a.raw("  .amdhsa_group_segment_fixed_size 0"); a.raw("  .amdhsa_kernarg_size 112"); a.raw("  .amdhsa_user_sgpr_count 2")
    a.raw("  .amdhsa_user_sgpr_kernarg_segment_ptr 1"); a.raw("  .amdhsa_system_sgpr_workgroup_id_x 1"); a.raw(".end_amdhsa_kernel")
    return a.text()

def parse(args):
    kw = {}
    for x in args:
        k, v = x.split("=")
        kw[k] = int(v) if v.lstrip('-').isdigit() else (v.replace("+", " ") if v not in ("True", "False") else v == "True")
    return kw
if __name__ == "__main__":
    import build
    out = sys.argv[1]
    open(out, "w").write(gen(**parse(sys.argv[2:])))
    print(build.build(out))
```

```python
import sys, struct
from asmlib import Asm

NAME = "gated_mix__gqa_block_cached__dense_activation_gelu__decode_kernel"
HEADER = open("gated_mix__gqa_block_cached__dense_activation_gelu__decode.s.ref").read().split("; Override launch")[0]

def f2u(x): return struct.unpack('<I', struct.pack('<f', x))[0]
LOG2E = 1.4426950408889634

QBUF, HBUF, MLBUF, FLBUF, OBUF, FBUF, PBUF, STAMP = 0x10000, 0x30000, 0x40000, 0x48000, 0x50000, 0x90000, 0x100000, 0x400000
L_W, L_H, L_WO, L_X, L_ML, L_RED, L_END = 0, 0x8000, 0x10000, 0x14000, 0x16100, 0x17000, 0x19000

def gen(DK=14, DV=14, DE=16, EV=40, kv="nt", wf="nt", stamps=False, wolate=True, MLG=46, spin=0x100000,
        scramble=False, local=True, prepoll=True, flushn=255, slp=0, slpn=8, fbar=True, dbg=False, touch=0, codepf=0):
    a = Asm()
    a.raw(HEADER + f"; @launch grid=(256,1,1) block=(256,1,1) lds={L_END}")
    a.raw('.amdgcn_target "amdgcn-amd-amdhsa--gfx950"')
    a.raw(".text"); a.raw(f".globl {NAME}"); a.raw(".p2align 8"); a.raw(f".type {NAME},@function"); a.raw(f"{NAME}:")
    LS = "" if local else "sc1"
    def stamp(i):
        if stamps: a(f"s_memrealtime s[{80+2*i}:{81+2*i}]")
    WAVE, KVH, BB, SP, RR, TAG, SOFF, PITCH, XCC, REM = "s52", "s53", "s54", "s55", "s57", "s58", "s59", "s60", "s56", "s74"
    SPIN = "s73"
    def srd(base, lo, hi, size):
        a(f"s_mov_b32 s{base}, {lo}"); a(f"s_mov_b32 s{base+1}, {hi}"); a(f"s_mov_b32 s{base+2}, {size}"); a(f"s_mov_b32 s{base+3}, 0x20000")
    def bf16r(dst, src):
        a(f"v_cvt_pk_bf16_f32 {dst}, {src}, {src}"); a(f"v_and_b32 {dst}, 0xffff0000, {dst}")
    WS = "s[48:51]"
    def reduce_rows(v, t, op):
        a(f"v_mov_b32 {t}, {v}"); a(f"v_permlane16_swap_b32 {v}, {t}"); a(f"{op} {v}, {v}, {t}")
        a(f"v_mov_b32 {t}, {v}"); a(f"v_permlane32_swap_b32 {v}, {t}"); a(f"{op} {v}, {v}, {t}")
    def reduce_quad(v, op):
        a(f"{op}_dpp {v}, {v}, {v} quad_perm:[1,0,3,2] row_mask:0xf bank_mask:0xf")
        a(f"{op}_dpp {v}, {v}, {v} quad_perm:[2,3,0,1] row_mask:0xf bank_mask:0xf")
    def tagcheck(regs, t, mask=None):
        a(f"v_xor_b32 {t}, {TAG}, v{regs[0]}")
        for r in regs[1:]:
            a(f"v_bitop3_b32 {t}, {t}, v{r}, {TAG} bitop3:0xf6")
        if mask: a(f"v_and_b32 {t}, {mask}, {t}")
        a(f"v_cmp_ne_u32 vcc, 0, {t}")
    def retry(lbl, reissue, flush=False, sleep=False):
        a(f"s_cbranch_vccz {lbl}_ok")
        a(f"s_cmp_eq_u32 {SPIN}, 0"); a(f"s_cbranch_scc1 {lbl}_ok")
        a(f"s_sub_u32 {SPIN}, {SPIN}, 1")
        if flush and local:
            a(f"s_and_b32 s61, {SPIN}, {flushn}"); a(f"s_cbranch_scc1 {lbl}_nf")
            a("s_waitcnt vmcnt(0)"); a("buffer_wbl2 sc1")
            a.label(f"{lbl}_nf")
        if sleep and slp:
            a("s_bcnt1_i32_b64 s61, vcc"); a(f"s_cmp_le_u32 s61, {slpn}"); a(f"s_cbranch_scc1 {lbl}_ns"); a(f"s_sleep {slp}"); a.label(f"{lbl}_ns")
        old = a.cond; a.cond = "retry" + lbl
        a("s_mov_b64 exec, vcc")
        reissue("R" + lbl)
        a("s_mov_b64 exec, -1")
        a.cond = old
        a("s_waitcnt vmcnt(0)")
        a(f"s_branch {lbl}_chk")
        a.label(f"{lbl}_ok")

    stamp(0)
    a("s_cmp_ge_u32 s2, 256"); a("s_cbranch_scc1 L_end")
    a("s_load_dwordx16 s[4:19], s[0:1], 0")
    a("s_load_dwordx8 s[20:27], s[0:1], 64")
    a("s_load_dwordx4 s[28:31], s[0:1], 96")
    if scramble:
        a("s_lshr_b32 s3, s2, 3"); a("s_and_b32 s3, s3, 7"); a("s_xor_b32 s2, s2, s3")
    a("v_lshrrev_b32 v4, 6, v0"); a("v_and_b32 v1, 63, v0"); a(f"v_readfirstlane_b32 {WAVE}, v4")
    a(f"s_and_b32 {KVH}, s2, 7"); a(f"s_lshr_b32 {BB}, s2, 5"); a(f"s_bfe_u32 {SP}, s2, 0x20003"); a(f"s_lshr_b32 {RR}, s2, 3")
    a(f"s_lshl_b32 s61, {BB}, 5"); a(f"s_lshl_b32 s62, {KVH}, 2"); a("s_add_u32 s61, s61, s62"); a(f"s_add_u32 s61, s61, {SP}")
    a("s_lshl_b32 s61, s61, 18"); a(f"s_lshl_b32 s62, {WAVE}, 12"); a("s_add_u32 s61, s61, s62")
    a("v_and_b32 v2, 3, v1"); a("v_lshlrev_b32 v2, 4, v2")
    a("v_bfe_u32 v4, v1, 2, 2"); a("v_lshl_add_u32 v2, v4, 8, v2")
    a("v_lshrrev_b32 v4, 4, v1"); a("v_lshl_add_u32 v2, v4, 6, v2")
    a("v_add_u32 v2, s61, v2")
    a("v_lshl_add_u32 v3, v1, 4, s61")
    a(f"s_mov_b32 {SOFF}, 0")
    a("s_mov_b32 s34, 0x4000000"); a("s_mov_b32 s35, 0x20000")

    cur = {"soff": 0}
    kvn = []
    def kvload(which, n, D):
        off = (n >> 2) * 16384; imm = (n & 3) * 1024
        if off != cur["soff"]:
            a(f"s_mov_b32 {SOFF}, {off}"); cur["soff"] = off
        if D and len(kvn) >= D: a.wait_vm(kvn[-D])
        if which == "K":
            a(f"buffer_load_dwordx4 a[{4*n}:{4*n+3}], v2, s[32:35], {SOFF} offen offset:{imm} {kv}", name=f"K{n}")
        else:
            r = 96 + (n % 40) * 4
            a(f"buffer_load_dwordx4 v[{r}:{r+3}], v3, s[36:39], {SOFF} offen offset:{imm} {kv}", name=f"V{n}")
        kvn.append(f"{which}{n}")

    def consts():
        a(f"s_load_dword {TAG}, s[30:31], 0")
        if touch:
            a(f"s_lshl_b32 s61, {BB}, 5"); a(f"s_lshl_b32 s62, {KVH}, 2"); a("s_add_u32 s61, s61, s62"); a(f"s_add_u32 s61, s61, {SP}"); a("s_lshl_b32 s61, s61, 18")
            a("s_load_dword s100, s[8:9], s61")
            a(f"s_lshl_b32 s61, {KVH}, 19")
            a("s_load_dword s100, s[12:13], s61")
            a("s_load_dword s100, s[26:27], 0")
            if touch > 1:
                a("s_load_dword s100, s[22:23], 0"); a("s_load_dword s100, s[24:25], 0"); a("s_load_dword s100, s[4:5], 0"); a("s_load_dword s100, s[20:21], 0")
        if codepf:
            a("s_getpc_b64 s[62:63]")
            a("s_and_b32 s62, s62, 0xffffff00")
            a(f"s_lshl_b32 s61, {RR}, 10"); a(f"s_lshl_b32 s100, {WAVE}, 8"); a("s_add_u32 s61, s61, s100"); a(f"s_min_u32 s61, s61, {codepf}")
            a("v_lshl_add_u32 v5, v1, 2, s61")
            a("global_load_dword v9, v5, s[62:63]")
        srd(36, "s8", "s9", "0x4000000")
        srd(48, "s30", "s31", "0x10000000")
        a("s_mov_b32 s64, 0x22222222"); a("s_mov_b32 s65, 0x22222222")
        a("s_mov_b32 s66, 0x44444444"); a("s_mov_b32 s67, 0x44444444")
        a("s_mov_b32 s68, 0x88888888"); a("s_mov_b32 s69, 0x88888888")
        a("s_mov_b32 s70, 0x05040100"); a("s_mov_b32 s71, 0x07060302")
        a(f"s_mov_b32 s72, {hex(f2u(128**-0.5*LOG2E))}")
        a(f"s_mov_b32 {SPIN}, {spin}")
        a(f"s_getreg_b32 {XCC}, hwreg(HW_REG_XCC_ID, 0, 4)")
        srd(44, "s12", "s13", 4096*512*2)
        a(f"s_lshl_b32 s77, {KVH}, 5"); a(f"s_add_u32 s77, s77, {RR}")
        a("s_lshl_b32 s61, s77, 10"); a(f"s_lshl_b32 s62, {WAVE}, 8"); a("s_add_u32 s61, s61, s62"); a(f"s_add_u32 s61, s61, {OBUF}")
        a("v_lshl_add_u32 v8, v1, 2, s61")
        a(f"s_lshl_b32 s61, {KVH}, 2"); a(f"s_add_u32 s78, s61, {SP}")
        a(f"s_lshr_b32 s61, {SP}, 1"); a("s_lshl_b32 s61, s61, 5"); a(f"s_and_b32 s62, {SP}, 1"); a("s_lshl_b32 s62, s62, 3"); a("s_add_u32 s79, s61, s62")
        a("v_and_b32 v12, 3, v1"); a("v_lshlrev_b32 v12, 1, v12"); a("v_and_b32 v5, 16, v1"); a("v_add_u32 v12, v12, v5")
        a("v_lshrrev_b32 v5, 5, v1"); a("v_add3_u32 v12, v12, v5, s79")
        a("v_mov_b32 v5, -1")
        a(f"buffer_store_dword v5, v8, {WS}, 0 offen {LS}", name="CLR")
    def get_tag():
        a("s_waitcnt lgkmcnt(0)")
        a(f"s_add_u32 {TAG}, {TAG}, 1")
    def wo_dma():
        a("v_lshrrev_b32 v5, 3, v1"); a(f"s_lshl_b32 s61, {WAVE}, 5"); a("v_add_u32 v5, s61, v5"); a("v_lshlrev_b32 v5, 10, v5")
        a(f"s_and_b32 s61, {WAVE}, 1"); a("s_lshl_b32 s61, s61, 2")
        a("v_and_b32 v6, 7, v1"); a("v_xor_b32 v6, s61, v6"); a("v_lshl_add_u32 v5, v6, 4, v5"); a("v_xor_b32 v6, 32, v5")
        a("s_lshl_b32 s61, s78, 17"); a(f"s_lshl_b32 s62, {BB}, 7"); a("s_add_u32 s61, s61, s62")
        a(f"s_lshl_b32 s63, {WAVE}, 12")
        for i in range(4):
            a(f"s_add_u32 m0, s63, {L_WO + i*1024}")
            a(f"buffer_load_dwordx4 v{5+(i&1)}, s[44:47], s61 offen {wf} lds", name=f"WO{i}")
            if i < 3: a("s_add_u32 s61, s61, 8192")
    def gate_loads(p):
        a(f"s_cmp_eq_u32 {WAVE}, 3"); a(f"s_cbranch_scc0 L_f0_done{p}")
        a.cond = "F"
        a(f"s_lshl_b32 s61, {BB}, 10"); a("v_lshl_add_u32 v5, v1, 4, s61")
        a("global_load_dwordx4 v[80:83], v5, s[4:5]", name="GX")
        a("v_lshlrev_b32 v5, 4, v1")
        a("global_load_dwordx4 v[84:87], v5, s[24:25]", name="GW")
        a(f"s_lshl_b32 s62, {KVH}, 7"); a("v_lshl_add_u32 v5, v12, 1, s62")
        a("global_load_ushort v11, v5, s[22:23]", name="GB2")
        a.cond = None
        a.label(f"L_f0_done{p}")
    def gate(p):
        a(f"s_cmp_eq_u32 {WAVE}, 3"); a(f"s_cbranch_scc0 L_f1_done{p}")
        a.cond = "F"
        a.wait_vm("GB2")
        for i in range(4):
            a(f"v_lshlrev_b32 v{48+2*i}, 16, v{80+i}"); a(f"v_and_b32 v{49+2*i}, 0xffff0000, v{80+i}")
            a(f"v_lshlrev_b32 v{56+2*i}, 16, v{84+i}"); a(f"v_and_b32 v{57+2*i}, 0xffff0000, v{84+i}")
        for i in range(8): a(f"v_mul_f32 v{48+i}, v{48+i}, v{56+i}")
        for i in range(4): a(f"v_cvt_pk_bf16_f32 v{56+i}, v{48+2*i}, v{49+2*i}")
        for i in range(4):
            a(f"v_lshlrev_b32 v{48+2*i}, 16, v{56+i}"); a(f"v_and_b32 v{49+2*i}, 0xffff0000, v{56+i}")
        for i in range(4): a(f"v_add_f32 v{48+i}, v{48+i}, v{52+i}")
        a("v_add_f32 v48, v48, v50"); a("v_add_f32 v49, v49, v51"); a("v_add_f32 v48, v48, v49")
        reduce_quad("v48", "v_add_f32")
        a("v_add_f32_dpp v48, v48, v48 row_ror:4 row_mask:0xf bank_mask:0xf")
        a("v_add_f32_dpp v48, v48, v48 row_ror:8 row_mask:0xf bank_mask:0xf")
        reduce_rows("v48", "v49", "v_add_f32")
        bf16r("v48", "v48")
        a(f"v_mul_f32 v48, {hex(f2u(-LOG2E))}, v48"); a("v_exp_f32 v48, v48"); a("v_add_f32 v48, 1.0, v48"); a("v_rcp_f32 v48, v48")
        bf16r("v9", "v48")
        a("v_sub_f32 v10, 1.0, v9"); bf16r("v10", "v10")
        a("v_lshlrev_b32 v11, 16, v11")
        a.cond = None
        a.label(f"L_f1_done{p}")
    def qgather(nm):
        a(f"buffer_load_dwordx4 v[80:83], v15, {WS}, 0 offen sc1", name=nm+"0")
        a(f"buffer_load_dwordx4 v[84:87], v15, {WS}, 0 offen offset:16 sc1", name=nm+"1")
    def qaddr():
        a(f"s_lshl_b32 s61, {BB}, 14"); a(f"s_lshl_b32 s62, {KVH}, 11"); a("s_add_u32 s61, s61, s62"); a(f"s_add_u32 s61, s61, {QBUF}")
        a("v_bfe_u32 v15, v1, 2, 2"); a("v_lshlrev_b32 v15, 9, v15")
        a("v_lshrrev_b32 v6, 4, v1"); a("v_lshl_add_u32 v15, v6, 7, v15")
        a("v_and_b32 v7, 3, v1"); a("v_lshl_add_u32 v15, v7, 5, v15"); a("v_add_u32 v15, s61, v15")

    NV0 = 16
    def kphase(p):
        D = DK
        st = {"n": 0}
        def K(upto=None, cnt=None):
            end = upto if upto is not None else st["n"] + cnt
            while st["n"] < end:
                n = st["n"]
                if n < 64: kvload("K", n, D)
                else: kvload("V", n - 64, D)
                st["n"] += 1
        a("s_waitcnt lgkmcnt(0)") if p != "Q" else None
        if p == "Q":
            a(f"s_lshl_b32 s61, {KVH}, 9"); a(f"s_lshl_b32 s62, {RR}, 5"); a("s_add_u32 s61, s61, s62")
            a(f"s_mul_i32 s63, {KVH}, 224"); a("s_add_u32 s62, s62, s63"); a(f"s_sub_u32 s62, s62, {23*32}")
            a(f"s_cmp_lt_u32 {RR}, 16"); a("s_cselect_b32 s76, s61, s62")
            a(f"s_movk_i32 s61, 8192"); a(f"s_movk_i32 s62, 3584"); a(f"s_cselect_b32 {PITCH}, s61, s62")
            a(f"s_mov_b32 s61, {512*4096*2}"); a(f"s_mov_b32 s62, {512*1792*2}"); a("s_cselect_b32 s42, s61, s62"); a("s_mov_b32 s43, 0x20000")
            a("v_lshrrev_b32 v4, 2, v1"); a(f"s_lshl_b32 s61, {WAVE}, 7"); a("v_add_u32 v4, s61, v4")
            a(f"v_mul_u32_u24 v5, {PITCH}, v4")
            a("v_and_b32 v4, 3, v1"); a("v_lshrrev_b32 v6, 5, v1"); a("v_lshlrev_b32 v6, 1, v6"); a("v_xor_b32 v4, v4, v6")
            a("s_lshl_b32 s61, s76, 1"); a("v_add_u32 v5, s61, v5"); a("v_lshl_add_u32 v5, v4, 4, v5")
            a(f"s_lshl_b32 s62, {PITCH}, 4"); a(f"s_lshl_b32 s63, {WAVE}, 13"); a("s_mov_b32 s61, 0")
            a(f"s_cmp_lt_u32 {RR}, 16")
            a("s_waitcnt lgkmcnt(0)")
            a("s_cselect_b32 s40, s10, s16"); a("s_cselect_b32 s41, s11, s17")
            for n in range(8):
                a(f"s_add_u32 m0, s63, {L_W + n*1024}")
                a(f"buffer_load_dwordx4 v5, s[40:43], s61 offen {wf} lds", name=f"W{n}")
                if n < 7: a("s_add_u32 s61, s61, s62")
            a(f"s_lshl_b32 s61, {WAVE}, 11"); a("v_lshl_add_u32 v7, v1, 4, s61")
            a(f"s_mul_i32 s61, {WAVE}, 2080"); a(f"s_add_u32 m0, s61, {L_X}")
            a("global_load_lds_dwordx4 v7, s[4:5]", name="X0")
            a(f"s_add_u32 m0, s61, {L_X+16}")
            a("global_load_lds_dwordx4 v7, s[4:5] offset:1024", name="X1")
        a("s_mov_b32 s32, s6"); a("s_mov_b32 s33, s7")
        if p == "Q":
            K(upto=6)
            a("s_min_u32 s61, s76, 1760"); a(f"s_and_b32 s62, {WAVE}, 1"); a("s_lshl_b32 s62, s62, 4"); a("s_add_u32 s61, s61, s62"); a("s_lshl_b32 s61, s61, 1")
            a("v_lshrrev_b32 v7, 4, v1"); a("v_lshl_add_u32 v4, v7, 3, s61")
            a("global_load_dwordx2 v[14:15], v4, s[18:19]", name="B1")
            consts()
            a("v_lshlrev_b32 v4, 3, v7"); a("v_bfe_u32 v5, v1, 2, 2"); a("v_add_u32 v4, v4, v5"); a("v_lshlrev_b32 v4, 6, v4")
            a("v_and_b32 v5, 3, v1"); a("v_lshl_add_u32 v4, v5, 3, v4")
            a(f"v_xor_b32 v5, {WAVE}, v7"); a("v_and_b32 v5, 1, v5"); a("v_lshl_add_u32 v4, v5, 5, v4")
            a("v_and_b32 v5, 7, v1"); a("v_mul_u32_u24 v6, 1040, v5"); a("v_lshl_add_u32 v6, v7, 4, v6")
            a(f"v_add_u32 v6, {L_X}, v6")
            a(f"s_cmp_lt_u32 {RR}, 16")
            a(f"s_movk_i32 s61, 16384"); a("s_movk_i32 s62, 7168"); a("s_cselect_b32 s61, s61, s62")
            a(f"s_mov_b32 s62, {QBUF}"); a(f"s_mov_b32 s63, {HBUF}"); a("s_cselect_b32 s62, s62, s63")
            a("s_lshl_b32 s63, s76, 2"); a("s_add_u32 s62, s62, s63"); a(f"s_lshl_b32 s63, {WAVE}, 6"); a("s_add_u32 s62, s62, s63")
            a("v_mul_u32_u24 v13, s61, v5"); a("v_lshl_add_u32 v13, v7, 4, v13"); a("v_add_u32 v13, s62, v13")
            K(upto=D + 2)
            get_tag()
            a.wait_vm("X1")
            a("s_barrier")
            K(cnt=2)
            a(f"s_cmp_lt_u32 {WAVE}, 2"); a("s_cbranch_scc0 L_qh_done")
            a.cond = "QH"
            for s in range(16):
                a(f"ds_read_b64_tr_b16 v[{96+4*s}:{97+4*s}], v4 offset:{L_W + s*2048}")
                a(f"ds_read_b64_tr_b16 v[{98+4*s}:{99+4*s}], v4 offset:{L_W + s*2048 + 256}")
                a(f"ds_read_b128 v[{160+4*s}:{163+4*s}], v6 offset:{s*64}")
            a("s_waitcnt lgkmcnt(0)")
            for s in range(16):
                acc = 224 + 4*(s & 1)
                a(f"v_mfma_f32_16x16x32_bf16 v[{acc}:{acc+3}], v[{96+4*s}:{99+4*s}], v[{160+4*s}:{163+4*s}], " + ("0" if s < 2 else f"v[{acc}:{acc+3}]"))
            a(f"v_mov_b32 v237, {TAG}"); a(f"v_mov_b32 v239, {TAG}")
            for r in range(4): a(f"v_add_f32 v{224+r}, v{224+r}, v{228+r}")
            a(f"s_cmp_lt_u32 {RR}, 16"); a("s_cbranch_scc0 L_h_epi")
            a("v_cvt_pk_bf16_f32 v236, v224, v225"); a("v_cvt_pk_bf16_f32 v238, v226, v227")
            a("s_mov_b32 exec_lo, 0x00ff00ff"); a("s_mov_b32 exec_hi, 0x00ff00ff")
            a(f"buffer_store_dwordx4 v[236:239], v13, {WS}, 0 offen {LS}")
            a("s_branch L_qh_pub")
            a.label("L_h_epi")
            a.wait_vm("B1")
            a("v_lshlrev_b32 v232, 16, v14"); a("v_and_b32 v233, 0xffff0000, v14"); a("v_lshlrev_b32 v234, 16, v15"); a("v_and_b32 v235, 0xffff0000, v15")
            k1 = -2.0 * (2.0/3.141592653589793)**0.5 * LOG2E
            for r in range(4): bf16r(f"v{224+r}", f"v{224+r}")
            for r in range(4): a(f"v_add_f32 v{224+r}, v{224+r}, v{232+r}")
            for r in range(4): bf16r(f"v{224+r}", f"v{224+r}")
            for r in range(4): a(f"v_mul_f32 v{232+r}, v{224+r}, v{224+r}")
            a(f"v_mov_b32 v236, {hex(f2u(k1))}")
            for r in range(4): a(f"v_fmamk_f32 v{232+r}, v{232+r}, {hex(f2u(k1*0.044715))}, v236")
            for r in range(4): a(f"v_mul_f32 v{232+r}, v{232+r}, v{224+r}")
            for r in range(4): a(f"v_exp_f32 v{232+r}, v{232+r}")
            for r in range(4): a(f"v_add_f32 v{232+r}, 1.0, v{232+r}")
            for r in range(4): a(f"v_rcp_f32 v{232+r}, v{232+r}")
            for r in range(4): a(f"v_mul_f32 v{224+r}, v{224+r}, v{232+r}")
            a("v_cvt_pk_bf16_f32 v236, v224, v225"); a("v_cvt_pk_bf16_f32 v238, v226, v227")
            a("s_mov_b32 exec_lo, 0x00ff00ff"); a("s_mov_b32 exec_hi, 0x00ff00ff")
            a(f"buffer_store_dwordx4 v[236:239], v13, {WS}, 0 offen sc1")
            a.label("L_qh_pub")
            a("s_mov_b64 exec, -1")
            a.cond = None
            a.label("L_qh_done")
            stamp(1)
            K(upto=24)
        else:
            K(upto=D)
            consts()
            stamp(1)
            K(upto=18)
            if p == "W":
                srd(40, "s20", "s21", 1792*512*2)
                a("v_lshrrev_b32 v5, 3, v1"); a(f"s_lshl_b32 s61, {WAVE}, 6"); a("v_add_u32 v5, s61, v5"); a("v_lshlrev_b32 v5, 10, v5")
                a("v_and_b32 v4, 7, v1"); a("v_bfe_u32 v6, v1, 4, 1"); a("v_lshlrev_b32 v6, 1, v6"); a("v_xor_b32 v4, v4, v6")
                a("v_lshl_add_u32 v5, v4, 4, v5"); a("v_xor_b32 v6, 64, v5")
                a(f"s_sub_u32 s76, {RR}, 16")
                a("s_lshl_b32 s61, s76, 18"); a(f"s_lshl_b32 s62, {KVH}, 7"); a("s_add_u32 s61, s61, s62")
                a(f"s_lshl_b32 s63, {WAVE}, 13")
                for i in range(8):
                    a(f"s_add_u32 m0, s63, {L_W + i*1024}")
                    a(f"buffer_load_dwordx4 v{5+(i&1)}, s[40:43], s61 offen {wf} lds", name=f"W2_{i}")
                    if i < 7: a("s_add_u32 s61, s61, 8192")
                a("v_lshrrev_b32 v4, 4, v1"); a("v_lshlrev_b32 v4, 3, v4"); a("v_bfe_u32 v5, v1, 2, 2"); a("v_add_u32 v4, v4, v5")
                a("v_lshlrev_b32 v4, 7, v4"); a("v_and_b32 v5, 3, v1"); a("v_lshl_add_u32 v4, v5, 3, v4")
                a("v_bfe_u32 v5, v1, 3, 2"); a(f"v_xor_b32 v5, {WAVE}, v5"); a("v_lshl_add_u32 v4, v5, 5, v4")
            K(upto=24)
            get_tag()
        if not wolate: wo_dma()
        gate_loads(p)
        K(upto=44)
        gate(p)
        qaddr()
        if p == "W":
            K(upto=56)
            a("s_lshl_b32 s61, s76, 10"); a(f"s_lshl_b32 s62, {WAVE}, 8"); a("s_add_u32 s61, s61, s62"); a(f"s_add_u32 s61, s61, {HBUF}")
            a("v_and_b32 v7, 7, v1"); a("v_mul_u32_u24 v7, 7168, v7"); a("v_lshl_add_u32 v7, v6, 5, v7"); a("v_add_u32 v7, s61, v7")
            def hgather(nm):
                for i in range(4):
                    a(f"buffer_load_dwordx4 v[{16+4*i}:{19+4*i}], v7, {WS}, 0 offen offset:{(i>>1)*128 + (i&1)*16} sc1", name=f"{nm}{i}")
            hgather("HG")
            a(f"s_lshl_b32 s61, {WAVE}, 11"); a(f"s_add_u32 s61, s61, {L_H}"); a("v_lshl_add_u32 v5, v1, 4, s61")
            a("v_lshlrev_b32 v13, 4, v1")
        K(upto=64)
        qgather("QG")
        if p == "W":
            K(upto=56 + D)
            a.wait_vm("HG3")
            a.label("L_h_chk")
            tagcheck([17 + 2*i for i in range(8)], "v14")
            retry("L_h", hgather)
            for i in range(1, 8): a(f"v_mov_b32 v{16+i}, v{16+2*i}")
            a("ds_write_b128 v5, v[16:19]"); a("ds_write_b128 v5, v[20:23] offset:1024")
            K(cnt=1)
            a("s_waitcnt lgkmcnt(0)")
            a("s_barrier")
            for s in range(8):
                a(f"ds_read_b64_tr_b16 v[{192+4*s}:{193+4*s}], v4 offset:{L_W + s*4096}")
                a(f"ds_read_b64_tr_b16 v[{194+4*s}:{195+4*s}], v4 offset:{L_W + s*4096 + 512}")
                a(f"ds_read_b128 v[{224+4*s}:{227+4*s}], v13 offset:{L_H + s*1024}")
            a(f"s_lshl_b32 s61, {KVH}, 15"); a("s_lshl_b32 s62, s76, 12"); a("s_add_u32 s61, s61, s62")
            a(f"s_lshl_b32 s62, {WAVE}, 7"); a("s_add_u32 s61, s61, s62"); a(f"s_add_u32 s61, s61, {FBUF}")
            a("v_and_b32 v7, 7, v1"); a("v_lshlrev_b32 v7, 9, v7"); a("v_lshl_add_u32 v7, v6, 5, v7"); a("v_add_u32 v7, s61, v7")
            for r in range(4): a(f"v_mov_b32 v{89+2*r}, {TAG}")
            K(cnt=1)
            a("s_waitcnt lgkmcnt(0)")
            for s in range(8):
                a(f"v_mfma_f32_16x16x32_bf16 v[16:19], v[{192+4*s}:{195+4*s}], v[{224+4*s}:{227+4*s}], " + ("0" if s == 0 else "v[16:19]"))
            K(cnt=1)
            for r in range(4): a(f"v_mov_b32 v{88+2*r}, v{16+r}")
            a("s_mov_b32 exec_lo, 0x00ff00ff"); a("s_mov_b32 exec_hi, 0x00ff00ff")
            a(f"buffer_store_dwordx4 v[88:91], v7, {WS}, 0 offen {LS}")
            a(f"buffer_store_dwordx4 v[92:95], v7, {WS}, 0 offen offset:16 {LS}")
            a("s_mov_b64 exec, -1")
        K(upto=64 + NV0)

    a(f"s_cmp_ge_u32 {RR}, 30"); a("s_cbranch_scc1 L_pathN")
    a(f"s_sub_u32 s61, {RR}, 16"); a("s_cmp_lt_u32 s61, 7"); a("s_cbranch_scc1 L_pathW")
    for p in ("Q", "W", "N"):
        if p != "Q": a.label(f"L_path{p}")
        a.vm = []; kvn.clear(); cur["soff"] = 0
        kphase(p)
        if p != "N": a("s_branch L_join")
    a.label("L_join")
    a.vm = [("QG0", True, None), ("QG1", True, None)] + [(f"V{i}", True, None) for i in range(NV0)]
    nv = NV0
    def V(D):
        nonlocal nv
        kvload("V", nv, D); nv += 1

    a.wait_vm("QG1")
    stamp(2)
    a.label("L_q_chk")
    tagcheck([81, 83, 85, 87], "v14")
    retry("L_q", qgather, flush=True)
    for i in range(4): a(f"v_mov_b32 v{40+i}, v{80+2*i}")
    def qk_mfma(u):
        for t in range(4):
            d = 48 + (u & 1)*16 + 4*t; k = 4*(4*u + t)
            a(f"v_mfma_f32_16x16x32_bf16 v[{d}:{d+3}], a[{k}:{k+3}], v[40:43], 0")
    def qk_red(u):
        base = 48 + (u & 1)*16
        for step in range(1, 4):
            for t in range(4):
                c = (t + step) & 3
                d = base + 4*t
                dst = f"v{16+u}" if (t == 0 and step == 3) else f"v{d+t}"
                a(f"v_add_f32_dpp {dst}, v{d+c}, v{d+t} quad_perm:[{c},{c},{c},{c}] row_mask:0xf bank_mask:0xf")
        for t in range(1, 4):
            a(f"v_cndmask_b32 v{16+u}, v{16+u}, v{base+5*t}, s[{62+2*t}:{63+2*t}]")
    qk_mfma(0)
    for u in range(16):
        if u < 15: qk_mfma(u+1)
        qk_red(u)
        if u % 2 == 1: V(DV)
    a("v_max3_f32 v48, v16, v17, v18")
    for i in range(6): a(f"v_max3_f32 v48, v48, v{19+2*i}, v{20+2*i}")
    a("v_max_f32 v48, v48, v31")
    reduce_quad("v48", "v_max_f32")
    reduce_rows("v48", "v49", "v_max_f32")
    a("v_mul_f32 v48, s72, v48")
    for u in range(16): a(f"v_fma_f32 v{16+u}, v{16+u}, s72, -v48")
    V(DV)
    for u in range(16): a(f"v_exp_f32 v{16+u}, v{16+u}")
    for i in range(8): a(f"v_add_f32 v{52+i}, v{16+2*i}, v{17+2*i}")
    for i in range(4): a(f"v_add_f32 v{52+i}, v{52+i}, v{56+i}")
    a("v_add_f32 v52, v52, v54"); a("v_add_f32 v53, v53, v55"); a("v_add_f32 v49, v52, v53")
    V(DV)
    reduce_quad("v49", "v_add_f32")
    reduce_rows("v49", "v50", "v_add_f32")
    a(f"s_lshl_b32 s61, {WAVE}, 9"); a(f"s_add_u32 s61, s61, {L_ML}")
    a("v_lshl_add_u32 v50, v1, 3, s61"); a("v_lshlrev_b32 v51, 3, v1"); a(f"v_add_u32 v51, {L_ML}, v51")
    a("ds_write_b64 v50, v[48:49]")
    V(DV)
    a("s_waitcnt lgkmcnt(0)")
    a("s_barrier")
    for w in range(4): a(f"ds_read_b64 v[{52+2*w}:{53+2*w}], v51 offset:{w*512}")
    a("v_lshrrev_b32 v4, 4, v1"); a("v_lshlrev_b32 v4, 5, v4"); a("v_bfe_u32 v6, v1, 3, 1"); a("v_lshl_add_u32 v4, v6, 3, v4")
    a("v_bfe_u32 v6, v1, 2, 1"); a("v_add_u32 v4, v4, v6"); a("v_lshlrev_b32 v4, 7, v4")
    a("v_and_b32 v6, 3, v1"); a("v_lshl_add_u32 v4, v6, 3, v4")
    a(f"s_and_b32 s61, {WAVE}, 2"); a("v_bfe_u32 v6, v1, 3, 2"); a("v_xor_b32 v6, s61, v6"); a("v_lshl_add_u32 v4, v6, 5, v4")
    a(f"v_add_u32 v4, {L_WO}, v4"); a("v_xor_b32 v13, 32, v4")
    def wo_frags():
        for s in range(4):
            for ct in range(2):
                r = 64 + (ct*4 + s)*4
                ad = "v4" if ct == 0 else "v13"
                a(f"ds_read_b64_tr_b16 a[{r}:{r+1}], {ad} offset:{s*256}")
                a(f"ds_read_b64_tr_b16 a[{r+2}:{r+3}], {ad} offset:{s*256 + 2048}")
    V(DV)
    a("s_waitcnt lgkmcnt(0)")
    if not wolate: wo_frags()
    a("v_max3_f32 v60, v52, v54, v56"); a("v_max_f32 v60, v60, v58")
    a("v_sub_f32 v48, v48, v60"); a("v_exp_f32 v48, v48")
    for w in range(4): a(f"v_sub_f32 v{52+2*w}, v{52+2*w}, v60")
    for w in range(4): a(f"v_exp_f32 v{52+2*w}, v{52+2*w}")
    a("v_mul_f32 v62, v52, v53")
    for w in range(1, 4): a(f"v_fmac_f32 v62, v{52+2*w}, v{53+2*w}")
    a(f"s_cmp_eq_u32 {WAVE}, 2"); a("s_cbranch_scc0 L_ml_done")
    a.cond = "W0"
    a(f"v_mov_b32 v61, {TAG}"); a(f"v_mov_b32 v63, {TAG}")
    a(f"v_writelane_b32 v60, {XCC}, 16")
    a("s_lshl_b32 s61, s77, 7"); a(f"s_add_u32 s61, s61, {MLBUF}"); a("v_lshl_add_u32 v5, v1, 2, s61")
    a("s_mov_b64 exec, 0x11111")
    a(f"buffer_store_dwordx4 v[60:63], v5, {WS}, 0 offen sc1")
    a("s_mov_b64 exec, -1")
    a.cond = None
    a.label("L_ml_done")
    for u in range(16): a(f"v_mul_f32 v{16+u}, v{16+u}, v48")
    for t in range(8): a(f"v_cvt_pk_bf16_f32 v{32+t}, v{16+2*t}, v{17+2*t}")
    V(DV)
    stamp(4)
    a(f"s_and_b32 s61, {WAVE}, 1"); a("s_lshl_b32 s61, s61, 4"); a(f"s_lshl_b32 s62, {KVH}, 5"); a("s_add_u32 s61, s61, s62")
    a("v_lshrrev_b32 v6, 4, v1"); a("v_and_b32 v7, 15, v1")
    a("s_lshl_b32 s62, s61, 10"); a(f"s_lshl_b32 s63, {SP}, 6"); a("s_add_u32 s62, s62, s63"); a(f"s_add_u32 s62, s62, {OBUF}")
    a("v_lshlrev_b32 v24, 10, v7"); a("v_lshl_add_u32 v24, v6, 4, v24"); a("v_add_u32 v24, s62, v24")
    a("s_lshl_b32 s62, s61, 7"); a(f"s_lshl_b32 s63, {SP}, 4"); a("s_add_u32 s62, s62, s63"); a(f"s_add_u32 s62, s62, {MLBUF}")
    a("v_lshl_add_u32 v30, v6, 9, s62")
    a(f"s_lshl_b32 s62, {KVH}, 12"); a(f"s_add_u32 s62, s62, {MLBUF+64}"); a("v_and_b32 v29, 31, v1"); a("v_lshl_add_u32 v29, v29, 7, s62")
    a(f"s_and_b32 s61, {WAVE}, 1"); a("s_lshl_b32 s61, s61, 15"); a(f"s_lshl_b32 s62, {BB}, 16"); a("s_add_u32 s61, s61, s62")
    a(f"s_lshr_b32 s62, {WAVE}, 1"); a("s_lshl_b32 s62, s62, 12"); a("s_add_u32 s61, s61, s62")
    a("s_lshl_b32 s62, s78, 6"); a("s_add_u32 s61, s61, s62"); a(f"s_add_u32 s61, s61, {PBUF}")
    a("v_lshlrev_b32 v25, 13, v6"); a("v_bfe_u32 v7, v1, 3, 1"); a("v_lshl_add_u32 v25, v7, 11, v25")
    a("v_and_b32 v7, 7, v1"); a("v_lshl_add_u32 v25, v7, 3, v25"); a("v_add_u32 v25, s61, v25")
    a("s_lshl_b32 s61, s77, 11"); a(f"s_add_u32 s61, s61, {PBUF}"); a("v_lshl_add_u32 v26, v1, 4, s61")
    a(f"s_lshl_b32 s61, {WAVE}, 11"); a(f"s_add_u32 s61, s61, {L_RED}"); a("v_lshl_add_u32 v27, v1, 2, s61")
    a(f"s_lshl_b32 s61, {WAVE}, 9"); a(f"s_add_u32 s61, s61, {L_RED}"); a("v_lshl_add_u32 v28, v1, 2, s61")
    a(f"s_lshl_b32 s61, {KVH}, 15"); a(f"s_lshl_b32 s62, {BB}, 9"); a("s_add_u32 s61, s61, s62"); a(f"s_add_u32 s61, s61, {FBUF}")
    a("v_bfe_u32 v31, v1, 2, 2"); a("v_lshlrev_b32 v31, 12, v31"); a("v_lshl_add_u32 v31, v12, 3, v31"); a("v_add_u32 v31, s61, v31")
    a(f"s_lshl_b32 s61, {BB}, 10"); a(f"s_lshl_b32 s62, {KVH}, 7"); a("s_add_u32 s61, s61, s62"); a("v_lshl_add_u32 v12, v12, 1, s61")
    a(f"s_and_b32 s75, {TAG}, 0x3ff")
    V(DV)

    def mlgather(nm):
        for r in range(4):
            a(f"buffer_load_dwordx4 v[{80+4*r}:{83+4*r}], v30, {WS}, 0 offen offset:{r*128} sc1", name=f"{nm}{r}")
        a(f"buffer_load_dwordx2 v[20:21], v29, {WS}, 0 offen sc1", name=f"{nm}4")
    def fgather(nm):
        a(f"s_movk_i32 s61, {4*4096}")
        a(f"buffer_load_dwordx2 v[16:17], v31, {WS}, 0 offen sc1", name=nm+"0")
        a("s_and_b32 exec_lo, exec_lo, 0x0fff0fff"); a("s_and_b32 exec_hi, exec_hi, 0x0fff0fff")
        a(f"s_cbranch_execz L_fg_skip{nm}")
        a(f"buffer_load_dwordx2 v[18:19], v31, {WS}, s61 offen sc1", name=nm+"1")
        a.label(f"L_fg_skip{nm}")
        a("s_mov_b64 exec, -1")
    PB = 192
    def poll1(nm):
        for s in range(4):
            a(f"buffer_load_dwordx4 v[{PB+4*s}:{PB+3+4*s}], v24, {WS}, 0 offen offset:{s*256} sc1", name=f"{nm}{s}")
    def flgather(nm):
        a(f"buffer_load_dwordx2 v[20:21], v7, {WS}, 0 offen sc1", name=nm+"0")
    def ml_check():
        a.wait_vm("ML4")
        a.label("L_ml_chk")
        tagcheck([81 + 2*i for i in range(8)] + [21], "v14")
        retry("L_ml", mlgather, flush=True)
        a(f"s_mov_b32 {REM}, 0")
        if local:
            a(f"v_cmp_ne_u32 vcc, {XCC}, v20")
            a("s_cbranch_vccz L_samedie")
            a.cond = "rem"
            a(f"s_mov_b32 {REM}, 1")
            a("s_waitcnt vmcnt(0)"); a("buffer_wbl2 sc1"); a("s_waitcnt vmcnt(0)")
            a("s_lshl_b32 s61, s77, 4"); a(f"s_lshl_b32 s62, {WAVE}, 2"); a("s_add_u32 s61, s61, s62"); a(f"s_add_u32 s61, s61, {FLBUF}")
            a("v_mov_b32 v7, s61"); a(f"v_mov_b32 v14, {TAG}")
            a("s_mov_b64 exec, 1")
            a(f"buffer_store_dword v14, v7, {WS}, 0 offen sc1")
            a("s_mov_b64 exec, -1")
            a(f"s_lshl_b32 s61, {KVH}, 9"); a(f"s_add_u32 s61, s61, {FLBUF}"); a("v_lshl_add_u32 v7, v1, 3, s61")
            flgather("FL")
            a("s_waitcnt vmcnt(0)")
            a.label("L_fl_chk")
            tagcheck([20, 21], "v14")
            retry("L_fl", flgather)
            a.cond = None
            a.label("L_samedie")
        a("v_max3_f32 v14, v80, v84, v88"); a("v_max_f32 v14, v14, v92")
        for r in range(4): a(f"v_sub_f32 v{80+4*r}, v{80+4*r}, v14")
        for r in range(4): a(f"v_exp_f32 v{80+4*r}, v{80+4*r}")
        a("v_mul_f32 v14, v80, v82")
        for r in range(1, 4): a(f"v_fmac_f32 v14, v{80+4*r}, v{82+4*r}")
        a("v_rcp_f32 v14, v14")
        a("v_mov_b32 v42, 0xfffffc00")
        for r in range(4): a(f"v_mul_f32 v{80+4*r}, v{80+4*r}, v14")
    gathered = 0
    for tau in range(8):
        vb = 96 + (tau % 5)*32
        for w in range(4):
            needi = 8*tau + 4 + w
            while nv < 64 and nv <= needi + (DV if nv < EV else DE) and (nv - 40) < 8*tau:
                V(DV if nv < EV else DE)
                if nv == MLG:
                    gathered = 1
                    mlgather("ML")
            if nv == 64 and gathered == 1:
                gathered = 2
                assert tau >= 5
                if wolate: wo_dma()
                a(f"s_cmp_eq_u32 {WAVE}, 3"); a("s_cbranch_scc0 L_fg_done")
                a.cond = "F"
                a("v_mov_b32 v18, 0"); a(f"v_mov_b32 v19, {TAG}")
                fgather("FG")
                a.cond = None
                a.label("L_fg_done")
                ml_check()
            if prepoll and tau == 7 and w == 0:
                assert gathered == 2
                poll1("P0")
            if w == 0:
                for x in range(4):
                    a(f"v_mov_b32_dpp v{44+x}, v{32+tau} quad_perm:[{x},{x},{x},{x}] row_mask:0xf bank_mask:0xf")
            a.wait_vm(f"V{needi}")
            if tau == 7 and w == 3: stamp(5)
            ra = vb + 4*w; rb = vb + 4*(4 + w)
            def perm(m):
                a(f"v_perm_b32 v{48+4*m+w}, v{rb+(m>>1)}, v{ra+(m>>1)}, s{70+(m&1)}")
            def mf(m):
                a(f"v_mfma_f32_16x16x32_bf16 a[{32+4*m}:{35+4*m}], v[44:47], v[{48+4*m}:{51+4*m}], " + ("0" if tau == 0 else f"a[{32+4*m}:{35+4*m}]"))
            if w < 3:
                for m in range(8): perm(m)
            else:
                perm(0); perm(1); perm(2)
                for m in range(8):
                    mf(m)
                    if m + 3 < 8: perm(m + 3)
    assert nv == 64 and gathered == 2
    def sentinel():
        a(f"v_max3_u32 v14, v{PB}, v{PB+1}, v{PB+2}")
        for i in range(6): a(f"v_max3_u32 v14, v14, v{PB+3+2*i}, v{PB+4+2*i}")
        a(f"v_max_u32 v14, v14, v{PB+15}")
        a("v_cmp_eq_u32 vcc, -1, v14")
    for m in range(0, 8, 2):
        a(f"ds_write2st64_b32 v27, a{32+4*m}, a{36+4*m} offset0:{m} offset1:{m+1}")
    if wolate: a.wait_vm("WO3")
    a("s_waitcnt lgkmcnt(0)")
    a("s_barrier")
    for w in range(4): a(f"ds_read2st64_b32 v[{48+2*w}:{49+2*w}], v28 offset0:{w*8} offset1:{w*8+1}")
    a("s_waitcnt lgkmcnt(0)")
    a("v_add_f32 v48, v48, v50"); a("v_add_f32 v49, v49, v51"); a("v_add_f32 v52, v52, v54"); a("v_add_f32 v53, v53, v55")
    a("v_add_f32 v48, v48, v52"); a("v_add_f32 v49, v49, v53")
    a("v_cvt_pk_bf16_f32 v48, v48, v49"); a("v_min_u32 v48, -2, v48")
    a(f"buffer_store_dword v48, v8, {WS}, 0 offen {LS}")
    stamp(6)
    if wolate: wo_frags()
    if local:
        a(f"s_cmp_eq_u32 {REM}, 0"); a("s_cbranch_scc1 L_noflush")
        a("s_waitcnt vmcnt(0)"); a("buffer_wbl2 sc1")
        a.label("L_noflush")
    if prepoll:
        a("s_waitcnt vmcnt(1)")
        sentinel()
        a("s_mov_b64 exec, vcc")
        a("s_cbranch_execz L_p1_skip")
        poll1("P1")
        a.label("L_p1_skip")
        a("s_mov_b64 exec, -1")
    else:
        poll1("P1")
    a("s_waitcnt vmcnt(0) lgkmcnt(0)")
    stamp(3)
    a.label("L_p1_chk")
    for s in range(4):
        for ct in range(2):
            acc = 64 + 4*ct; r = 64 + (ct*4 + s)*4
            a(f"v_mfma_f32_16x16x32_bf16 v[{acc}:{acc+3}], v[{PB+4*s}:{PB+3+4*s}], a[{r}:{r+3}], " + ("0" if s == 0 else f"v[{acc}:{acc+3}]"))
    sentinel()
    retry("L_p1", poll1, sleep=True)
    a("v_mul_f32 v40, v64, v80"); a("v_mul_f32 v41, v68, v80")
    for r in range(1, 4):
        a(f"v_fmac_f32 v40, v{64+r}, v{80+4*r}"); a(f"v_fmac_f32 v41, v{68+r}, v{80+4*r}")
    a("v_and_or_b32 v40, v40, v42, s75"); a("v_and_or_b32 v41, v41, v42, s75")
    a(f"buffer_store_dwordx2 v[40:41], v25, {WS}, 0 offen sc1")
    stamp(7)
    if fbar: a("s_barrier")
    a(f"s_cmp_eq_u32 {WAVE}, 3"); a("s_cbranch_scc0 L_fin")
    a.cond = "F"
    def poll2(nm):
        for s in range(2):
            a(f"buffer_load_dwordx4 v[{96+4*s}:{99+4*s}], v26, {WS}, 0 offen offset:{s*1024} sc1", name=f"{nm}{s}")
    poll2("P2")
    a.label("L_f_chk")
    tagcheck([17, 19], "v14")
    retry("L_f", fgather)
    a("v_add_f32 v16, v16, v18")
    a("v_add_f32_dpp v16, v16, v16 row_ror:4 row_mask:0xf bank_mask:0xf")
    a("v_add_f32_dpp v16, v16, v16 row_ror:8 row_mask:0xf bank_mask:0xf")
    bf16r("v16", "v16"); a("v_add_f32 v16, v16, v11"); bf16r("v16", "v16"); a("v_mul_f32 v16, v16, v10"); bf16r("v16", "v16")
    a("s_waitcnt vmcnt(0)")
    a.label("L_p2_chk")
    tagcheck([96 + i for i in range(8)], "v14", mask="0x3ff")
    retry("L_p2", poll2)
    for i in range(4): a(f"v_add_f32 v{96+i}, v{96+i}, v{100+i}")
    a("v_permlane16_swap_b32 v96, v97"); a("v_permlane16_swap_b32 v98, v99")
    a("v_add_f32 v96, v96, v97"); a("v_add_f32 v98, v98, v99")
    a("v_permlane32_swap_b32 v96, v98"); a("v_add_f32 v96, v96, v98")
    a("v_add_f32_dpp v96, v96, v96 row_ror:4 row_mask:0xf bank_mask:0xf")
    a("v_add_f32_dpp v96, v96, v96 row_ror:8 row_mask:0xf bank_mask:0xf")
    bf16r("v96", "v96"); a("v_mul_f32 v96, v96, v9"); bf16r("v96", "v96"); a("v_add_f32 v96, v96, v16")
    a("v_cvt_pk_bf16_f32 v96, v96, v96")
    a("s_mov_b32 exec_lo, 0x000f000f"); a("s_mov_b32 exec_hi, 0x000f000f")
    a("global_store_short v12, v96, s[26:27]")
    a("s_cmp_eq_u32 s2, 0"); a("s_cbranch_scc0 L_noep")
    a("s_mov_b64 exec, 1")
    a(f"v_mov_b32 v97, {TAG}"); a("v_mov_b32 v98, 0")
    a(f"buffer_store_dword v97, v98, {WS}, 0 offen sc1")
    a.label("L_noep")
    a("s_mov_b64 exec, -1")
    a.cond = None
    a.label("L_fin")
    if stamps:
        stamp(8)
        a("s_waitcnt vmcnt(0)")
        stamp(9)
        a("s_waitcnt lgkmcnt(0)")
        for i in range(10): a(f"v_mov_b32 v{96+i}, s{80+2*i}")
        a("s_getreg_b32 s61, hwreg(HW_REG_HW_ID)"); a("s_lshl_b32 s61, s61, 4"); a(f"s_or_b32 s61, s61, {XCC}")
        a(f"v_mov_b32 v{96+10}, s61"); a(f"v_mov_b32 v{96+11}, {SPIN}")
        a(f"s_lshl_b32 s61, s2, 2"); a(f"s_add_u32 s61, s61, {WAVE}"); a("s_lshl_b32 s61, s61, 6"); a(f"s_add_u32 s61, s61, {STAMP}")
        a("v_mov_b32 v5, s61"); a("s_mov_b64 exec, 1")
        for i in range(3): a(f"buffer_store_dwordx4 v[{96+4*i}:{99+4*i}], v5, {WS}, 0 offen offset:{16*i}")
        if dbg:
            srd(40, "s28", "s29", 256)
            a("v_not_b32 v110, v96"); a("v_mov_b32 v5, 0")
            a("buffer_atomic_umax v110, v5, s[40:43], 0 offen")
            for i in range(10): a(f"buffer_atomic_umax v{96+i}, v5, s[40:43], 0 offen offset:{4+4*i}")
    a.label("L_end")
    a("s_endpgm")
    a.raw('.section .rodata,"a"'); a.raw(".p2align 6"); a.raw(f".amdhsa_kernel {NAME}")
    a.raw("  .amdhsa_next_free_vgpr 512"); a.raw("  .amdhsa_next_free_sgpr 102"); a.raw("  .amdhsa_accum_offset 256")
    a.raw("  .amdhsa_group_segment_fixed_size 0"); a.raw("  .amdhsa_kernarg_size 112"); a.raw("  .amdhsa_user_sgpr_count 2")
    a.raw("  .amdhsa_user_sgpr_kernarg_segment_ptr 1"); a.raw("  .amdhsa_system_sgpr_workgroup_id_x 1"); a.raw(".end_amdhsa_kernel")
    return a.text()

def parse(args):
    kw = {}
    for x in args:
        k, v = x.split("=")
        kw[k] = int(v) if v.lstrip('-').isdigit() else (v.replace("+", " ") if v not in ("True", "False") else v == "True")
    return kw
if __name__ == "__main__":
    import build
    out = sys.argv[1]
    open(out, "w").write(gen(**parse(sys.argv[2:])))
    print(build.build(out))
```

```python
import sys, struct
from asmlib import Asm

NAME = "gated_mix__gqa_block_cached__dense_activation_gelu__decode_kernel"
HEADER = open("gated_mix__gqa_block_cached__dense_activation_gelu__decode.s.ref").read().split("; Override launch")[0]

def f2u(x): return struct.unpack('<I', struct.pack('<f', x))[0]
LOG2E = 1.4426950408889634

QBUF, HBUF, MLBUF, FLBUF, OBUF, FBUF, PBUF, STAMP = 0x10000, 0x30000, 0x40000, 0x48000, 0x50000, 0x90000, 0x100000, 0x400000
L_W, L_H, L_WO, L_X, L_ML, L_RED, L_END = 0, 0x8000, 0x10000, 0x14000, 0x16100, 0x17000, 0x19000

def gen(DK=14, DV=14, DE=16, EV=40, kv="nt", wf="nt", stamps=False, wolate=True, MLG=46, spin=0x100000,
        scramble=False, local=True, prepoll=True, flushn=255, slp=0, slpn=8, fbar=True, dbg=False, touch=0, codepf=0, hold=0, holdwg=-1):
    a = Asm()
    a.raw(HEADER + f"; @launch grid=(256,1,1) block=(256,1,1) lds={L_END}")
    a.raw('.amdgcn_target "amdgcn-amd-amdhsa--gfx950"')
    a.raw(".text"); a.raw(f".globl {NAME}"); a.raw(".p2align 8"); a.raw(f".type {NAME},@function"); a.raw(f"{NAME}:")
    LS = "" if local else "sc1"
    def stamp(i):
        if stamps: a(f"s_memrealtime s[{80+2*i}:{81+2*i}]")
    WAVE, KVH, BB, SP, RR, TAG, SOFF, PITCH, XCC, REM = "s52", "s53", "s54", "s55", "s57", "s58", "s59", "s60", "s56", "s74"
    SPIN = "s73"
    def srd(base, lo, hi, size):
        a(f"s_mov_b32 s{base}, {lo}"); a(f"s_mov_b32 s{base+1}, {hi}"); a(f"s_mov_b32 s{base+2}, {size}"); a(f"s_mov_b32 s{base+3}, 0x20000")
    def bf16r(dst, src):
        a(f"v_cvt_pk_bf16_f32 {dst}, {src}, {src}"); a(f"v_and_b32 {dst}, 0xffff0000, {dst}")
    WS = "s[48:51]"
    def reduce_rows(v, t, op):
        a(f"v_mov_b32 {t}, {v}"); a(f"v_permlane16_swap_b32 {v}, {t}"); a(f"{op} {v}, {v}, {t}")
        a(f"v_mov_b32 {t}, {v}"); a(f"v_permlane32_swap_b32 {v}, {t}"); a(f"{op} {v}, {v}, {t}")
    def reduce_quad(v, op):
        a(f"{op}_dpp {v}, {v}, {v} quad_perm:[1,0,3,2] row_mask:0xf bank_mask:0xf")
        a(f"{op}_dpp {v}, {v}, {v} quad_perm:[2,3,0,1] row_mask:0xf bank_mask:0xf")
    def tagcheck(regs, t, mask=None):
        a(f"v_xor_b32 {t}, {TAG}, v{regs[0]}")
        for r in regs[1:]:
            a(f"v_bitop3_b32 {t}, {t}, v{r}, {TAG} bitop3:0xf6")
        if mask: a(f"v_and_b32 {t}, {mask}, {t}")
        a(f"v_cmp_ne_u32 vcc, 0, {t}")
    def retry(lbl, reissue, flush=False, sleep=False):
        a(f"s_cbranch_vccz {lbl}_ok")
        a(f"s_cmp_eq_u32 {SPIN}, 0"); a(f"s_cbranch_scc1 {lbl}_ok")
        a(f"s_sub_u32 {SPIN}, {SPIN}, 1")
        if flush and local:
            a(f"s_and_b32 s61, {SPIN}, {flushn}"); a(f"s_cbranch_scc1 {lbl}_nf")
            a("s_waitcnt vmcnt(0)"); a("buffer_wbl2 sc1")
            a.label(f"{lbl}_nf")
        if sleep and slp:
            a("s_bcnt1_i32_b64 s61, vcc"); a(f"s_cmp_le_u32 s61, {slpn}"); a(f"s_cbranch_scc1 {lbl}_ns"); a(f"s_sleep {slp}"); a.label(f"{lbl}_ns")
        old = a.cond; a.cond = "retry" + lbl
        a("s_mov_b64 exec, vcc")
        reissue("R" + lbl)
        a("s_mov_b64 exec, -1")
        a.cond = old
        a("s_waitcnt vmcnt(0)")
        a(f"s_branch {lbl}_chk")
        a.label(f"{lbl}_ok")

    stamp(0)
    if hold: a("s_memrealtime s[96:97]")
    a("s_cmp_ge_u32 s2, 256"); a("s_cbranch_scc1 L_end")
    a("s_load_dwordx16 s[4:19], s[0:1], 0")
    a("s_load_dwordx8 s[20:27], s[0:1], 64")
    a("s_load_dwordx4 s[28:31], s[0:1], 96")
    if scramble:
        a("s_lshr_b32 s3, s2, 3"); a("s_and_b32 s3, s3, 7"); a("s_xor_b32 s2, s2, s3")
    a("v_lshrrev_b32 v4, 6, v0"); a("v_and_b32 v1, 63, v0"); a(f"v_readfirstlane_b32 {WAVE}, v4")
    a(f"s_and_b32 {KVH}, s2, 7"); a(f"s_lshr_b32 {BB}, s2, 5"); a(f"s_bfe_u32 {SP}, s2, 0x20003"); a(f"s_lshr_b32 {RR}, s2, 3")
    a(f"s_lshl_b32 s61, {BB}, 5"); a(f"s_lshl_b32 s62, {KVH}, 2"); a("s_add_u32 s61, s61, s62"); a(f"s_add_u32 s61, s61, {SP}")
    a("s_lshl_b32 s61, s61, 18"); a(f"s_lshl_b32 s62, {WAVE}, 12"); a("s_add_u32 s61, s61, s62")
    a("v_and_b32 v2, 3, v1"); a("v_lshlrev_b32 v2, 4, v2")
    a("v_bfe_u32 v4, v1, 2, 2"); a("v_lshl_add_u32 v2, v4, 8, v2")
    a("v_lshrrev_b32 v4, 4, v1"); a("v_lshl_add_u32 v2, v4, 6, v2")
    a("v_add_u32 v2, s61, v2")
    a("v_lshl_add_u32 v3, v1, 4, s61")
    a(f"s_mov_b32 {SOFF}, 0")
    a("s_mov_b32 s34, 0x4000000"); a("s_mov_b32 s35, 0x20000")

    cur = {"soff": 0}
    kvn = []
    def kvload(which, n, D):
        off = (n >> 2) * 16384; imm = (n & 3) * 1024
        if off != cur["soff"]:
            a(f"s_mov_b32 {SOFF}, {off}"); cur["soff"] = off
        if D and len(kvn) >= D: a.wait_vm(kvn[-D])
        if which == "K":
            a(f"buffer_load_dwordx4 a[{4*n}:{4*n+3}], v2, s[32:35], {SOFF} offen offset:{imm} {kv}", name=f"K{n}")
        else:
            r = 96 + (n % 40) * 4
            a(f"buffer_load_dwordx4 v[{r}:{r+3}], v3, s[36:39], {SOFF} offen offset:{imm} {kv}", name=f"V{n}")
        kvn.append(f"{which}{n}")

    def consts():
        a(f"s_load_dword {TAG}, s[30:31], 0")
        if touch:
            a(f"s_lshl_b32 s61, {BB}, 5"); a(f"s_lshl_b32 s62, {KVH}, 2"); a("s_add_u32 s61, s61, s62"); a(f"s_add_u32 s61, s61, {SP}"); a("s_lshl_b32 s61, s61, 18")
            a("s_load_dword s100, s[8:9], s61")
            a(f"s_lshl_b32 s61, {KVH}, 19")
            a("s_load_dword s100, s[12:13], s61")
            a("s_load_dword s100, s[26:27], 0")
            if touch > 1:
                a("s_load_dword s100, s[22:23], 0"); a("s_load_dword s100, s[24:25], 0"); a("s_load_dword s100, s[4:5], 0"); a("s_load_dword s100, s[20:21], 0")
        if codepf:
            a("s_getpc_b64 s[62:63]")
            lab = f"L_pc{len(a.lines)}"
            a.label(lab)
            a(f"s_sub_u32 s62, s62, {lab}-{NAME}"); a("s_subb_u32 s63, s63, 0")
            a(f"s_lshl_b32 s61, {RR}, 10"); a(f"s_lshl_b32 s100, {WAVE}, 8"); a("s_add_u32 s61, s61, s100"); a(f"s_min_u32 s61, s61, L_end-{NAME}-252")
            a("v_lshl_add_u32 v5, v1, 2, s61")
            a("global_load_dword v9, v5, s[62:63]")
        srd(36, "s8", "s9", "0x4000000")
        srd(48, "s30", "s31", "0x10000000")
        a("s_mov_b32 s64, 0x22222222"); a("s_mov_b32 s65, 0x22222222")
        a("s_mov_b32 s66, 0x44444444"); a("s_mov_b32 s67, 0x44444444")
        a("s_mov_b32 s68, 0x88888888"); a("s_mov_b32 s69, 0x88888888")
        a("s_mov_b32 s70, 0x05040100"); a("s_mov_b32 s71, 0x07060302")
        a(f"s_mov_b32 s72, {hex(f2u(128**-0.5*LOG2E))}")
        a(f"s_mov_b32 {SPIN}, {spin}")
        a(f"s_getreg_b32 {XCC}, hwreg(HW_REG_XCC_ID, 0, 4)")
        srd(44, "s12", "s13", 4096*512*2)
        a(f"s_lshl_b32 s77, {KVH}, 5"); a(f"s_add_u32 s77, s77, {RR}")
        a("s_lshl_b32 s61, s77, 10"); a(f"s_lshl_b32 s62, {WAVE}, 8"); a("s_add_u32 s61, s61, s62"); a(f"s_add_u32 s61, s61, {OBUF}")
        a("v_lshl_add_u32 v8, v1, 2, s61")
        a(f"s_lshl_b32 s61, {KVH}, 2"); a(f"s_add_u32 s78, s61, {SP}")
        a(f"s_lshr_b32 s61, {SP}, 1"); a("s_lshl_b32 s61, s61, 5"); a(f"s_and_b32 s62, {SP}, 1"); a("s_lshl_b32 s62, s62, 3"); a("s_add_u32 s79, s61, s62")
        a("v_and_b32 v12, 3, v1"); a("v_lshlrev_b32 v12, 1, v12"); a("v_and_b32 v5, 16, v1"); a("v_add_u32 v12, v12, v5")
        a("v_lshrrev_b32 v5, 5, v1"); a("v_add3_u32 v12, v12, v5, s79")
        a("v_mov_b32 v5, -1")
        a(f"buffer_store_dword v5, v8, {WS}, 0 offen {LS}", name="CLR")
    def get_tag():
        a("s_waitcnt lgkmcnt(0)")
        a(f"s_add_u32 {TAG}, {TAG}, 1")
    def wo_dma():
        a("v_lshrrev_b32 v5, 3, v1"); a(f"s_lshl_b32 s61, {WAVE}, 5"); a("v_add_u32 v5, s61, v5"); a("v_lshlrev_b32 v5, 10, v5")
        a(f"s_and_b32 s61, {WAVE}, 1"); a("s_lshl_b32 s61, s61, 2")
        a("v_and_b32 v6, 7, v1"); a("v_xor_b32 v6, s61, v6"); a("v_lshl_add_u32 v5, v6, 4, v5"); a("v_xor_b32 v6, 32, v5")
        a("s_lshl_b32 s61, s78, 17"); a(f"s_lshl_b32 s62, {BB}, 7"); a("s_add_u32 s61, s61, s62")
        a(f"s_lshl_b32 s63, {WAVE}, 12")
        for i in range(4):
            a(f"s_add_u32 m0, s63, {L_WO + i*1024}")
            a(f"buffer_load_dwordx4 v{5+(i&1)}, s[44:47], s61 offen {wf} lds", name=f"WO{i}")
            if i < 3: a("s_add_u32 s61, s61, 8192")
    def gate_loads(p):
        a(f"s_cmp_eq_u32 {WAVE}, 3"); a(f"s_cbranch_scc0 L_f0_done{p}")
        a.cond = "F"
        a(f"s_lshl_b32 s61, {BB}, 10"); a("v_lshl_add_u32 v5, v1, 4, s61")
        a("global_load_dwordx4 v[80:83], v5, s[4:5]", name="GX")
        a("v_lshlrev_b32 v5, 4, v1")
        a("global_load_dwordx4 v[84:87], v5, s[24:25]", name="GW")
        a(f"s_lshl_b32 s62, {KVH}, 7"); a("v_lshl_add_u32 v5, v12, 1, s62")
        a("global_load_ushort v11, v5, s[22:23]", name="GB2")
        a.cond = None
        a.label(f"L_f0_done{p}")
    def gate(p):
        a(f"s_cmp_eq_u32 {WAVE}, 3"); a(f"s_cbranch_scc0 L_f1_done{p}")
        a.cond = "F"
        a.wait_vm("GB2")
        for i in range(4):
            a(f"v_lshlrev_b32 v{48+2*i}, 16, v{80+i}"); a(f"v_and_b32 v{49+2*i}, 0xffff0000, v{80+i}")
            a(f"v_lshlrev_b32 v{56+2*i}, 16, v{84+i}"); a(f"v_and_b32 v{57+2*i}, 0xffff0000, v{84+i}")
        for i in range(8): a(f"v_mul_f32 v{48+i}, v{48+i}, v{56+i}")
        for i in range(4): a(f"v_cvt_pk_bf16_f32 v{56+i}, v{48+2*i}, v{49+2*i}")
        for i in range(4):
            a(f"v_lshlrev_b32 v{48+2*i}, 16, v{56+i}"); a(f"v_and_b32 v{49+2*i}, 0xffff0000, v{56+i}")
        for i in range(4): a(f"v_add_f32 v{48+i}, v{48+i}, v{52+i}")
        a("v_add_f32 v48, v48, v50"); a("v_add_f32 v49, v49, v51"); a("v_add_f32 v48, v48, v49")
        reduce_quad("v48", "v_add_f32")
        a("v_add_f32_dpp v48, v48, v48 row_ror:4 row_mask:0xf bank_mask:0xf")
        a("v_add_f32_dpp v48, v48, v48 row_ror:8 row_mask:0xf bank_mask:0xf")
        reduce_rows("v48", "v49", "v_add_f32")
        bf16r("v48", "v48")
        a(f"v_mul_f32 v48, {hex(f2u(-LOG2E))}, v48"); a("v_exp_f32 v48, v48"); a("v_add_f32 v48, 1.0, v48"); a("v_rcp_f32 v48, v48")
        bf16r("v9", "v48")
        a("v_sub_f32 v10, 1.0, v9"); bf16r("v10", "v10")
        a("v_lshlrev_b32 v11, 16, v11")
        a.cond = None
        a.label(f"L_f1_done{p}")
    def qgather(nm):
        a(f"buffer_load_dwordx4 v[80:83], v15, {WS}, 0 offen sc1", name=nm+"0")
        a(f"buffer_load_dwordx4 v[84:87], v15, {WS}, 0 offen offset:16 sc1", name=nm+"1")
    def qaddr():
        a(f"s_lshl_b32 s61, {BB}, 14"); a(f"s_lshl_b32 s62, {KVH}, 11"); a("s_add_u32 s61, s61, s62"); a(f"s_add_u32 s61, s61, {QBUF}")
        a("v_bfe_u32 v15, v1, 2, 2"); a("v_lshlrev_b32 v15, 9, v15")
        a("v_lshrrev_b32 v6, 4, v1"); a("v_lshl_add_u32 v15, v6, 7, v15")
        a("v_and_b32 v7, 3, v1"); a("v_lshl_add_u32 v15, v7, 5, v15"); a("v_add_u32 v15, s61, v15")

    NV0 = 16
    def kphase(p):
        D = DK
        st = {"n": 0}
        def K(upto=None, cnt=None):
            end = upto if upto is not None else st["n"] + cnt
            while st["n"] < end:
                n = st["n"]
                if n < 64: kvload("K", n, D)
                else: kvload("V", n - 64, D)
                st["n"] += 1
        a("s_waitcnt lgkmcnt(0)") if p != "Q" else None
        if p == "Q":
            a(f"s_lshl_b32 s61, {KVH}, 9"); a(f"s_lshl_b32 s62, {RR}, 5"); a("s_add_u32 s61, s61, s62")
            a(f"s_mul_i32 s63, {KVH}, 224"); a("s_add_u32 s62, s62, s63"); a(f"s_sub_u32 s62, s62, {23*32}")
            a(f"s_cmp_lt_u32 {RR}, 16"); a("s_cselect_b32 s76, s61, s62")
            a(f"s_movk_i32 s61, 8192"); a(f"s_movk_i32 s62, 3584"); a(f"s_cselect_b32 {PITCH}, s61, s62")
            a(f"s_mov_b32 s61, {512*4096*2}"); a(f"s_mov_b32 s62, {512*1792*2}"); a("s_cselect_b32 s42, s61, s62"); a("s_mov_b32 s43, 0x20000")
            a("v_lshrrev_b32 v4, 2, v1"); a(f"s_lshl_b32 s61, {WAVE}, 7"); a("v_add_u32 v4, s61, v4")
            a(f"v_mul_u32_u24 v5, {PITCH}, v4")
            a("v_and_b32 v4, 3, v1"); a("v_lshrrev_b32 v6, 5, v1"); a("v_lshlrev_b32 v6, 1, v6"); a("v_xor_b32 v4, v4, v6")
            a("s_lshl_b32 s61, s76, 1"); a("v_add_u32 v5, s61, v5"); a("v_lshl_add_u32 v5, v4, 4, v5")
            a(f"s_lshl_b32 s62, {PITCH}, 4"); a(f"s_lshl_b32 s63, {WAVE}, 13"); a("s_mov_b32 s61, 0")
            a(f"s_cmp_lt_u32 {RR}, 16")
            a("s_waitcnt lgkmcnt(0)")
            a("s_cselect_b32 s40, s10, s16"); a("s_cselect_b32 s41, s11, s17")
            for n in range(8):
                a(f"s_add_u32 m0, s63, {L_W + n*1024}")
                a(f"buffer_load_dwordx4 v5, s[40:43], s61 offen {wf} lds", name=f"W{n}")
                if n < 7: a("s_add_u32 s61, s61, s62")
            a(f"s_lshl_b32 s61, {WAVE}, 11"); a("v_lshl_add_u32 v7, v1, 4, s61")
            a(f"s_mul_i32 s61, {WAVE}, 2080"); a(f"s_add_u32 m0, s61, {L_X}")
            a("global_load_lds_dwordx4 v7, s[4:5]", name="X0")
            a(f"s_add_u32 m0, s61, {L_X+16}")
            a("global_load_lds_dwordx4 v7, s[4:5] offset:1024", name="X1")
        a("s_mov_b32 s32, s6"); a("s_mov_b32 s33, s7")
        if p == "Q":
            K(upto=6)
            a("s_min_u32 s61, s76, 1760"); a(f"s_and_b32 s62, {WAVE}, 1"); a("s_lshl_b32 s62, s62, 4"); a("s_add_u32 s61, s61, s62"); a("s_lshl_b32 s61, s61, 1")
            a("v_lshrrev_b32 v7, 4, v1"); a("v_lshl_add_u32 v4, v7, 3, s61")
            a("global_load_dwordx2 v[14:15], v4, s[18:19]", name="B1")
            consts()
            a("v_lshlrev_b32 v4, 3, v7"); a("v_bfe_u32 v5, v1, 2, 2"); a("v_add_u32 v4, v4, v5"); a("v_lshlrev_b32 v4, 6, v4")
            a("v_and_b32 v5, 3, v1"); a("v_lshl_add_u32 v4, v5, 3, v4")
            a(f"v_xor_b32 v5, {WAVE}, v7"); a("v_and_b32 v5, 1, v5"); a("v_lshl_add_u32 v4, v5, 5, v4")
            a("v_and_b32 v5, 7, v1"); a("v_mul_u32_u24 v6, 1040, v5"); a("v_lshl_add_u32 v6, v7, 4, v6")
            a(f"v_add_u32 v6, {L_X}, v6")
            a(f"s_cmp_lt_u32 {RR}, 16")
            a(f"s_movk_i32 s61, 16384"); a("s_movk_i32 s62, 7168"); a("s_cselect_b32 s61, s61, s62")
            a(f"s_mov_b32 s62, {QBUF}"); a(f"s_mov_b32 s63, {HBUF}"); a("s_cselect_b32 s62, s62, s63")
            a("s_lshl_b32 s63, s76, 2"); a("s_add_u32 s62, s62, s63"); a(f"s_lshl_b32 s63, {WAVE}, 6"); a("s_add_u32 s62, s62, s63")
            a("v_mul_u32_u24 v13, s61, v5"); a("v_lshl_add_u32 v13, v7, 4, v13"); a("v_add_u32 v13, s62, v13")
            K(upto=D + 2)
            get_tag()
            a.wait_vm("X1")
            a("s_barrier")
            K(cnt=2)
            a(f"s_cmp_lt_u32 {WAVE}, 2"); a("s_cbranch_scc0 L_qh_done")
            a.cond = "QH"
            for s in range(16):
                a(f"ds_read_b64_tr_b16 v[{96+4*s}:{97+4*s}], v4 offset:{L_W + s*2048}")
                a(f"ds_read_b64_tr_b16 v[{98+4*s}:{99+4*s}], v4 offset:{L_W + s*2048 + 256}")
                a(f"ds_read_b128 v[{160+4*s}:{163+4*s}], v6 offset:{s*64}")
            a("s_waitcnt lgkmcnt(0)")
            for s in range(16):
                acc = 224 + 4*(s & 1)
                a(f"v_mfma_f32_16x16x32_bf16 v[{acc}:{acc+3}], v[{96+4*s}:{99+4*s}], v[{160+4*s}:{163+4*s}], " + ("0" if s < 2 else f"v[{acc}:{acc+3}]"))
            a(f"v_mov_b32 v237, {TAG}"); a(f"v_mov_b32 v239, {TAG}")
            for r in range(4): a(f"v_add_f32 v{224+r}, v{224+r}, v{228+r}")
            a(f"s_cmp_lt_u32 {RR}, 16"); a("s_cbranch_scc0 L_h_epi")
            a("v_cvt_pk_bf16_f32 v236, v224, v225"); a("v_cvt_pk_bf16_f32 v238, v226, v227")
            a("s_mov_b32 exec_lo, 0x00ff00ff"); a("s_mov_b32 exec_hi, 0x00ff00ff")
            a(f"buffer_store_dwordx4 v[236:239], v13, {WS}, 0 offen {LS}")
            a("s_branch L_qh_pub")
            a.label("L_h_epi")
            a.wait_vm("B1")
            a("v_lshlrev_b32 v232, 16, v14"); a("v_and_b32 v233, 0xffff0000, v14"); a("v_lshlrev_b32 v234, 16, v15"); a("v_and_b32 v235, 0xffff0000, v15")
            k1 = -2.0 * (2.0/3.141592653589793)**0.5 * LOG2E
            for r in range(4): bf16r(f"v{224+r}", f"v{224+r}")
            for r in range(4): a(f"v_add_f32 v{224+r}, v{224+r}, v{232+r}")
            for r in range(4): bf16r(f"v{224+r}", f"v{224+r}")
            for r in range(4): a(f"v_mul_f32 v{232+r}, v{224+r}, v{224+r}")
            a(f"v_mov_b32 v236, {hex(f2u(k1))}")
            for r in range(4): a(f"v_fmamk_f32 v{232+r}, v{232+r}, {hex(f2u(k1*0.044715))}, v236")
            for r in range(4): a(f"v_mul_f32 v{232+r}, v{232+r}, v{224+r}")
            for r in range(4): a(f"v_exp_f32 v{232+r}, v{232+r}")
            for r in range(4): a(f"v_add_f32 v{232+r}, 1.0, v{232+r}")
            for r in range(4): a(f"v_rcp_f32 v{232+r}, v{232+r}")
            for r in range(4): a(f"v_mul_f32 v{224+r}, v{224+r}, v{232+r}")
            a("v_cvt_pk_bf16_f32 v236, v224, v225"); a("v_cvt_pk_bf16_f32 v238, v226, v227")
            a("s_mov_b32 exec_lo, 0x00ff00ff"); a("s_mov_b32 exec_hi, 0x00ff00ff")
            a(f"buffer_store_dwordx4 v[236:239], v13, {WS}, 0 offen sc1")
            a.label("L_qh_pub")
            a("s_mov_b64 exec, -1")
            a.cond = None
            a.label("L_qh_done")
            stamp(1)
            K(upto=24)
        else:
            K(upto=D)
            consts()
            stamp(1)
            K(upto=18)
            if p == "W":
                srd(40, "s20", "s21", 1792*512*2)
                a("v_lshrrev_b32 v5, 3, v1"); a(f"s_lshl_b32 s61, {WAVE}, 6"); a("v_add_u32 v5, s61, v5"); a("v_lshlrev_b32 v5, 10, v5")
                a("v_and_b32 v4, 7, v1"); a("v_bfe_u32 v6, v1, 4, 1"); a("v_lshlrev_b32 v6, 1, v6"); a("v_xor_b32 v4, v4, v6")
                a("v_lshl_add_u32 v5, v4, 4, v5"); a("v_xor_b32 v6, 64, v5")
                a(f"s_sub_u32 s76, {RR}, 16")
                a("s_lshl_b32 s61, s76, 18"); a(f"s_lshl_b32 s62, {KVH}, 7"); a("s_add_u32 s61, s61, s62")
                a(f"s_lshl_b32 s63, {WAVE}, 13")
                for i in range(8):
                    a(f"s_add_u32 m0, s63, {L_W + i*1024}")
                    a(f"buffer_load_dwordx4 v{5+(i&1)}, s[40:43], s61 offen {wf} lds", name=f"W2_{i}")
                    if i < 7: a("s_add_u32 s61, s61, 8192")
                a("v_lshrrev_b32 v4, 4, v1"); a("v_lshlrev_b32 v4, 3, v4"); a("v_bfe_u32 v5, v1, 2, 2"); a("v_add_u32 v4, v4, v5")
                a("v_lshlrev_b32 v4, 7, v4"); a("v_and_b32 v5, 3, v1"); a("v_lshl_add_u32 v4, v5, 3, v4")
                a("v_bfe_u32 v5, v1, 3, 2"); a(f"v_xor_b32 v5, {WAVE}, v5"); a("v_lshl_add_u32 v4, v5, 5, v4")
            K(upto=24)
            get_tag()
        if not wolate: wo_dma()
        gate_loads(p)
        K(upto=44)
        gate(p)
        qaddr()
        if p == "W":
            K(upto=56)
            a("s_lshl_b32 s61, s76, 10"); a(f"s_lshl_b32 s62, {WAVE}, 8"); a("s_add_u32 s61, s61, s62"); a(f"s_add_u32 s61, s61, {HBUF}")
            a("v_and_b32 v7, 7, v1"); a("v_mul_u32_u24 v7, 7168, v7"); a("v_lshl_add_u32 v7, v6, 5, v7"); a("v_add_u32 v7, s61, v7")
            def hgather(nm):
                for i in range(4):
                    a(f"buffer_load_dwordx4 v[{16+4*i}:{19+4*i}], v7, {WS}, 0 offen offset:{(i>>1)*128 + (i&1)*16} sc1", name=f"{nm}{i}")
            hgather("HG")
            a(f"s_lshl_b32 s61, {WAVE}, 11"); a(f"s_add_u32 s61, s61, {L_H}"); a("v_lshl_add_u32 v5, v1, 4, s61")
            a("v_lshlrev_b32 v13, 4, v1")
        K(upto=64)
        qgather("QG")
        if p == "W":
            K(upto=56 + D)
            a.wait_vm("HG3")
            a.label("L_h_chk")
            tagcheck([17 + 2*i for i in range(8)], "v14")
            retry("L_h", hgather)
            for i in range(1, 8): a(f"v_mov_b32 v{16+i}, v{16+2*i}")
            a("ds_write_b128 v5, v[16:19]"); a("ds_write_b128 v5, v[20:23] offset:1024")
            K(cnt=1)
            a("s_waitcnt lgkmcnt(0)")
            a("s_barrier")
            for s in range(8):
                a(f"ds_read_b64_tr_b16 v[{192+4*s}:{193+4*s}], v4 offset:{L_W + s*4096}")
                a(f"ds_read_b64_tr_b16 v[{194+4*s}:{195+4*s}], v4 offset:{L_W + s*4096 + 512}")
                a(f"ds_read_b128 v[{224+4*s}:{227+4*s}], v13 offset:{L_H + s*1024}")
            a(f"s_lshl_b32 s61, {KVH}, 15"); a("s_lshl_b32 s62, s76, 12"); a("s_add_u32 s61, s61, s62")
            a(f"s_lshl_b32 s62, {WAVE}, 7"); a("s_add_u32 s61, s61, s62"); a(f"s_add_u32 s61, s61, {FBUF}")
            a("v_and_b32 v7, 7, v1"); a("v_lshlrev_b32 v7, 9, v7"); a("v_lshl_add_u32 v7, v6, 5, v7"); a("v_add_u32 v7, s61, v7")
            for r in range(4): a(f"v_mov_b32 v{89+2*r}, {TAG}")
            K(cnt=1)
            a("s_waitcnt lgkmcnt(0)")
            for s in range(8):
                a(f"v_mfma_f32_16x16x32_bf16 v[16:19], v[{192+4*s}:{195+4*s}], v[{224+4*s}:{227+4*s}], " + ("0" if s == 0 else "v[16:19]"))
            K(cnt=1)
            for r in range(4): a(f"v_mov_b32 v{88+2*r}, v{16+r}")
            a("s_mov_b32 exec_lo, 0x00ff00ff"); a("s_mov_b32 exec_hi, 0x00ff00ff")
            a(f"buffer_store_dwordx4 v[88:91], v7, {WS}, 0 offen {LS}")
            a(f"buffer_store_dwordx4 v[92:95], v7, {WS}, 0 offen offset:16 {LS}")
            a("s_mov_b64 exec, -1")
        K(upto=64 + NV0)

    a(f"s_cmp_ge_u32 {RR}, 30"); a("s_cbranch_scc1 L_pathN")
    a(f"s_sub_u32 s61, {RR}, 16"); a("s_cmp_lt_u32 s61, 7"); a("s_cbranch_scc1 L_pathW")
    for p in ("Q", "W", "N"):
        if p != "Q": a.label(f"L_path{p}")
        a.vm = []; kvn.clear(); cur["soff"] = 0
        kphase(p)
        if p != "N": a("s_branch L_join")
    a.label("L_join")
    a.vm = [("QG0", True, None), ("QG1", True, None)] + [(f"V{i}", True, None) for i in range(NV0)]
    nv = NV0
    def V(D):
        nonlocal nv
        kvload("V", nv, D); nv += 1

    a.wait_vm("QG1")
    stamp(2)
    a.label("L_q_chk")
    tagcheck([81, 83, 85, 87], "v14")
    retry("L_q", qgather, flush=True)
    for i in range(4): a(f"v_mov_b32 v{40+i}, v{80+2*i}")
    def qk_mfma(u):
        for t in range(4):
            d = 48 + (u & 1)*16 + 4*t; k = 4*(4*u + t)
            a(f"v_mfma_f32_16x16x32_bf16 v[{d}:{d+3}], a[{k}:{k+3}], v[40:43], 0")
    def qk_red(u):
        base = 48 + (u & 1)*16
        for step in range(1, 4):
            for t in range(4):
                c = (t + step) & 3
                d = base + 4*t
                dst = f"v{16+u}" if (t == 0 and step == 3) else f"v{d+t}"
                a(f"v_add_f32_dpp {dst}, v{d+c}, v{d+t} quad_perm:[{c},{c},{c},{c}] row_mask:0xf bank_mask:0xf")
        for t in range(1, 4):
            a(f"v_cndmask_b32 v{16+u}, v{16+u}, v{base+5*t}, s[{62+2*t}:{63+2*t}]")
    qk_mfma(0)
    for u in range(16):
        if u < 15: qk_mfma(u+1)
        qk_red(u)
        if u % 2 == 1: V(DV)
    a("v_max3_f32 v48, v16, v17, v18")
    for i in range(6): a(f"v_max3_f32 v48, v48, v{19+2*i}, v{20+2*i}")
    a("v_max_f32 v48, v48, v31")
    reduce_quad("v48", "v_max_f32")
    reduce_rows("v48", "v49", "v_max_f32")
    a("v_mul_f32 v48, s72, v48")
    for u in range(16): a(f"v_fma_f32 v{16+u}, v{16+u}, s72, -v48")
    V(DV)
    for u in range(16): a(f"v_exp_f32 v{16+u}, v{16+u}")
    for i in range(8): a(f"v_add_f32 v{52+i}, v{16+2*i}, v{17+2*i}")
    for i in range(4): a(f"v_add_f32 v{52+i}, v{52+i}, v{56+i}")
    a("v_add_f32 v52, v52, v54"); a("v_add_f32 v53, v53, v55"); a("v_add_f32 v49, v52, v53")
    V(DV)
    reduce_quad("v49", "v_add_f32")
    reduce_rows("v49", "v50", "v_add_f32")
    a(f"s_lshl_b32 s61, {WAVE}, 9"); a(f"s_add_u32 s61, s61, {L_ML}")
    a("v_lshl_add_u32 v50, v1, 3, s61"); a("v_lshlrev_b32 v51, 3, v1"); a(f"v_add_u32 v51, {L_ML}, v51")
    a("ds_write_b64 v50, v[48:49]")
    V(DV)
    a("s_waitcnt lgkmcnt(0)")
    a("s_barrier")
    for w in range(4): a(f"ds_read_b64 v[{52+2*w}:{53+2*w}], v51 offset:{w*512}")
    a("v_lshrrev_b32 v4, 4, v1"); a("v_lshlrev_b32 v4, 5, v4"); a("v_bfe_u32 v6, v1, 3, 1"); a("v_lshl_add_u32 v4, v6, 3, v4")
    a("v_bfe_u32 v6, v1, 2, 1"); a("v_add_u32 v4, v4, v6"); a("v_lshlrev_b32 v4, 7, v4")
    a("v_and_b32 v6, 3, v1"); a("v_lshl_add_u32 v4, v6, 3, v4")
    a(f"s_and_b32 s61, {WAVE}, 2"); a("v_bfe_u32 v6, v1, 3, 2"); a("v_xor_b32 v6, s61, v6"); a("v_lshl_add_u32 v4, v6, 5, v4")
    a(f"v_add_u32 v4, {L_WO}, v4"); a("v_xor_b32 v13, 32, v4")
    def wo_frags():
        for s in range(4):
            for ct in range(2):
                r = 64 + (ct*4 + s)*4
                ad = "v4" if ct == 0 else "v13"
                a(f"ds_read_b64_tr_b16 a[{r}:{r+1}], {ad} offset:{s*256}")
                a(f"ds_read_b64_tr_b16 a[{r+2}:{r+3}], {ad} offset:{s*256 + 2048}")
    V(DV)
    a("s_waitcnt lgkmcnt(0)")
    if not wolate: wo_frags()
    a("v_max3_f32 v60, v52, v54, v56"); a("v_max_f32 v60, v60, v58")
    a("v_sub_f32 v48, v48, v60"); a("v_exp_f32 v48, v48")
    for w in range(4): a(f"v_sub_f32 v{52+2*w}, v{52+2*w}, v60")
    for w in range(4): a(f"v_exp_f32 v{52+2*w}, v{52+2*w}")
    a("v_mul_f32 v62, v52, v53")
    for w in range(1, 4): a(f"v_fmac_f32 v62, v{52+2*w}, v{53+2*w}")
    a(f"s_cmp_eq_u32 {WAVE}, 2"); a("s_cbranch_scc0 L_ml_done")
    a.cond = "W0"
    a(f"v_mov_b32 v61, {TAG}"); a(f"v_mov_b32 v63, {TAG}")
    a(f"v_writelane_b32 v60, {XCC}, 16")
    a("s_lshl_b32 s61, s77, 7"); a(f"s_add_u32 s61, s61, {MLBUF}"); a("v_lshl_add_u32 v5, v1, 2, s61")
    a("s_mov_b64 exec, 0x11111")
    a(f"buffer_store_dwordx4 v[60:63], v5, {WS}, 0 offen sc1")
    a("s_mov_b64 exec, -1")
    a.cond = None
    a.label("L_ml_done")
    for u in range(16): a(f"v_mul_f32 v{16+u}, v{16+u}, v48")
    for t in range(8): a(f"v_cvt_pk_bf16_f32 v{32+t}, v{16+2*t}, v{17+2*t}")
    V(DV)
    stamp(4)
    a(f"s_and_b32 s61, {WAVE}, 1"); a("s_lshl_b32 s61, s61, 4"); a(f"s_lshl_b32 s62, {KVH}, 5"); a("s_add_u32 s61, s61, s62")
    a("v_lshrrev_b32 v6, 4, v1"); a("v_and_b32 v7, 15, v1")
    a("s_lshl_b32 s62, s61, 10"); a(f"s_lshl_b32 s63, {SP}, 6"); a("s_add_u32 s62, s62, s63"); a(f"s_add_u32 s62, s62, {OBUF}")
    a("v_lshlrev_b32 v24, 10, v7"); a("v_lshl_add_u32 v24, v6, 4, v24"); a("v_add_u32 v24, s62, v24")
    a("s_lshl_b32 s62, s61, 7"); a(f"s_lshl_b32 s63, {SP}, 4"); a("s_add_u32 s62, s62, s63"); a(f"s_add_u32 s62, s62, {MLBUF}")
    a("v_lshl_add_u32 v30, v6, 9, s62")
    a(f"s_lshl_b32 s62, {KVH}, 12"); a(f"s_add_u32 s62, s62, {MLBUF+64}"); a("v_and_b32 v29, 31, v1"); a("v_lshl_add_u32 v29, v29, 7, s62")
    a(f"s_and_b32 s61, {WAVE}, 1"); a("s_lshl_b32 s61, s61, 15"); a(f"s_lshl_b32 s62, {BB}, 16"); a("s_add_u32 s61, s61, s62")
    a(f"s_lshr_b32 s62, {WAVE}, 1"); a("s_lshl_b32 s62, s62, 12"); a("s_add_u32 s61, s61, s62")
    a("s_lshl_b32 s62, s78, 6"); a("s_add_u32 s61, s61, s62"); a(f"s_add_u32 s61, s61, {PBUF}")
    a("v_lshlrev_b32 v25, 13, v6"); a("v_bfe_u32 v7, v1, 3, 1"); a("v_lshl_add_u32 v25, v7, 11, v25")
    a("v_and_b32 v7, 7, v1"); a("v_lshl_add_u32 v25, v7, 3, v25"); a("v_add_u32 v25, s61, v25")
    a("s_lshl_b32 s61, s77, 11"); a(f"s_add_u32 s61, s61, {PBUF}"); a("v_lshl_add_u32 v26, v1, 4, s61")
    a(f"s_lshl_b32 s61, {WAVE}, 11"); a(f"s_add_u32 s61, s61, {L_RED}"); a("v_lshl_add_u32 v27, v1, 2, s61")
    a(f"s_lshl_b32 s61, {WAVE}, 9"); a(f"s_add_u32 s61, s61, {L_RED}"); a("v_lshl_add_u32 v28, v1, 2, s61")
    a(f"s_lshl_b32 s61, {KVH}, 15"); a(f"s_lshl_b32 s62, {BB}, 9"); a("s_add_u32 s61, s61, s62"); a(f"s_add_u32 s61, s61, {FBUF}")
    a("v_bfe_u32 v31, v1, 2, 2"); a("v_lshlrev_b32 v31, 12, v31"); a("v_lshl_add_u32 v31, v12, 3, v31"); a("v_add_u32 v31, s61, v31")
    a(f"s_lshl_b32 s61, {BB}, 10"); a(f"s_lshl_b32 s62, {KVH}, 7"); a("s_add_u32 s61, s61, s62"); a("v_lshl_add_u32 v12, v12, 1, s61")
    a(f"s_and_b32 s75, {TAG}, 0x3ff")
    V(DV)

    def mlgather(nm):
        for r in range(4):
            a(f"buffer_load_dwordx4 v[{80+4*r}:{83+4*r}], v30, {WS}, 0 offen offset:{r*128} sc1", name=f"{nm}{r}")
        a(f"buffer_load_dwordx2 v[20:21], v29, {WS}, 0 offen sc1", name=f"{nm}4")
    def fgather(nm):
        a(f"s_movk_i32 s61, {4*4096}")
        a(f"buffer_load_dwordx2 v[16:17], v31, {WS}, 0 offen sc1", name=nm+"0")
        a("s_and_b32 exec_lo, exec_lo, 0x0fff0fff"); a("s_and_b32 exec_hi, exec_hi, 0x0fff0fff")
        a(f"s_cbranch_execz L_fg_skip{nm}")
        a(f"buffer_load_dwordx2 v[18:19], v31, {WS}, s61 offen sc1", name=nm+"1")
        a.label(f"L_fg_skip{nm}")
        a("s_mov_b64 exec, -1")
    PB = 192
    def poll1(nm):
        for s in range(4):
            a(f"buffer_load_dwordx4 v[{PB+4*s}:{PB+3+4*s}], v24, {WS}, 0 offen offset:{s*256} sc1", name=f"{nm}{s}")
    def flgather(nm):
        a(f"buffer_load_dwordx2 v[20:21], v7, {WS}, 0 offen sc1", name=nm+"0")
    def ml_check():
        a.wait_vm("ML4")
        a.label("L_ml_chk")
        tagcheck([81 + 2*i for i in range(8)] + [21], "v14")
        retry("L_ml", mlgather, flush=True)
        a(f"s_mov_b32 {REM}, 0")
        if local:
            a(f"v_cmp_ne_u32 vcc, {XCC}, v20")
            a("s_cbranch_vccz L_samedie")
            a.cond = "rem"
            a(f"s_mov_b32 {REM}, 1")
            a("s_waitcnt vmcnt(0)"); a("buffer_wbl2 sc1"); a("s_waitcnt vmcnt(0)")
            a("s_lshl_b32 s61, s77, 4"); a(f"s_lshl_b32 s62, {WAVE}, 2"); a("s_add_u32 s61, s61, s62"); a(f"s_add_u32 s61, s61, {FLBUF}")
            a("v_mov_b32 v7, s61"); a(f"v_mov_b32 v14, {TAG}")
            a("s_mov_b64 exec, 1")
            a(f"buffer_store_dword v14, v7, {WS}, 0 offen sc1")
            a("s_mov_b64 exec, -1")
            a(f"s_lshl_b32 s61, {KVH}, 9"); a(f"s_add_u32 s61, s61, {FLBUF}"); a("v_lshl_add_u32 v7, v1, 3, s61")
            flgather("FL")
            a("s_waitcnt vmcnt(0)")
            a.label("L_fl_chk")
            tagcheck([20, 21], "v14")
            retry("L_fl", flgather)
            a.cond = None
            a.label("L_samedie")
        a("v_max3_f32 v14, v80, v84, v88"); a("v_max_f32 v14, v14, v92")
        for r in range(4): a(f"v_sub_f32 v{80+4*r}, v{80+4*r}, v14")
        for r in range(4): a(f"v_exp_f32 v{80+4*r}, v{80+4*r}")
        a("v_mul_f32 v14, v80, v82")
        for r in range(1, 4): a(f"v_fmac_f32 v14, v{80+4*r}, v{82+4*r}")
        a("v_rcp_f32 v14, v14")
        a("v_mov_b32 v42, 0xfffffc00")
        for r in range(4): a(f"v_mul_f32 v{80+4*r}, v{80+4*r}, v14")
    gathered = 0
    for tau in range(8):
        vb = 96 + (tau % 5)*32
        for w in range(4):
            needi = 8*tau + 4 + w
            while nv < 64 and nv <= needi + (DV if nv < EV else DE) and (nv - 40) < 8*tau:
                V(DV if nv < EV else DE)
                if nv == MLG:
                    gathered = 1
                    mlgather("ML")
            if nv == 64 and gathered == 1:
                gathered = 2
                assert tau >= 5
                if wolate: wo_dma()
                a(f"s_cmp_eq_u32 {WAVE}, 3"); a("s_cbranch_scc0 L_fg_done")
                a.cond = "F"
                a("v_mov_b32 v18, 0"); a(f"v_mov_b32 v19, {TAG}")
                fgather("FG")
                a.cond = None
                a.label("L_fg_done")
                ml_check()
            if prepoll and tau == 7 and w == 0:
                assert gathered == 2
                poll1("P0")
            if w == 0:
                for x in range(4):
                    a(f"v_mov_b32_dpp v{44+x}, v{32+tau} quad_perm:[{x},{x},{x},{x}] row_mask:0xf bank_mask:0xf")
            a.wait_vm(f"V{needi}")
            if tau == 7 and w == 3: stamp(5)
            ra = vb + 4*w; rb = vb + 4*(4 + w)
            def perm(m):
                a(f"v_perm_b32 v{48+4*m+w}, v{rb+(m>>1)}, v{ra+(m>>1)}, s{70+(m&1)}")
            def mf(m):
                a(f"v_mfma_f32_16x16x32_bf16 a[{32+4*m}:{35+4*m}], v[44:47], v[{48+4*m}:{51+4*m}], " + ("0" if tau == 0 else f"a[{32+4*m}:{35+4*m}]"))
            if w < 3:
                for m in range(8): perm(m)
            else:
                perm(0); perm(1); perm(2)
                for m in range(8):
                    mf(m)
                    if m + 3 < 8: perm(m + 3)
    assert nv == 64 and gathered == 2
    def sentinel():
        a(f"v_max3_u32 v14, v{PB}, v{PB+1}, v{PB+2}")
        for i in range(6): a(f"v_max3_u32 v14, v14, v{PB+3+2*i}, v{PB+4+2*i}")
        a(f"v_max_u32 v14, v14, v{PB+15}")
        a("v_cmp_eq_u32 vcc, -1, v14")
    for m in range(0, 8, 2):
        a(f"ds_write2st64_b32 v27, a{32+4*m}, a{36+4*m} offset0:{m} offset1:{m+1}")
    if wolate: a.wait_vm("WO3")
    a("s_waitcnt lgkmcnt(0)")
    a("s_barrier")
    for w in range(4): a(f"ds_read2st64_b32 v[{48+2*w}:{49+2*w}], v28 offset0:{w*8} offset1:{w*8+1}")
    a("s_waitcnt lgkmcnt(0)")
    a("v_add_f32 v48, v48, v50"); a("v_add_f32 v49, v49, v51"); a("v_add_f32 v52, v52, v54"); a("v_add_f32 v53, v53, v55")
    a("v_add_f32 v48, v48, v52"); a("v_add_f32 v49, v49, v53")
    a("v_cvt_pk_bf16_f32 v48, v48, v49"); a("v_min_u32 v48, -2, v48")
    a(f"buffer_store_dword v48, v8, {WS}, 0 offen {LS}")
    stamp(6)
    if wolate: wo_frags()
    if local:
        a(f"s_cmp_eq_u32 {REM}, 0"); a("s_cbranch_scc1 L_noflush")
        a("s_waitcnt vmcnt(0)"); a("buffer_wbl2 sc1")
        a.label("L_noflush")
    if prepoll:
        a("s_waitcnt vmcnt(1)")
        sentinel()
        a("s_mov_b64 exec, vcc")
        a("s_cbranch_execz L_p1_skip")
        poll1("P1")
        a.label("L_p1_skip")
        a("s_mov_b64 exec, -1")
    else:
        poll1("P1")
    a("s_waitcnt vmcnt(0) lgkmcnt(0)")
    stamp(3)
    a.label("L_p1_chk")
    for s in range(4):
        for ct in range(2):
            acc = 64 + 4*ct; r = 64 + (ct*4 + s)*4
            a(f"v_mfma_f32_16x16x32_bf16 v[{acc}:{acc+3}], v[{PB+4*s}:{PB+3+4*s}], a[{r}:{r+3}], " + ("0" if s == 0 else f"v[{acc}:{acc+3}]"))
    sentinel()
    retry("L_p1", poll1, sleep=True)
    a("v_mul_f32 v40, v64, v80"); a("v_mul_f32 v41, v68, v80")
    for r in range(1, 4):
        a(f"v_fmac_f32 v40, v{64+r}, v{80+4*r}"); a(f"v_fmac_f32 v41, v{68+r}, v{80+4*r}")
    a("v_and_or_b32 v40, v40, v42, s75"); a("v_and_or_b32 v41, v41, v42, s75")
    a(f"buffer_store_dwordx2 v[40:41], v25, {WS}, 0 offen sc1")
    stamp(7)
    if fbar: a("s_barrier")
    a(f"s_cmp_eq_u32 {WAVE}, 3"); a("s_cbranch_scc0 L_fin")
    a.cond = "F"
    def poll2(nm):
        for s in range(2):
            a(f"buffer_load_dwordx4 v[{96+4*s}:{99+4*s}], v26, {WS}, 0 offen offset:{s*1024} sc1", name=f"{nm}{s}")
    poll2("P2")
    a.label("L_f_chk")
    tagcheck([17, 19], "v14")
    retry("L_f", fgather)
    a("v_add_f32 v16, v16, v18")
    a("v_add_f32_dpp v16, v16, v16 row_ror:4 row_mask:0xf bank_mask:0xf")
    a("v_add_f32_dpp v16, v16, v16 row_ror:8 row_mask:0xf bank_mask:0xf")
    bf16r("v16", "v16"); a("v_add_f32 v16, v16, v11"); bf16r("v16", "v16"); a("v_mul_f32 v16, v16, v10"); bf16r("v16", "v16")
    a("s_waitcnt vmcnt(0)")
    a.label("L_p2_chk")
    tagcheck([96 + i for i in range(8)], "v14", mask="0x3ff")
    retry("L_p2", poll2)
    for i in range(4): a(f"v_add_f32 v{96+i}, v{96+i}, v{100+i}")
    a("v_permlane16_swap_b32 v96, v97"); a("v_permlane16_swap_b32 v98, v99")
    a("v_add_f32 v96, v96, v97"); a("v_add_f32 v98, v98, v99")
    a("v_permlane32_swap_b32 v96, v98"); a("v_add_f32 v96, v96, v98")
    a("v_add_f32_dpp v96, v96, v96 row_ror:4 row_mask:0xf bank_mask:0xf")
    a("v_add_f32_dpp v96, v96, v96 row_ror:8 row_mask:0xf bank_mask:0xf")
    bf16r("v96", "v96"); a("v_mul_f32 v96, v96, v9"); bf16r("v96", "v96"); a("v_add_f32 v96, v96, v16")
    a("v_cvt_pk_bf16_f32 v96, v96, v96")
    a("s_mov_b32 exec_lo, 0x000f000f"); a("s_mov_b32 exec_hi, 0x000f000f")
    a("global_store_short v12, v96, s[26:27]")
    a("s_cmp_eq_u32 s2, 0"); a("s_cbranch_scc0 L_noep")
    a("s_mov_b64 exec, 1")
    a(f"v_mov_b32 v97, {TAG}"); a("v_mov_b32 v98, 0")
    a(f"buffer_store_dword v97, v98, {WS}, 0 offen sc1")
    a.label("L_noep")
    a("s_mov_b64 exec, -1")
    a.cond = None
    a.label("L_fin")
    if hold:
        if holdwg >= 0: a(f"s_cmp_eq_u32 s2, {holdwg}"); a("s_cbranch_scc0 L_end")
        a.label("L_hold")
        a("s_memrealtime s[98:99]"); a("s_waitcnt lgkmcnt(0)"); a("s_sub_u32 s98, s98, s96"); a(f"s_cmp_lt_u32 s98, {hold}"); a("s_cbranch_scc1 L_hold")
    if stamps:
        stamp(8)
        a("s_waitcnt vmcnt(0)")
        stamp(9)
        a("s_waitcnt lgkmcnt(0)")
        for i in range(10): a(f"v_mov_b32 v{96+i}, s{80+2*i}")
        a("s_getreg_b32 s61, hwreg(HW_REG_HW_ID)"); a("s_lshl_b32 s61, s61, 4"); a(f"s_or_b32 s61, s61, {XCC}")
        a(f"v_mov_b32 v{96+10}, s61"); a(f"v_mov_b32 v{96+11}, {SPIN}")
        a(f"s_lshl_b32 s61, s2, 2"); a(f"s_add_u32 s61, s61, {WAVE}"); a("s_lshl_b32 s61, s61, 6"); a(f"s_add_u32 s61, s61, {STAMP}")
        a("v_mov_b32 v5, s61"); a("s_mov_b64 exec, 1")
        for i in range(3): a(f"buffer_store_dwordx4 v[{96+4*i}:{99+4*i}], v5, {WS}, 0 offen offset:{16*i}")
        if dbg:
            srd(40, "s28", "s29", 256)
            a("v_not_b32 v110, v96"); a("v_mov_b32 v5, 0")
            a("buffer_atomic_umax v110, v5, s[40:43], 0 offen")
            for i in range(10): a(f"buffer_atomic_umax v{96+i}, v5, s[40:43], 0 offen offset:{4+4*i}")
    a.label("L_end")
    a("s_endpgm")
    a.raw('.section .rodata,"a"'); a.raw(".p2align 6"); a.raw(f".amdhsa_kernel {NAME}")
    a.raw("  .amdhsa_next_free_vgpr 512"); a.raw("  .amdhsa_next_free_sgpr 102"); a.raw("  .amdhsa_accum_offset 256")
    a.raw("  .amdhsa_group_segment_fixed_size 0"); a.raw("  .amdhsa_kernarg_size 112"); a.raw("  .amdhsa_user_sgpr_count 2")
    a.raw("  .amdhsa_user_sgpr_kernarg_segment_ptr 1"); a.raw("  .amdhsa_system_sgpr_workgroup_id_x 1"); a.raw(".end_amdhsa_kernel")
    return a.text()

def parse(args):
    kw = {}
    for x in args:
        k, v = x.split("=")
        kw[k] = int(v) if v.lstrip('-').isdigit() else (v.replace("+", " ") if v not in ("True", "False") else v == "True")
    return kw
if __name__ == "__main__":
    import build
    out = sys.argv[1]
    open(out, "w").write(gen(**parse(sys.argv[2:])))
    print(build.build(out))
```

```python
import sys, struct
from asmlib import Asm

NAME = "gated_mix__gqa_block_cached__dense_activation_gelu__decode_kernel"
HEADER = open("gated_mix__gqa_block_cached__dense_activation_gelu__decode.s.ref").read().split("; Override launch")[0]

def f2u(x): return struct.unpack('<I', struct.pack('<f', x))[0]
LOG2E = 1.4426950408889634

QBUF, HBUF, MLBUF, FLBUF, OBUF, FBUF, PBUF, STAMP = 0x10000, 0x30000, 0x40000, 0x48000, 0x50000, 0x90000, 0x100000, 0x400000
L_W, L_H, L_WO, L_X, L_ML, L_RED, L_END = 0, 0x8000, 0x10000, 0x14000, 0x16100, 0x17000, 0x19000

def gen(DK=14, DV=14, DE=16, EV=40, kv="nt", wf="nt", stamps=False, wolate=True, MLG=50, spin=0x100000,
        scramble=False, local=True, prepoll=True, flushn=255, slp=0, slpn=8, fbar=True, dbg=False, touch=0, codepf=0, hold=0, holdwg=-1, qx=0, WSP=0, DN=0, DW=0, DS=0, DH=0, spec=False, x4=True, pswz=False, fine=False, warm=0, pfull=True, sbar=True, ackf=True, pipe=True):
    a = Asm()
    a.raw(HEADER + f"; @launch grid=(256,1,1) block=(256,1,1) lds={L_END}")
    a.raw('.amdgcn_target "amdgcn-amd-amdhsa--gfx950"')
    a.raw(".text"); a.raw(f".globl {NAME}"); a.raw(".p2align 8"); a.raw(f".type {NAME},@function"); a.raw(f"{NAME}:")
    LS = "" if local else "sc1"
    def stamp(i):
        if stamps: a(f"s_memrealtime s[{80+2*i}:{81+2*i}]")
    WAVE, KVH, BB, SP, RR, TAG, SOFF, PITCH, XCC, REM = "s52", "s53", "s54", "s55", "s57", "s58", "s59", "s60", "s56", "s74"
    SPIN = "s73"
    def srd(base, lo, hi, size):
        a(f"s_mov_b32 s{base}, {lo}"); a(f"s_mov_b32 s{base+1}, {hi}"); a(f"s_mov_b32 s{base+2}, {size}"); a(f"s_mov_b32 s{base+3}, 0x20000")
    def bf16r(dst, src):
        a(f"v_cvt_pk_bf16_f32 {dst}, {src}, {src}"); a(f"v_and_b32 {dst}, 0xffff0000, {dst}")
    WS = "s[48:51]"
    def reduce_rows(v, t, op):
        a(f"v_mov_b32 {t}, {v}"); a(f"v_permlane16_swap_b32 {v}, {t}"); a(f"{op} {v}, {v}, {t}")
        a(f"v_mov_b32 {t}, {v}"); a(f"v_permlane32_swap_b32 {v}, {t}"); a(f"{op} {v}, {v}, {t}")
    def reduce_quad(v, op):
        a(f"{op}_dpp {v}, {v}, {v} quad_perm:[1,0,3,2] row_mask:0xf bank_mask:0xf")
        a(f"{op}_dpp {v}, {v}, {v} quad_perm:[2,3,0,1] row_mask:0xf bank_mask:0xf")
    def tagcheck(regs, t, mask=None):
        a(f"v_xor_b32 {t}, {TAG}, v{regs[0]}")
        for r in regs[1:]:
            a(f"v_bitop3_b32 {t}, {t}, v{r}, {TAG} bitop3:0xf6")
        if mask: a(f"v_and_b32 {t}, {mask}, {t}")
        a(f"v_cmp_ne_u32 vcc, 0, {t}")
    def retry(lbl, reissue, flush=False, sleep=False):
        a(f"s_cbranch_vccz {lbl}_ok")
        a(f"s_cmp_eq_u32 {SPIN}, 0"); a(f"s_cbranch_scc1 {lbl}_ok")
        a(f"s_sub_u32 {SPIN}, {SPIN}, 1")
        if flush and local:
            a(f"s_and_b32 s61, {SPIN}, {flushn}"); a(f"s_cbranch_scc1 {lbl}_nf")
            a("s_waitcnt vmcnt(0)"); a("buffer_wbl2 sc1")
            a.label(f"{lbl}_nf")
        if sleep and slp:
            a("s_bcnt1_i32_b64 s61, vcc"); a(f"s_cmp_le_u32 s61, {slpn}"); a(f"s_cbranch_scc1 {lbl}_ns"); a(f"s_sleep {slp}"); a.label(f"{lbl}_ns")
        old = a.cond; a.cond = "retry" + lbl
        a("s_mov_b64 exec, vcc")
        reissue("R" + lbl)
        a("s_mov_b64 exec, -1")
        a.cond = old
        a("s_waitcnt vmcnt(0)")
        a(f"s_branch {lbl}_chk")
        a.label(f"{lbl}_ok")

    stamp(0)
    if hold: a("s_memrealtime s[96:97]")
    a("s_cmp_ge_u32 s2, 256"); a("s_cbranch_scc1 L_end")
    a("s_load_dwordx16 s[4:19], s[0:1], 0")
    a("s_load_dwordx8 s[20:27], s[0:1], 64")
    a("s_load_dwordx4 s[28:31], s[0:1], 96")
    if scramble:
        a("s_lshr_b32 s3, s2, 3"); a("s_and_b32 s3, s3, 7"); a("s_xor_b32 s2, s2, s3")
    a("v_lshrrev_b32 v4, 6, v0"); a("v_and_b32 v1, 63, v0"); a(f"v_readfirstlane_b32 {WAVE}, v4")
    a(f"s_and_b32 {KVH}, s2, 7"); a(f"s_lshr_b32 {BB}, s2, 5"); a(f"s_bfe_u32 {SP}, s2, 0x20003"); a(f"s_lshr_b32 {RR}, s2, 3")
    a(f"s_lshl_b32 s61, {BB}, 5"); a(f"s_lshl_b32 s62, {KVH}, 2"); a("s_add_u32 s61, s61, s62"); a(f"s_add_u32 s61, s61, {SP}")
    a("s_lshl_b32 s61, s61, 18"); a(f"s_lshl_b32 s62, {WAVE}, 12"); a("s_add_u32 s61, s61, s62")
    a("v_and_b32 v2, 3, v1"); a("v_lshlrev_b32 v2, 4, v2")
    a("v_bfe_u32 v4, v1, 2, 2"); a("v_lshl_add_u32 v2, v4, 8, v2")
    a("v_lshrrev_b32 v4, 4, v1"); a("v_lshl_add_u32 v2, v4, 6, v2")
    a("v_add_u32 v2, s61, v2")
    a("v_lshl_add_u32 v3, v1, 4, s61")
    a(f"s_mov_b32 {SOFF}, 0")
    a("s_mov_b32 s34, 0x4000000"); a("s_mov_b32 s35, 0x20000")

    cur = {"soff": 0}
    kvn = []
    def kvload(which, n, D):
        off = (n >> 2) * 16384; imm = (n & 3) * 1024
        if off != cur["soff"]:
            a(f"s_mov_b32 {SOFF}, {off}"); cur["soff"] = off
        if D and len(kvn) >= D: a.wait_vm(kvn[-D])
        if which == "K":
            a(f"buffer_load_dwordx4 a[{4*n}:{4*n+3}], v2, s[32:35], {SOFF} offen offset:{imm} {kv}", name=f"K{n}")
        else:
            r = 96 + (n % 40) * 4
            a(f"buffer_load_dwordx4 v[{r}:{r+3}], v3, s[36:39], {SOFF} offen offset:{imm} {kv}", name=f"V{n}")
        kvn.append(f"{which}{n}")

    def consts():
        a(f"s_load_dword {TAG}, s[30:31], 0")
        if touch:
            a(f"s_lshl_b32 s61, {BB}, 5"); a(f"s_lshl_b32 s62, {KVH}, 2"); a("s_add_u32 s61, s61, s62"); a(f"s_add_u32 s61, s61, {SP}"); a("s_lshl_b32 s61, s61, 18")
            a("s_load_dword s100, s[8:9], s61")
            a(f"s_lshl_b32 s61, {KVH}, 19")
            a("s_load_dword s100, s[12:13], s61")
            a("s_load_dword s100, s[26:27], 0")
            if touch > 1:
                a("s_load_dword s100, s[22:23], 0"); a("s_load_dword s100, s[24:25], 0"); a("s_load_dword s100, s[4:5], 0"); a("s_load_dword s100, s[20:21], 0")
        if codepf:
            a("s_getpc_b64 s[62:63]")
            lab = f"L_pc{len(a.lines)}"
            a.label(lab)
            a(f"s_sub_u32 s62, s62, {lab}-{NAME}"); a("s_subb_u32 s63, s63, 0")
            a(f"s_lshl_b32 s61, {RR}, 10"); a(f"s_lshl_b32 s100, {WAVE}, 8"); a("s_add_u32 s61, s61, s100"); a(f"s_min_u32 s61, s61, L_end-{NAME}-252")
            a("v_lshl_add_u32 v5, v1, 2, s61")
            a("global_load_dword v9, v5, s[62:63]")
        srd(36, "s8", "s9", "0x4000000")
        srd(48, "s30", "s31", "0x10000000")
        a("s_mov_b32 s64, 0x22222222"); a("s_mov_b32 s65, 0x22222222")
        a("s_mov_b32 s66, 0x44444444"); a("s_mov_b32 s67, 0x44444444")
        a("s_mov_b32 s68, 0x88888888"); a("s_mov_b32 s69, 0x88888888")
        a("s_mov_b32 s70, 0x05040100"); a("s_mov_b32 s71, 0x07060302")
        a(f"s_mov_b32 s72, {hex(f2u(128**-0.5*LOG2E))}")
        a(f"s_mov_b32 {SPIN}, {spin}")
        a(f"s_getreg_b32 {XCC}, hwreg(HW_REG_XCC_ID, 0, 4)")
        srd(44, "s12", "s13", 4096*512*2)
        a(f"s_lshl_b32 s77, {KVH}, 5"); a(f"s_add_u32 s77, s77, {RR}")
        a("s_lshl_b32 s61, s77, 10"); a(f"s_lshl_b32 s62, {WAVE}, 8"); a("s_add_u32 s61, s61, s62"); a(f"s_add_u32 s61, s61, {OBUF}")
        a("v_lshl_add_u32 v8, v1, 2, s61")
        a(f"s_lshl_b32 s61, {KVH}, 2"); a(f"s_add_u32 s78, s61, {SP}")
        a(f"s_lshr_b32 s61, {SP}, 1"); a("s_lshl_b32 s61, s61, 5"); a(f"s_and_b32 s62, {SP}, 1"); a("s_lshl_b32 s62, s62, 3"); a("s_add_u32 s79, s61, s62")
        a("v_and_b32 v12, 3, v1"); a("v_lshlrev_b32 v12, 1, v12"); a("v_and_b32 v5, 16, v1"); a("v_add_u32 v12, v12, v5")
        a("v_lshrrev_b32 v5, 5, v1"); a("v_add3_u32 v12, v12, v5, s79")
        a("v_mov_b32 v5, -1")
        a(f"buffer_store_dword v5, v8, {WS}, 0 offen {LS}", name="CLR")
    def get_tag():
        a("s_waitcnt lgkmcnt(0)")
        a(f"s_add_u32 {TAG}, {TAG}, 1")
    def wo_dma():
        a("v_lshrrev_b32 v5, 3, v1"); a(f"s_lshl_b32 s61, {WAVE}, 5"); a("v_add_u32 v5, s61, v5"); a("v_lshlrev_b32 v5, 10, v5")
        a(f"s_and_b32 s61, {WAVE}, 1"); a("s_lshl_b32 s61, s61, 2")
        a("v_and_b32 v6, 7, v1"); a("v_xor_b32 v6, s61, v6"); a("v_lshl_add_u32 v5, v6, 4, v5"); a("v_xor_b32 v6, 32, v5")
        a("s_lshl_b32 s61, s78, 17"); a(f"s_lshl_b32 s62, {BB}, 7"); a("s_add_u32 s61, s61, s62")
        a(f"s_lshl_b32 s63, {WAVE}, 12")
        for i in range(4):
            a(f"s_add_u32 m0, s63, {L_WO + i*1024}")
            a(f"buffer_load_dwordx4 v{5+(i&1)}, s[44:47], s61 offen {wf} lds", name=f"WO{i}")
            if i < 3: a("s_add_u32 s61, s61, 8192")
    def gate_loads():
        a(f"s_lshl_b32 s61, {BB}, 10"); a("v_lshl_add_u32 v5, v1, 4, s61")
        a("global_load_dwordx4 v[208:211], v5, s[4:5]", name="GX")
        a("v_lshlrev_b32 v5, 4, v1")
        a("global_load_dwordx4 v[212:215], v5, s[24:25]", name="GW")
        a("v_and_b32 v5, 0x3ff, v12")
        a("global_load_ushort v11, v5, s[22:23]", name="GB2")
    def gate():
        for i in range(4):
            a(f"v_lshlrev_b32 v{48+2*i}, 16, v{208+i}"); a(f"v_and_b32 v{49+2*i}, 0xffff0000, v{208+i}")
            a(f"v_lshlrev_b32 v{56+2*i}, 16, v{212+i}"); a(f"v_and_b32 v{57+2*i}, 0xffff0000, v{212+i}")
        for i in range(8): a(f"v_mul_f32 v{48+i}, v{48+i}, v{56+i}")
        for i in range(4): a(f"v_cvt_pk_bf16_f32 v{56+i}, v{48+2*i}, v{49+2*i}")
        for i in range(4):
            a(f"v_lshlrev_b32 v{48+2*i}, 16, v{56+i}"); a(f"v_and_b32 v{49+2*i}, 0xffff0000, v{56+i}")
        for i in range(4): a(f"v_add_f32 v{48+i}, v{48+i}, v{52+i}")
        a("v_add_f32 v48, v48, v50"); a("v_add_f32 v49, v49, v51"); a("v_add_f32 v48, v48, v49")
        reduce_quad("v48", "v_add_f32")
        a("v_add_f32_dpp v48, v48, v48 row_ror:4 row_mask:0xf bank_mask:0xf")
        a("v_add_f32_dpp v48, v48, v48 row_ror:8 row_mask:0xf bank_mask:0xf")
        reduce_rows("v48", "v49", "v_add_f32")
        bf16r("v48", "v48")
        a(f"v_mul_f32 v48, {hex(f2u(-LOG2E))}, v48"); a("v_exp_f32 v48, v48"); a("v_add_f32 v48, 1.0, v48"); a("v_rcp_f32 v48, v48")
        bf16r("v9", "v48")
        a("v_sub_f32 v10, 1.0, v9"); bf16r("v10", "v10")
        a("v_lshlrev_b32 v11, 16, v11")
    def qgather(nm):
        a(f"buffer_load_dwordx4 v[80:83], v15, {WS}, 0 offen sc1", name=nm+"0")
        a(f"buffer_load_dwordx4 v[84:87], v15, {WS}, 0 offen offset:16 sc1", name=nm+"1")
    def qaddr():
        a(f"s_lshl_b32 s61, {BB}, 14"); a(f"s_lshl_b32 s62, {KVH}, 11"); a("s_add_u32 s61, s61, s62"); a(f"s_add_u32 s61, s61, {QBUF}")
        a("v_bfe_u32 v15, v1, 2, 2"); a("v_lshlrev_b32 v15, 9, v15")
        a("v_lshrrev_b32 v6, 4, v1"); a("v_lshl_add_u32 v15, v6, 7, v15")
        a("v_and_b32 v7, 3, v1"); a("v_lshl_add_u32 v15, v7, 5, v15"); a("v_add_u32 v15, s61, v15")

    NV0 = 16
    def kphase(p0):
        D = {"Q": DK, "W": DW or DK, "N": DN or DK, "S": DS or DK, "H": DH or DK}[p0]
        p = "Q" if p0 in "SH" else p0
        st = {"n": 0}
        def K(upto=None, cnt=None):
            end = upto if upto is not None else st["n"] + cnt
            while st["n"] < end:
                n = st["n"]
                if n < 64: kvload("K", n, D)
                else: kvload("V", n - 64, D)
                st["n"] += 1
        a("s_waitcnt lgkmcnt(0)") if p != "Q" else None
        if p == "Q":
            a(f"s_lshl_b32 s61, {KVH}, 9"); a(f"s_xor_b32 s62, {RR}, {qx}"); a("s_lshl_b32 s62, s62, 5"); a("s_add_u32 s61, s61, s62"); a(f"s_lshl_b32 s62, {RR}, 5")
            a(f"s_mul_i32 s63, {KVH}, 224"); a("s_add_u32 s62, s62, s63"); a(f"s_sub_u32 s62, s62, {23*32}")
            a(f"s_cmp_lt_u32 {RR}, 16"); a("s_cselect_b32 s76, s61, s62")
            a(f"s_movk_i32 s61, 8192"); a(f"s_movk_i32 s62, 3584"); a(f"s_cselect_b32 {PITCH}, s61, s62")
            a(f"s_mov_b32 s61, {512*4096*2}"); a(f"s_mov_b32 s62, {512*1792*2}"); a("s_cselect_b32 s42, s61, s62"); a("s_mov_b32 s43, 0x20000")
            a("v_lshrrev_b32 v4, 2, v1"); a(f"s_lshl_b32 s61, {WAVE}, 7"); a("v_add_u32 v4, s61, v4")
            a(f"v_mul_u32_u24 v5, {PITCH}, v4")
            a("v_and_b32 v4, 3, v1"); a("v_lshrrev_b32 v6, 5, v1"); a("v_lshlrev_b32 v6, 1, v6"); a("v_xor_b32 v4, v4, v6")
            a("s_lshl_b32 s61, s76, 1"); a("v_add_u32 v5, s61, v5"); a("v_lshl_add_u32 v5, v4, 4, v5")
            a(f"s_lshl_b32 s62, {PITCH}, 4"); a(f"s_lshl_b32 s63, {WAVE}, 13"); a("s_mov_b32 s61, 0")
            a(f"s_cmp_lt_u32 {RR}, 16")
            a("s_waitcnt lgkmcnt(0)")
            a("s_cselect_b32 s40, s10, s16"); a("s_cselect_b32 s41, s11, s17")
            a("s_mov_b32 s32, s6"); a("s_mov_b32 s33, s7")
            for n in range(8):
                K(cnt=WSP)
                a(f"s_add_u32 m0, s63, {L_W + n*1024}")
                a(f"buffer_load_dwordx4 v5, s[40:43], s61 offen {wf} lds", name=f"W{n}")
                if WSP: kvn.append(f"W{n}")
                if n < 7: a("s_add_u32 s61, s61, s62")
            a(f"s_lshl_b32 s61, {WAVE}, 11"); a("v_lshl_add_u32 v7, v1, 4, s61")
            a(f"s_mul_i32 s61, {WAVE}, 2080"); a(f"s_add_u32 m0, s61, {L_X}")
            a("global_load_lds_dwordx4 v7, s[4:5]", name="X0")
            a(f"s_add_u32 m0, s61, {L_X+16}")
            a("global_load_lds_dwordx4 v7, s[4:5] offset:1024", name="X1")
        else:
            a("s_mov_b32 s32, s6"); a("s_mov_b32 s33, s7")
        if p == "Q":
            K(cnt=(2 if WSP else 6))
            a("s_min_u32 s61, s76, 1760"); a(f"s_and_b32 s62, {WAVE}, 1"); a("s_lshl_b32 s62, s62, 4"); a("s_add_u32 s61, s61, s62"); a("s_lshl_b32 s61, s61, 1")
            a("v_lshrrev_b32 v7, 4, v1"); a("v_lshl_add_u32 v4, v7, 3, s61")
            a("global_load_dwordx2 v[14:15], v4, s[18:19]", name="B1")
            consts()
            a("v_lshlrev_b32 v4, 3, v7"); a("v_bfe_u32 v5, v1, 2, 2"); a("v_add_u32 v4, v4, v5"); a("v_lshlrev_b32 v4, 6, v4")
            a("v_and_b32 v5, 3, v1"); a("v_lshl_add_u32 v4, v5, 3, v4")
            a(f"v_xor_b32 v5, {WAVE}, v7"); a("v_and_b32 v5, 1, v5"); a("v_lshl_add_u32 v4, v5, 5, v4")
            a("v_and_b32 v5, 7, v1"); a("v_mul_u32_u24 v6, 1040, v5"); a("v_lshl_add_u32 v6, v7, 4, v6")
            a(f"v_add_u32 v6, {L_X}, v6")
            a(f"s_cmp_lt_u32 {RR}, 16")
            a(f"s_movk_i32 s61, 16384"); a("s_movk_i32 s62, 7168"); a("s_cselect_b32 s61, s61, s62")
            a(f"s_mov_b32 s62, {QBUF}"); a(f"s_mov_b32 s63, {HBUF}"); a("s_cselect_b32 s62, s62, s63")
            a("s_lshl_b32 s63, s76, 2"); a("s_add_u32 s62, s62, s63"); a(f"s_lshl_b32 s63, {WAVE}, 6"); a("s_add_u32 s62, s62, s63")
            a("v_mul_u32_u24 v13, s61, v5"); a("v_lshl_add_u32 v13, v7, 4, v13"); a("v_add_u32 v13, s62, v13")
            K(upto=8*WSP + D + 2)
            get_tag()
            a.wait_vm("X1")
            a("s_barrier")
            K(cnt=2)
            a(f"s_cmp_lt_u32 {WAVE}, 2"); a("s_cbranch_scc0 L_qh_done"+p0)
            a.cond = "QH"
            for s in range(16):
                a(f"ds_read_b64_tr_b16 v[{96+4*s}:{97+4*s}], v4 offset:{L_W + s*2048}")
                a(f"ds_read_b64_tr_b16 v[{98+4*s}:{99+4*s}], v4 offset:{L_W + s*2048 + 256}")
                a(f"ds_read_b128 v[{160+4*s}:{163+4*s}], v6 offset:{s*64}")
            a("s_waitcnt lgkmcnt(0)")
            for s in range(16):
                acc = 224 + 4*(s & 1)
                a(f"v_mfma_f32_16x16x32_bf16 v[{acc}:{acc+3}], v[{96+4*s}:{99+4*s}], v[{160+4*s}:{163+4*s}], " + ("0" if s < 2 else f"v[{acc}:{acc+3}]"))
            a(f"v_mov_b32 v237, {TAG}"); a(f"v_mov_b32 v239, {TAG}")
            for r in range(4): a(f"v_add_f32 v{224+r}, v{224+r}, v{228+r}")
            a(f"s_cmp_lt_u32 {RR}, 16"); a("s_cbranch_scc0 L_h_epi"+p0)
            a("v_cvt_pk_bf16_f32 v236, v224, v225"); a("v_cvt_pk_bf16_f32 v238, v226, v227")
            a("s_mov_b32 exec_lo, 0x00ff00ff"); a("s_mov_b32 exec_hi, 0x00ff00ff")
            a(f"buffer_store_dwordx4 v[236:239], v13, {WS}, 0 offen {LS}")
            a("s_branch L_qh_pub"+p0)
            a.label("L_h_epi"+p0)
            a.wait_vm("B1")
            a("v_lshlrev_b32 v232, 16, v14"); a("v_and_b32 v233, 0xffff0000, v14"); a("v_lshlrev_b32 v234, 16, v15"); a("v_and_b32 v235, 0xffff0000, v15")
            k1 = -2.0 * (2.0/3.141592653589793)**0.5 * LOG2E
            for r in range(4): bf16r(f"v{224+r}", f"v{224+r}")
            for r in range(4): a(f"v_add_f32 v{224+r}, v{224+r}, v{232+r}")
            for r in range(4): bf16r(f"v{224+r}", f"v{224+r}")
            for r in range(4): a(f"v_mul_f32 v{232+r}, v{224+r}, v{224+r}")
            a(f"v_mov_b32 v236, {hex(f2u(k1))}")
            for r in range(4): a(f"v_fmamk_f32 v{232+r}, v{232+r}, {hex(f2u(k1*0.044715))}, v236")
            for r in range(4): a(f"v_mul_f32 v{232+r}, v{232+r}, v{224+r}")
            for r in range(4): a(f"v_exp_f32 v{232+r}, v{232+r}")
            for r in range(4): a(f"v_add_f32 v{232+r}, 1.0, v{232+r}")
            for r in range(4): a(f"v_rcp_f32 v{232+r}, v{232+r}")
            for r in range(4): a(f"v_mul_f32 v{224+r}, v{224+r}, v{232+r}")
            a("v_cvt_pk_bf16_f32 v236, v224, v225"); a("v_cvt_pk_bf16_f32 v238, v226, v227")
            a("s_mov_b32 exec_lo, 0x00ff00ff"); a("s_mov_b32 exec_hi, 0x00ff00ff")
            a(f"buffer_store_dwordx4 v[236:239], v13, {WS}, 0 offen sc1")
            a.label("L_qh_pub"+p0)
            a("s_mov_b64 exec, -1")
            a.cond = None
            a.label("L_qh_done"+p0)
            stamp(1)
            K(upto=max(24, st["n"]))
        else:
            K(upto=D)
            consts()
            stamp(1)
            K(upto=18)
            if p == "W":
                srd(40, "s20", "s21", 1792*512*2)
                a("v_lshrrev_b32 v5, 3, v1"); a(f"s_lshl_b32 s61, {WAVE}, 6"); a("v_add_u32 v5, s61, v5"); a("v_lshlrev_b32 v5, 10, v5")
                a("v_and_b32 v4, 7, v1"); a("v_bfe_u32 v6, v1, 4, 1"); a("v_lshlrev_b32 v6, 1, v6"); a("v_xor_b32 v4, v4, v6")
                a("v_lshl_add_u32 v5, v4, 4, v5"); a("v_xor_b32 v6, 64, v5")
                a(f"s_sub_u32 s76, {RR}, 16")
                a("s_lshl_b32 s61, s76, 18"); a(f"s_lshl_b32 s62, {KVH}, 7"); a("s_add_u32 s61, s61, s62")
                a(f"s_lshl_b32 s63, {WAVE}, 13")
                for i in range(8):
                    a(f"s_add_u32 m0, s63, {L_W + i*1024}")
                    a(f"buffer_load_dwordx4 v{5+(i&1)}, s[40:43], s61 offen {wf} lds", name=f"W2_{i}")
                    if i < 7: a("s_add_u32 s61, s61, 8192")
                a("v_lshrrev_b32 v4, 4, v1"); a("v_lshlrev_b32 v4, 3, v4"); a("v_bfe_u32 v5, v1, 2, 2"); a("v_add_u32 v4, v4, v5")
                a("v_lshlrev_b32 v4, 7, v4"); a("v_and_b32 v5, 3, v1"); a("v_lshl_add_u32 v4, v5, 3, v4")
                a("v_bfe_u32 v5, v1, 3, 2"); a(f"v_xor_b32 v5, {WAVE}, v5"); a("v_lshl_add_u32 v4, v5, 5, v4")
            K(upto=24)
            get_tag()
        if not wolate: wo_dma()
        K(upto=max(44, st["n"]))
        qaddr()
        if p == "W":
            K(upto=56)
            a("s_lshl_b32 s61, s76, 10"); a(f"s_lshl_b32 s62, {WAVE}, 8"); a("s_add_u32 s61, s61, s62"); a(f"s_add_u32 s61, s61, {HBUF}")
            a("v_and_b32 v7, 7, v1"); a("v_mul_u32_u24 v7, 7168, v7"); a("v_lshl_add_u32 v7, v6, 5, v7"); a("v_add_u32 v7, s61, v7")
            def hgather(nm):
                for i in range(4):
                    a(f"buffer_load_dwordx4 v[{16+4*i}:{19+4*i}], v7, {WS}, 0 offen offset:{(i>>1)*128 + (i&1)*16} sc1", name=f"{nm}{i}")
            hgather("HG")
            a(f"s_lshl_b32 s61, {WAVE}, 11"); a(f"s_add_u32 s61, s61, {L_H}"); a("v_lshl_add_u32 v5, v1, 4, s61")
            a("v_lshlrev_b32 v13, 4, v1")
        K(upto=64)
        qgather("QG")
        if p == "W":
            K(upto=56 + D)
            a.wait_vm("HG3")
            a.label("L_h_chk")
            tagcheck([17 + 2*i for i in range(8)], "v14")
            retry("L_h", hgather)
            for i in range(1, 8): a(f"v_mov_b32 v{16+i}, v{16+2*i}")
            a("ds_write_b128 v5, v[16:19]"); a("ds_write_b128 v5, v[20:23] offset:1024")
            K(cnt=1)
            a("s_waitcnt lgkmcnt(0)")
            a("s_barrier")
            for s in range(8):
                a(f"ds_read_b64_tr_b16 v[{192+4*s}:{193+4*s}], v4 offset:{L_W + s*4096}")
                a(f"ds_read_b64_tr_b16 v[{194+4*s}:{195+4*s}], v4 offset:{L_W + s*4096 + 512}")
                a(f"ds_read_b128 v[{224+4*s}:{227+4*s}], v13 offset:{L_H + s*1024}")
            a(f"s_lshl_b32 s61, {KVH}, 15"); a("s_lshl_b32 s62, s76, 12"); a("s_add_u32 s61, s61, s62")
            a(f"s_lshl_b32 s62, {WAVE}, 7"); a("s_add_u32 s61, s61, s62"); a(f"s_add_u32 s61, s61, {FBUF}")
            a("v_and_b32 v7, 7, v1"); a("v_lshlrev_b32 v7, 9, v7"); a("v_lshl_add_u32 v7, v6, 5, v7"); a("v_add_u32 v7, s61, v7")
            for r in range(4): a(f"v_mov_b32 v{89+2*r}, {TAG}")
            K(cnt=1)
            a("s_waitcnt lgkmcnt(0)")
            for s in range(8):
                a(f"v_mfma_f32_16x16x32_bf16 v[16:19], v[{192+4*s}:{195+4*s}], v[{224+4*s}:{227+4*s}], " + ("0" if s == 0 else "v[16:19]"))
            K(cnt=1)
            for r in range(4): a(f"v_mov_b32 v{88+2*r}, v{16+r}")
            a("s_mov_b32 exec_lo, 0x00ff00ff"); a("s_mov_b32 exec_hi, 0x00ff00ff")
            a(f"buffer_store_dwordx4 v[88:91], v7, {WS}, 0 offen {LS}")
            a(f"buffer_store_dwordx4 v[92:95], v7, {WS}, 0 offen offset:16 {LS}")
            a("s_mov_b64 exec, -1")
        K(upto=64 + NV0)

    a(f"s_cmp_ge_u32 {RR}, 30"); a("s_cbranch_scc1 L_pathN")
    a(f"s_sub_u32 s61, {RR}, 16"); a("s_cmp_lt_u32 s61, 7"); a("s_cbranch_scc1 L_pathW")
    if DS: a(f"s_and_b32 s61, {RR}, 30"); a("s_cmp_eq_u32 s61, 6"); a("s_cbranch_scc1 L_pathS")
    if DH: a(f"s_cmp_ge_u32 {RR}, 23"); a("s_cbranch_scc1 L_pathH")
    for p in ["Q"] + (["S"] if DS else []) + (["H"] if DH else []) + ["W", "N"]:
        if p != "Q": a.label(f"L_path{p}")
        a.vm = []; kvn.clear(); cur["soff"] = 0
        kphase(p)
        if p != "N": a("s_branch L_join")
    a.label("L_join")
    a.vm = [("QG0", True, None), ("QG1", True, None)] + [(f"V{i}", True, None) for i in range(NV0)]
    nv = NV0
    def V(D):
        nonlocal nv
        kvload("V", nv, D); nv += 1

    a.wait_vm("QG1")
    stamp(2)
    a.label("L_q_chk")
    tagcheck([81, 83, 85, 87], "v14")
    retry("L_q", qgather, flush=True)
    for i in range(4): a(f"v_mov_b32 v{40+i}, v{80+2*i}")
    def qk_mfma(u):
        for t in range(4):
            d = 48 + (u & 1)*16 + 4*t; k = 4*(4*u + t)
            a(f"v_mfma_f32_16x16x32_bf16 v[{d}:{d+3}], a[{k}:{k+3}], v[40:43], 0")
    def qk_red(u):
        base = 48 + (u & 1)*16
        for step in range(1, 4):
            for t in range(4):
                c = (t + step) & 3
                d = base + 4*t
                dst = f"v{16+u}" if (t == 0 and step == 3) else f"v{d+t}"
                a(f"v_add_f32_dpp {dst}, v{d+c}, v{d+t} quad_perm:[{c},{c},{c},{c}] row_mask:0xf bank_mask:0xf")
        for t in range(1, 4):
            a(f"v_cndmask_b32 v{16+u}, v{16+u}, v{base+5*t}, s[{62+2*t}:{63+2*t}]")
    qk_mfma(0)
    for u in range(16):
        if u < 15: qk_mfma(u+1)
        qk_red(u)
        if u % 2 == 1: V(DV)
    a("v_max3_f32 v48, v16, v17, v18")
    for i in range(6): a(f"v_max3_f32 v48, v48, v{19+2*i}, v{20+2*i}")
    a("v_max_f32 v48, v48, v31")
    reduce_quad("v48", "v_max_f32")
    reduce_rows("v48", "v49", "v_max_f32")
    a("v_mul_f32 v48, s72, v48")
    for u in range(16): a(f"v_fma_f32 v{16+u}, v{16+u}, s72, -v48")
    V(DV)
    for u in range(16): a(f"v_exp_f32 v{16+u}, v{16+u}")
    for i in range(8): a(f"v_add_f32 v{52+i}, v{16+2*i}, v{17+2*i}")
    for i in range(4): a(f"v_add_f32 v{52+i}, v{52+i}, v{56+i}")
    a("v_add_f32 v52, v52, v54"); a("v_add_f32 v53, v53, v55"); a("v_add_f32 v49, v52, v53")
    V(DV)
    reduce_quad("v49", "v_add_f32")
    reduce_rows("v49", "v50", "v_add_f32")
    a(f"s_lshl_b32 s61, {WAVE}, 9"); a(f"s_add_u32 s61, s61, {L_ML}")
    a("v_lshl_add_u32 v50, v1, 3, s61"); a("v_lshlrev_b32 v51, 3, v1"); a(f"v_add_u32 v51, {L_ML}, v51")
    a("ds_write_b64 v50, v[48:49]")
    V(DV)
    a("s_waitcnt lgkmcnt(0)")
    a("s_barrier")
    for w in range(4): a(f"ds_read_b64 v[{52+2*w}:{53+2*w}], v51 offset:{w*512}")
    a("v_lshrrev_b32 v4, 4, v1"); a("v_lshlrev_b32 v4, 5, v4"); a("v_bfe_u32 v6, v1, 3, 1"); a("v_lshl_add_u32 v4, v6, 3, v4")
    a("v_bfe_u32 v6, v1, 2, 1"); a("v_add_u32 v4, v4, v6"); a("v_lshlrev_b32 v4, 7, v4")
    a("v_and_b32 v6, 3, v1"); a("v_lshl_add_u32 v4, v6, 3, v4")
    a(f"s_and_b32 s61, {WAVE}, 2"); a("v_bfe_u32 v6, v1, 3, 2"); a("v_xor_b32 v6, s61, v6"); a("v_lshl_add_u32 v4, v6, 5, v4")
    a(f"v_add_u32 v4, {L_WO}, v4"); a("v_xor_b32 v13, 32, v4")
    def wo_frags():
        for s in range(4):
            for ct in range(2):
                r = 64 + (ct*4 + s)*4
                ad = "v4" if ct == 0 else "v13"
                a(f"ds_read_b64_tr_b16 a[{r}:{r+1}], {ad} offset:{s*256}")
                a(f"ds_read_b64_tr_b16 a[{r+2}:{r+3}], {ad} offset:{s*256 + 2048}")
    V(DV)
    a("s_waitcnt lgkmcnt(0)")
    if not wolate: wo_frags()
    a("v_max3_f32 v60, v52, v54, v56"); a("v_max_f32 v60, v60, v58")
    a("v_sub_f32 v48, v48, v60"); a("v_exp_f32 v48, v48")
    for w in range(4): a(f"v_sub_f32 v{52+2*w}, v{52+2*w}, v60")
    for w in range(4): a(f"v_exp_f32 v{52+2*w}, v{52+2*w}")
    a("v_mul_f32 v62, v52, v53")
    for w in range(1, 4): a(f"v_fmac_f32 v62, v{52+2*w}, v{53+2*w}")
    a(f"s_cmp_eq_u32 {WAVE}, 2"); a("s_cbranch_scc0 L_ml_done")
    a.cond = "W0"
    a(f"v_mov_b32 v61, {TAG}"); a(f"v_mov_b32 v63, {TAG}")
    a(f"v_writelane_b32 v60, {XCC}, 16")
    a("s_lshl_b32 s61, s77, 7"); a(f"s_add_u32 s61, s61, {MLBUF}"); a("v_lshl_add_u32 v5, v1, 2, s61")
    a("s_mov_b64 exec, 0x11111")
    a(f"buffer_store_dwordx4 v[60:63], v5, {WS}, 0 offen sc1")
    a("s_mov_b64 exec, -1")
    a.cond = None
    a.label("L_ml_done")
    for u in range(16): a(f"v_mul_f32 v{16+u}, v{16+u}, v48")
    for t in range(8): a(f"v_cvt_pk_bf16_f32 v{32+t}, v{16+2*t}, v{17+2*t}")
    V(DV)
    stamp(4)
    a(f"s_and_b32 s61, {WAVE}, 1"); a("s_lshl_b32 s61, s61, 4"); a(f"s_lshl_b32 s62, {KVH}, 5"); a("s_add_u32 s61, s61, s62")
    a("v_lshrrev_b32 v6, 4, v1"); a("v_and_b32 v7, 15, v1")
    a(f"s_lshl_b32 s62, {KVH}, 15"); a(f"s_add_u32 s76, s62, {OBUF}")
    a(f"s_lshl_b32 s62, {SP}, 13"); a(f"s_and_b32 s63, {WAVE}, 1"); a("s_lshl_b32 s63, s63, 12"); a("s_add_u32 s62, s62, s63"); a("s_add_u32 s62, s62, s76")
    a("v_lshl_add_u32 v24, v1, 4, s62")
    a(f"s_lshr_b32 s62, {RR}, 4"); a("s_lshl_b32 s62, s62, 12"); a(f"s_lshl_b32 s63, {WAVE}, 10"); a("s_add_u32 s62, s62, s63")
    a(f"s_and_b32 s63, {RR}, 15"); a("s_lshl_b32 s63, s63, 4"); a("s_add_u32 s62, s62, s63"); a("s_add_u32 s62, s62, s76")
    a("v_lshlrev_b32 v8, 13, v6"); a("v_bfe_u32 v7, v1, 2, 2"); a("v_lshl_add_u32 v8, v7, 8, v8")
    a("v_and_b32 v7, 3, v1"); a("v_lshl_add_u32 v8, v7, 2, v8"); a("v_add_u32 v8, s62, v8")
    a("s_lshl_b32 s62, s61, 7"); a(f"s_lshl_b32 s63, {SP}, 4"); a("s_add_u32 s62, s62, s63"); a(f"s_add_u32 s62, s62, {MLBUF}")
    a("v_lshl_add_u32 v30, v6, 9, s62")
    a(f"s_lshl_b32 s62, {KVH}, 12"); a(f"s_add_u32 s62, s62, {MLBUF+64}"); a("v_and_b32 v29, 31, v1"); a("v_lshl_add_u32 v29, v29, 7, s62")
    a(f"s_and_b32 s61, {WAVE}, 1"); a("s_lshl_b32 s61, s61, 15"); a(f"s_lshl_b32 s62, {BB}, 16"); a("s_add_u32 s61, s61, s62")
    a(f"s_lshr_b32 s62, {WAVE}, 1"); a("s_lshl_b32 s62, s62, 12"); a("s_add_u32 s61, s61, s62")
    if pfull:
        a("s_lshl_b32 s62, s78, 7"); a("s_add_u32 s61, s61, s62"); a(f"s_add_u32 s61, s61, {PBUF}")
        a("v_lshlrev_b32 v25, 13, v6"); a("v_and_b32 v7, 15, v1"); a("v_lshl_add_u32 v25, v7, 3, v25"); a("v_add_u32 v25, s61, v25")
        if pswz:
            a("v_bfe_u32 v7, v25, 12, 4"); a("v_lshlrev_b32 v7, 8, v7"); a("v_xor_b32 v25, v25, v7")
        a("s_lshr_b32 s61, s77, 1"); a("s_lshl_b32 s61, s61, 12"); a(f"s_and_b32 s62, {SP}, 1"); a("s_lshl_b32 s62, s62, 6"); a("s_add_u32 s61, s61, s62"); a(f"s_add_u32 s61, s61, {PBUF}")
        a("v_lshrrev_b32 v26, 2, v1"); a("v_lshlrev_b32 v26, 7, v26"); a("v_and_b32 v7, 3, v1"); a("v_lshl_add_u32 v26, v7, 4, v26"); a("v_add_u32 v26, s61, v26")
    else:
        a("s_lshl_b32 s62, s78, 6"); a("s_add_u32 s61, s61, s62"); a(f"s_add_u32 s61, s61, {PBUF}")
        a("v_lshlrev_b32 v25, 13, v6"); a("v_bfe_u32 v7, v1, 3, 1"); a("v_lshl_add_u32 v25, v7, 11, v25")
        a("v_and_b32 v7, 7, v1"); a("v_lshl_add_u32 v25, v7, 3, v25"); a("v_add_u32 v25, s61, v25")
        if pswz:
            a("v_bfe_u32 v7, v25, 11, 4"); a("v_lshlrev_b32 v7, 7, v7"); a("v_xor_b32 v25, v25, v7")
        a("s_lshl_b32 s61, s77, 11"); a(f"s_add_u32 s61, s61, {PBUF}"); a("v_lshl_add_u32 v26, v1, 4, s61")
    a(f"s_lshl_b32 s61, {WAVE}, 11"); a(f"s_add_u32 s61, s61, {L_RED}"); a("v_lshl_add_u32 v27, v1, 2, s61")
    a(f"s_lshl_b32 s61, {WAVE}, 9"); a(f"s_add_u32 s61, s61, {L_RED}"); a("v_lshl_add_u32 v28, v1, 2, s61")
    a(f"s_lshl_b32 s61, {KVH}, 15"); a(f"s_lshl_b32 s62, {BB}, 9"); a("s_add_u32 s61, s61, s62"); a(f"s_add_u32 s61, s61, {FBUF}")
    a("v_bfe_u32 v31, v1, 2, 2"); a("v_lshlrev_b32 v31, 12, v31"); a("v_lshl_add_u32 v31, v12, 3, v31"); a("v_add_u32 v31, s61, v31")
    a(f"s_lshl_b32 s61, {BB}, 10"); a(f"s_lshl_b32 s62, {KVH}, 7"); a("s_add_u32 s61, s61, s62"); a("v_lshl_add_u32 v12, v12, 1, s61")
    a(f"s_and_b32 s75, {TAG}, 0x3ff")
    V(DV)

    def mlgather(nm):
        for r in range(4):
            a(f"buffer_load_dwordx4 v[{80+4*r}:{83+4*r}], v30, {WS}, 0 offen offset:{r*128} sc1", name=f"{nm}{r}")
        a(f"buffer_load_dwordx2 v[20:21], v29, {WS}, 0 offen sc1", name=f"{nm}4")
    def fgather(nm):
        a(f"s_movk_i32 s61, {4*4096}")
        a(f"buffer_load_dwordx2 v[16:17], v31, {WS}, 0 offen sc1", name=nm+"0")
        a("s_and_b32 exec_lo, exec_lo, 0x0fff0fff"); a("s_and_b32 exec_hi, exec_hi, 0x0fff0fff")
        a(f"s_cbranch_execz L_fg_skip{nm}")
        a(f"buffer_load_dwordx2 v[18:19], v31, {WS}, s61 offen sc1", name=nm+"1")
        a.label(f"L_fg_skip{nm}")
        a("s_mov_b64 exec, -1")
    PB = 192
    def poll1(nm):
        for s in range(4):
            a(f"buffer_load_dwordx4 v[{PB+4*s}:{PB+3+4*s}], v24, {WS}, 0 offen offset:{s*1024} sc1", name=f"{nm}{s}")
    def flgather(nm):
        a(f"buffer_load_dwordx2 v[20:21], v7, {WS}, 0 offen sc1", name=nm+"0")
    def ml_check():
        a.wait_vm("ML4")
        a.label("L_ml_chk")
        tagcheck([81 + 2*i for i in range(8)] + [21], "v14")
        retry("L_ml", mlgather, flush=True)
        a(f"s_mov_b32 {REM}, 0")
        if local:
            a(f"v_cmp_ne_u32 vcc, {XCC}, v20")
            a("s_cbranch_vccz L_samedie")
            a.cond = "rem"
            a(f"s_mov_b32 {REM}, 1")
            a("s_waitcnt vmcnt(0)"); a("buffer_wbl2 sc1"); a("s_waitcnt vmcnt(0)")
            a("s_lshl_b32 s61, s77, 4"); a(f"s_lshl_b32 s62, {WAVE}, 2"); a("s_add_u32 s61, s61, s62"); a(f"s_add_u32 s61, s61, {FLBUF}")
            a("v_mov_b32 v7, s61"); a(f"v_mov_b32 v14, {TAG}")
            a("s_mov_b64 exec, 1")
            a(f"buffer_store_dword v14, v7, {WS}, 0 offen sc1")
            a("s_mov_b64 exec, -1")
            a(f"s_lshl_b32 s61, {KVH}, 9"); a(f"s_add_u32 s61, s61, {FLBUF}"); a("v_lshl_add_u32 v7, v1, 3, s61")
            flgather("FL")
            a("s_waitcnt vmcnt(0)")
            a.label("L_fl_chk")
            tagcheck([20, 21], "v14")
            retry("L_fl", flgather)
            a.cond = None
            a.label("L_samedie")
        a("v_max3_f32 v14, v80, v84, v88"); a("v_max_f32 v14, v14, v92")
        for r in range(4): a(f"v_sub_f32 v{80+4*r}, v{80+4*r}, v14")
        for r in range(4): a(f"v_exp_f32 v{80+4*r}, v{80+4*r}")
        a("v_mul_f32 v14, v80, v82")
        for r in range(1, 4): a(f"v_fmac_f32 v14, v{80+4*r}, v{82+4*r}")
        a("v_rcp_f32 v14, v14")
        a("v_mov_b32 v42, 0xfffffc00")
        for r in range(4): a(f"v_mul_f32 v{80+4*r}, v{80+4*r}, v14")
    gathered = 0
    for tau in range(8):
        vb = 96 + (tau % 5)*32
        for w in range(4):
            needi = 8*tau + 4 + w
            while nv < 64 and nv <= needi + (DV if nv < EV else DE) and (nv - 40) < 8*tau:
                V(DV if nv < EV else DE)
                if nv == MLG:
                    gathered = 1
                    assert tau >= 4
                    a(f"s_cmp_eq_u32 {WAVE}, 3"); a("s_cbranch_scc0 L_fg_done")
                    a.cond = "F"
                    a("v_mov_b32 v18, 0"); a(f"v_mov_b32 v19, {TAG}")
                    fgather("FG")
                    gate_loads()
                    if warm:
                        a(f"buffer_load_dwordx4 v[216:219], v26, {WS}, 0 offen " + ("sc1" if warm == 1 else "sc1 nt"))
                        a(f"buffer_load_dwordx4 v[220:223], v26, {WS}, 0 offen offset:{2048 if pfull else 1024} " + ("sc1" if warm == 1 else "sc1 nt"))
                    a.cond = None
                    a.label("L_fg_done")
                    mlgather("ML")
            if nv == 64 and gathered == 1:
                gathered = 2
                assert tau >= 5
                if wolate: wo_dma()
                ml_check()
            if prepoll and tau == 7 and w == 0:
                assert gathered == 2
                poll1("P0")
            if w == 0:
                for x in range(4):
                    a(f"v_mov_b32_dpp v{44+x}, v{32+tau} quad_perm:[{x},{x},{x},{x}] row_mask:0xf bank_mask:0xf")
            a.wait_vm(f"V{needi}")
            if tau == 7 and w == 3: stamp(5)
            ra = vb + 4*w; rb = vb + 4*(4 + w)
            def perm(m):
                a(f"v_perm_b32 v{48+4*m+w}, v{rb+(m>>1)}, v{ra+(m>>1)}, s{70+(m&1)}")
            def mf(m):
                a(f"v_mfma_f32_16x16x32_bf16 a[{32+4*m}:{35+4*m}], v[44:47], v[{48+4*m}:{51+4*m}], " + ("0" if tau == 0 else f"a[{32+4*m}:{35+4*m}]"))
            if w < 3:
                for m in range(8): perm(m)
            else:
                perm(0); perm(1); perm(2)
                for m in range(8):
                    mf(m)
                    if m + 3 < 8: perm(m + 3)
    assert nv == 64 and gathered == 2
    def sentinel():
        a(f"v_max3_u32 v14, v{PB}, v{PB+1}, v{PB+2}")
        for i in range(6): a(f"v_max3_u32 v14, v14, v{PB+3+2*i}, v{PB+4+2*i}")
        a(f"v_max_u32 v14, v14, v{PB+15}")
        a("v_cmp_eq_u32 vcc, -1, v14")
    for m in range(0, 8, 2):
        a(f"ds_write2st64_b32 v27, a{32+4*m}, a{36+4*m} offset0:{m} offset1:{m+1}")
    a("s_waitcnt lgkmcnt(0)")
    a("s_barrier")
    for w in range(4): a(f"ds_read2st64_b32 v[{48+2*w}:{49+2*w}], v28 offset0:{w*8} offset1:{w*8+1}")
    a(f"s_cmp_eq_u32 {REM}, 0")
    a("s_waitcnt lgkmcnt(0)")
    a("v_add_f32 v48, v48, v50"); a("v_add_f32 v49, v49, v51"); a("v_add_f32 v52, v52, v54"); a("v_add_f32 v53, v53, v55")
    a("v_add_f32 v48, v48, v52"); a("v_add_f32 v49, v49, v53")
    a("v_cvt_pk_bf16_f32 v48, v48, v49"); a("v_min_u32 v48, -2, v48")
    if local:
        a("s_cbranch_scc0 L_st_far")
        a(f"buffer_store_dword v48, v8, {WS}, 0 offen")
        a.label("L_st_done")
    else:
        a(f"buffer_store_dword v48, v8, {WS}, 0 offen sc1")
    stamp(6)
    poll1("P1")
    if wolate:
        a("s_waitcnt vmcnt(5)")
        a("s_barrier")
        wo_frags()
    a("s_waitcnt vmcnt(0) lgkmcnt(0)")
    stamp(3)
    def p1_mfma():
        for s in range(4):
            for ct in range(2):
                acc = 64 + 4*ct; r = 64 + (ct*4 + s)*4
                a(f"v_mfma_f32_16x16x32_bf16 v[{acc}:{acc+3}], v[{PB+4*s}:{PB+3+4*s}], a[{r}:{r+3}], " + ("0" if s == 0 else f"v[{acc}:{acc+3}]"))
    a.label("L_p1_chk")
    if spec: p1_mfma()
    sentinel()
    retry("L_p1", poll1, sleep=True)
    if fine: stamp(1)
    if not spec: p1_mfma()
    a("v_mul_f32 v40, v64, v80"); a("v_mul_f32 v41, v68, v80")
    for r in range(1, 4):
        a(f"v_fmac_f32 v40, v{64+r}, v{80+4*r}"); a(f"v_fmac_f32 v41, v{68+r}, v{80+4*r}")
    a("v_and_or_b32 v40, v40, v42, s75"); a("v_and_or_b32 v41, v41, v42, s75")
    if sbar and not x4: a("s_barrier")
    if x4:
        a("v_mov_b32_dpp v42, v40 quad_perm:[1,1,3,3] row_mask:0xf bank_mask:0xf")
        a("v_mov_b32_dpp v43, v41 quad_perm:[1,1,3,3] row_mask:0xf bank_mask:0xf")
        a("s_mov_b32 exec_lo, 0x55555555"); a("s_mov_b32 exec_hi, 0x55555555")
        if sbar: a("s_barrier")
        a(f"buffer_store_dwordx4 v[40:43], v25, {WS}, 0 offen sc1")
        a("s_mov_b64 exec, -1")
    else:
        a(f"buffer_store_dwordx2 v[40:41], v25, {WS}, 0 offen sc1")
    stamp(7)
    if fbar and not sbar: a("s_barrier")
    a(f"s_cmp_eq_u32 {WAVE}, 3"); a("s_cbranch_scc0 L_fin")
    a.cond = "F"
    def poll2(nm, base=96):
        for s in range(2):
            a(f"buffer_load_dwordx4 v[{base+4*s}:{base+3+4*s}], v26, {WS}, 0 offen offset:{s*(2048 if pfull else 1024)} sc1", name=f"{nm}{s}")
    if not ackf: poll2("P2")
    gate()
    a.label("L_f_chk")
    tagcheck([17, 19], "v14")
    retry("L_f", fgather)
    a("v_add_f32 v16, v16, v18")
    a("v_add_f32_dpp v16, v16, v16 row_ror:4 row_mask:0xf bank_mask:0xf")
    a("v_add_f32_dpp v16, v16, v16 row_ror:8 row_mask:0xf bank_mask:0xf")
    bf16r("v16", "v16"); a("v_add_f32 v16, v16, v11"); bf16r("v16", "v16"); a("v_mul_f32 v16, v16, v10"); bf16r("v16", "v16")
    if ackf:
        a("s_waitcnt vmcnt(0)")
        poll2("P2")
    if not pipe:
        a("s_waitcnt vmcnt(0)")
        if fine: stamp(4)
        a.label("L_p2_chk")
        tagcheck([96 + i for i in range(8)], "v14", mask="0x3ff")
        retry("L_p2", poll2)
    else:
        a("s_nop 15"); a("s_nop 7")
        poll2("P3", 104)
        a.label("L_p2_chk")
        a("s_waitcnt vmcnt(2)")
        tagcheck([96 + i for i in range(8)], "v14", mask="0x3ff")
        a("s_cbranch_vccz L_p2_ok")
        a("s_mov_b64 exec, vcc"); poll2("R2"); a("s_mov_b64 exec, -1")
        a("s_waitcnt vmcnt(2)")
        tagcheck([104 + i for i in range(8)], "v14", mask="0x3ff")
        a("s_cbranch_vccz L_p2_okb")
        a("s_mov_b64 exec, vcc"); poll2("R3", 104); a("s_mov_b64 exec, -1")
        a(f"s_cmp_eq_u32 {SPIN}, 0"); a("s_cbranch_scc1 L_p2_okb")
        a(f"s_sub_u32 {SPIN}, {SPIN}, 1")
        a("s_branch L_p2_chk")
        a.label("L_p2_okb")
        for i in range(4): a(f"v_add_f32 v{112+i}, v{104+i}, v{108+i}")
        a("s_branch L_p2_sum")
        a.label("L_p2_ok")
    for i in range(4): a(f"v_add_f32 v{112+i}, v{96+i}, v{100+i}")
    a.label("L_p2_sum")
    a("v_permlane16_swap_b32 v112, v113"); a("v_permlane16_swap_b32 v114, v115")
    a("v_add_f32 v112, v112, v113"); a("v_add_f32 v114, v114, v115")
    a("v_permlane32_swap_b32 v112, v114"); a("v_add_f32 v112, v112, v114")
    a("v_add_f32_dpp v112, v112, v112 row_ror:4 row_mask:0xf bank_mask:0xf")
    a("v_add_f32_dpp v112, v112, v112 row_ror:8 row_mask:0xf bank_mask:0xf")
    bf16r("v112", "v112"); a("v_mul_f32 v112, v112, v9"); bf16r("v112", "v112"); a("v_add_f32 v112, v112, v16")
    a("v_cvt_pk_bf16_f32 v112, v112, v112")
    a("s_mov_b32 exec_lo, 0x000f000f"); a("s_mov_b32 exec_hi, 0x000f000f")
    a("global_store_short v12, v112, s[26:27]")
    a("s_cmp_eq_u32 s2, 0"); a("s_cbranch_scc0 L_noep")
    a("s_mov_b64 exec, 1")
    a(f"v_mov_b32 v113, {TAG}"); a("v_mov_b32 v114, 0")
    a(f"buffer_store_dword v113, v114, {WS}, 0 offen sc1")
    a.label("L_noep")
    a("s_mov_b64 exec, -1")
    a.cond = None
    a.label("L_fin")
    if hold:
        if holdwg >= 0: a(f"s_cmp_eq_u32 s2, {holdwg}"); a("s_cbranch_scc0 L_end")
        a.label("L_hold")
        a("s_memrealtime s[98:99]"); a("s_waitcnt lgkmcnt(0)"); a("s_sub_u32 s98, s98, s96"); a(f"s_cmp_lt_u32 s98, {hold}"); a("s_cbranch_scc1 L_hold")
    if stamps:
        stamp(8)
        a("s_waitcnt vmcnt(0)")
        stamp(9)
        a("s_waitcnt lgkmcnt(0)")
        for i in range(10): a(f"v_mov_b32 v{96+i}, s{80+2*i}")
        a("s_getreg_b32 s61, hwreg(HW_REG_HW_ID)"); a("s_lshl_b32 s61, s61, 4"); a(f"s_or_b32 s61, s61, {XCC}")
        a(f"v_mov_b32 v{96+10}, s61"); a(f"v_mov_b32 v{96+11}, {SPIN}")
        a(f"s_lshl_b32 s61, s2, 2"); a(f"s_add_u32 s61, s61, {WAVE}"); a("s_lshl_b32 s61, s61, 6"); a(f"s_add_u32 s61, s61, {STAMP}")
        a("v_mov_b32 v5, s61"); a("s_mov_b64 exec, 1")
        for i in range(3): a(f"buffer_store_dwordx4 v[{96+4*i}:{99+4*i}], v5, {WS}, 0 offen offset:{16*i}")
        if dbg:
            srd(40, "s28", "s29", 256)
            a("v_not_b32 v110, v96"); a("v_mov_b32 v5, 0")
            a("buffer_atomic_umax v110, v5, s[40:43], 0 offen")
            for i in range(10): a(f"buffer_atomic_umax v{96+i}, v5, s[40:43], 0 offen offset:{4+4*i}")
    a.label("L_end")
    a("s_endpgm")
    if local:
        a.label("L_st_far")
        a(f"buffer_store_dword v48, v8, {WS}, 0 offen sc1")
        a("s_branch L_st_done")
    a.raw('.section .rodata,"a"'); a.raw(".p2align 6"); a.raw(f".amdhsa_kernel {NAME}")
    a.raw("  .amdhsa_next_free_vgpr 512"); a.raw("  .amdhsa_next_free_sgpr 102"); a.raw("  .amdhsa_accum_offset 256")
    a.raw("  .amdhsa_group_segment_fixed_size 0"); a.raw("  .amdhsa_kernarg_size 112"); a.raw("  .amdhsa_user_sgpr_count 2")
    a.raw("  .amdhsa_user_sgpr_kernarg_segment_ptr 1"); a.raw("  .amdhsa_system_sgpr_workgroup_id_x 1"); a.raw(".end_amdhsa_kernel")
    return a.text()

def parse(args):
    kw = {}
    for x in args:
        k, v = x.split("=")
        kw[k] = int(v) if v.lstrip('-').isdigit() else (v.replace("+", " ") if v not in ("True", "False") else v == "True")
    return kw
if __name__ == "__main__":
    import build
    out = sys.argv[1]
    open(out, "w").write(gen(**parse(sys.argv[2:])))
    print(build.build(out))
```

```python
import sys, struct
from asmlib import Asm

NAME = "gated_mix__gqa_block_cached__dense_activation_gelu__decode_kernel"
HEADER = open("gated_mix__gqa_block_cached__dense_activation_gelu__decode.s.ref").read().split("; Override launch")[0]

def f2u(x): return struct.unpack('<I', struct.pack('<f', x))[0]
LOG2E = 1.4426950408889634

QBUF, HBUF, MLBUF, FLBUF, OBUF, FBUF, PBUF, STAMP = 0x10000, 0x30000, 0x40000, 0x48000, 0x50000, 0x90000, 0x100000, 0x400000
L_W, L_H, L_WO, L_X, L_ML, L_RED, L_END = 0, 0x8000, 0x10000, 0x14000, 0x16100, 0x17000, 0x19000

def gen(DK=6, DV=6, DE=16, EV=40, kv="nt", wf="nt", stamps=False, wolate=True, MLG=50, spin=0x100000,
        scramble=False, local=True, prepoll=True, flushn=255, slp=0, slpn=8, fbar=True, dbg=False, touch=0, codepf=0, hold=0, holdwg=-1, qx=0, WSP=0, DN=5, DW=6, DS=9, DH=7, spec=False, x4=True, pswz=False, fine=False, warm=0, pfull=True, sbar=True, ackf=True, pipe=True, NC=0, cpf0=True, mlloc=True, pipe1=False):
    a = Asm()
    a.raw(HEADER + f"; @launch grid=(256,1,1) block=(256,1,1) lds={L_END}")
    a.raw('.amdgcn_target "amdgcn-amd-amdhsa--gfx950"')
    a.raw(".text"); a.raw(f".globl {NAME}"); a.raw(".p2align 8"); a.raw(f".type {NAME},@function"); a.raw(f"{NAME}:")
    LS = "" if local else "sc1"
    def stamp(i):
        if stamps: a(f"s_memrealtime s[{80+2*i}:{81+2*i}]")
    WAVE, KVH, BB, SP, RR, TAG, SOFF, PITCH, XCC, REM = "s52", "s53", "s54", "s55", "s57", "s58", "s59", "s60", "s56", "s74"
    SPIN = "s73"
    def srd(base, lo, hi, size):
        a(f"s_mov_b32 s{base}, {lo}"); a(f"s_mov_b32 s{base+1}, {hi}"); a(f"s_mov_b32 s{base+2}, {size}"); a(f"s_mov_b32 s{base+3}, 0x20000")
    def bf16r(dst, src):
        a(f"v_cvt_pk_bf16_f32 {dst}, {src}, {src}"); a(f"v_and_b32 {dst}, 0xffff0000, {dst}")
    WS = "s[48:51]"
    def reduce_rows(v, t, op):
        a(f"v_mov_b32 {t}, {v}"); a(f"v_permlane16_swap_b32 {v}, {t}"); a(f"{op} {v}, {v}, {t}")
        a(f"v_mov_b32 {t}, {v}"); a(f"v_permlane32_swap_b32 {v}, {t}"); a(f"{op} {v}, {v}, {t}")
    def reduce_quad(v, op):
        a(f"{op}_dpp {v}, {v}, {v} quad_perm:[1,0,3,2] row_mask:0xf bank_mask:0xf")
        a(f"{op}_dpp {v}, {v}, {v} quad_perm:[2,3,0,1] row_mask:0xf bank_mask:0xf")
    def tagcheck(regs, t, mask=None):
        a(f"v_xor_b32 {t}, {TAG}, v{regs[0]}")
        for r in regs[1:]:
            a(f"v_bitop3_b32 {t}, {t}, v{r}, {TAG} bitop3:0xf6")
        if mask: a(f"v_and_b32 {t}, {mask}, {t}")
        a(f"v_cmp_ne_u32 vcc, 0, {t}")
    def retry(lbl, reissue, flush=False, sleep=False):
        a(f"s_cbranch_vccz {lbl}_ok")
        a(f"s_cmp_eq_u32 {SPIN}, 0"); a(f"s_cbranch_scc1 {lbl}_ok")
        a(f"s_sub_u32 {SPIN}, {SPIN}, 1")
        if flush and local:
            a(f"s_and_b32 s61, {SPIN}, {flushn}"); a(f"s_cbranch_scc1 {lbl}_nf")
            a("s_waitcnt vmcnt(0)"); a("buffer_wbl2 sc1")
            a.label(f"{lbl}_nf")
        if sleep and slp:
            a("s_bcnt1_i32_b64 s61, vcc"); a(f"s_cmp_le_u32 s61, {slpn}"); a(f"s_cbranch_scc1 {lbl}_ns"); a(f"s_sleep {slp}"); a.label(f"{lbl}_ns")
        old = a.cond; a.cond = "retry" + lbl
        a("s_mov_b64 exec, vcc")
        reissue("R" + lbl)
        a("s_mov_b64 exec, -1")
        a.cond = old
        a("s_waitcnt vmcnt(0)")
        a(f"s_branch {lbl}_chk")
        a.label(f"{lbl}_ok")

    stamp(0)
    if hold: a("s_memrealtime s[96:97]")
    a("s_cmp_ge_u32 s2, 256"); a("s_cbranch_scc1 L_end")
    a("s_load_dwordx16 s[4:19], s[0:1], 0")
    a("s_load_dwordx8 s[20:27], s[0:1], 64")
    a("s_load_dwordx4 s[28:31], s[0:1], 96")
    if scramble:
        a("s_lshr_b32 s3, s2, 3"); a("s_and_b32 s3, s3, 7"); a("s_xor_b32 s2, s2, s3")
    a("v_lshrrev_b32 v4, 6, v0"); a("v_and_b32 v1, 63, v0"); a(f"v_readfirstlane_b32 {WAVE}, v4")
    a(f"s_and_b32 {KVH}, s2, 7"); a(f"s_lshr_b32 {BB}, s2, 5"); a(f"s_bfe_u32 {SP}, s2, 0x20003"); a(f"s_lshr_b32 {RR}, s2, 3")
    a(f"s_lshl_b32 s61, {BB}, 5"); a(f"s_lshl_b32 s62, {KVH}, 2"); a("s_add_u32 s61, s61, s62"); a(f"s_add_u32 s61, s61, {SP}")
    a("s_lshl_b32 s61, s61, 18"); a(f"s_lshl_b32 s62, {WAVE}, 12"); a("s_add_u32 s61, s61, s62")
    a("v_and_b32 v2, 3, v1"); a("v_lshlrev_b32 v2, 4, v2")
    a("v_bfe_u32 v4, v1, 2, 2"); a("v_lshl_add_u32 v2, v4, 8, v2")
    a("v_lshrrev_b32 v4, 4, v1"); a("v_lshl_add_u32 v2, v4, 6, v2")
    a("v_add_u32 v2, s61, v2")
    a("v_lshl_add_u32 v3, v1, 4, s61")
    a(f"s_mov_b32 {SOFF}, 0")
    a("s_mov_b32 s34, 0x4000000"); a("s_mov_b32 s35, 0x20000")

    cur = {"soff": 0}
    kvn = []
    def kvload(which, n, D):
        off = (n >> 2) * 16384; imm = (n & 3) * 1024
        if off != cur["soff"]:
            a(f"s_mov_b32 {SOFF}, {off}"); cur["soff"] = off
        if D and len(kvn) >= D: a.wait_vm(kvn[-D])
        if which == "K":
            a(f"buffer_load_dwordx4 a[{4*n}:{4*n+3}], v2, s[32:35], {SOFF} offen offset:{imm} {kv}", name=f"K{n}")
        else:
            r = 96 + (n % 40) * 4
            a(f"buffer_load_dwordx4 v[{r}:{r+3}], v3, s[36:39], {SOFF} offen offset:{imm} {kv}", name=f"V{n}")
        kvn.append(f"{which}{n}")

    def consts():
        a(f"s_load_dword {TAG}, s[30:31], 0")
        if touch:
            a(f"s_lshl_b32 s61, {BB}, 5"); a(f"s_lshl_b32 s62, {KVH}, 2"); a("s_add_u32 s61, s61, s62"); a(f"s_add_u32 s61, s61, {SP}"); a("s_lshl_b32 s61, s61, 18")
            a("s_load_dword s100, s[8:9], s61")
            a(f"s_lshl_b32 s61, {KVH}, 19")
            a("s_load_dword s100, s[12:13], s61")
            a("s_load_dword s100, s[26:27], 0")
            if touch > 1:
                a("s_load_dword s100, s[22:23], 0"); a("s_load_dword s100, s[24:25], 0"); a("s_load_dword s100, s[4:5], 0"); a("s_load_dword s100, s[20:21], 0")
        if codepf:
            a("s_getpc_b64 s[62:63]")
            lab = f"L_pc{len(a.lines)}"
            a.label(lab)
            a(f"s_sub_u32 s62, s62, {lab}-{NAME}"); a("s_subb_u32 s63, s63, 0")
            a(f"s_lshl_b32 s61, {RR}, 10"); a(f"s_lshl_b32 s100, {WAVE}, 8"); a("s_add_u32 s61, s61, s100"); a(f"s_min_u32 s61, s61, L_end-{NAME}-252")
            a("v_lshl_add_u32 v5, v1, 2, s61")
            a("global_load_dword v9, v5, s[62:63]")
        srd(36, "s8", "s9", "0x4000000")
        srd(48, "s30", "s31", "0x10000000")
        a("s_mov_b32 s64, 0x22222222"); a("s_mov_b32 s65, 0x22222222")
        a("s_mov_b32 s66, 0x44444444"); a("s_mov_b32 s67, 0x44444444")
        a("s_mov_b32 s68, 0x88888888"); a("s_mov_b32 s69, 0x88888888")
        a("s_mov_b32 s70, 0x05040100"); a("s_mov_b32 s71, 0x07060302")
        a(f"s_mov_b32 s72, {hex(f2u(128**-0.5*LOG2E))}")
        a(f"s_mov_b32 {SPIN}, {spin}")
        a(f"s_getreg_b32 {XCC}, hwreg(HW_REG_XCC_ID, 0, 4)")
        srd(44, "s12", "s13", 4096*512*2)
        a(f"s_lshl_b32 s77, {KVH}, 5"); a(f"s_add_u32 s77, s77, {RR}")
        a("s_lshl_b32 s61, s77, 10"); a(f"s_lshl_b32 s62, {WAVE}, 8"); a("s_add_u32 s61, s61, s62"); a(f"s_add_u32 s61, s61, {OBUF}")
        a("v_lshl_add_u32 v8, v1, 2, s61")
        a(f"s_lshl_b32 s61, {KVH}, 2"); a(f"s_add_u32 s78, s61, {SP}")
        a(f"s_lshr_b32 s61, {SP}, 1"); a("s_lshl_b32 s61, s61, 5"); a(f"s_and_b32 s62, {SP}, 1"); a("s_lshl_b32 s62, s62, 3"); a("s_add_u32 s79, s61, s62")
        a("v_and_b32 v12, 3, v1"); a("v_lshlrev_b32 v12, 1, v12"); a("v_and_b32 v5, 16, v1"); a("v_add_u32 v12, v12, v5")
        a("v_lshrrev_b32 v5, 5, v1"); a("v_add3_u32 v12, v12, v5, s79")
        a("v_mov_b32 v5, -1")
        a(f"buffer_store_dword v5, v8, {WS}, 0 offen {LS}", name="CLR")
    def get_tag():
        a("s_waitcnt lgkmcnt(0)")
        a(f"s_add_u32 {TAG}, {TAG}, 1")
    def wo_dma():
        a("v_lshrrev_b32 v5, 3, v1"); a(f"s_lshl_b32 s61, {WAVE}, 5"); a("v_add_u32 v5, s61, v5"); a("v_lshlrev_b32 v5, 10, v5")
        a(f"s_and_b32 s61, {WAVE}, 1"); a("s_lshl_b32 s61, s61, 2")
        a("v_and_b32 v6, 7, v1"); a("v_xor_b32 v6, s61, v6"); a("v_lshl_add_u32 v5, v6, 4, v5"); a("v_xor_b32 v6, 32, v5")
        a("s_lshl_b32 s61, s78, 17"); a(f"s_lshl_b32 s62, {BB}, 7"); a("s_add_u32 s61, s61, s62")
        a(f"s_lshl_b32 s63, {WAVE}, 12")
        for i in range(4):
            a(f"s_add_u32 m0, s63, {L_WO + i*1024}")
            a(f"buffer_load_dwordx4 v{5+(i&1)}, s[44:47], s61 offen {wf} lds", name=f"WO{i}")
            if i < 3: a("s_add_u32 s61, s61, 8192")
    def gate_loads():
        a(f"s_lshl_b32 s61, {BB}, 10"); a("v_lshl_add_u32 v5, v1, 4, s61")
        a("global_load_dwordx4 v[208:211], v5, s[4:5]", name="GX")
        a("v_lshlrev_b32 v5, 4, v1")
        a("global_load_dwordx4 v[212:215], v5, s[24:25]", name="GW")
        a("v_and_b32 v5, 0x3ff, v12")
        a("global_load_ushort v11, v5, s[22:23]", name="GB2")
    def gate():
        for i in range(4):
            a(f"v_lshlrev_b32 v{48+2*i}, 16, v{208+i}"); a(f"v_and_b32 v{49+2*i}, 0xffff0000, v{208+i}")
            a(f"v_lshlrev_b32 v{56+2*i}, 16, v{212+i}"); a(f"v_and_b32 v{57+2*i}, 0xffff0000, v{212+i}")
        for i in range(8): a(f"v_mul_f32 v{48+i}, v{48+i}, v{56+i}")
        for i in range(4): a(f"v_cvt_pk_bf16_f32 v{56+i}, v{48+2*i}, v{49+2*i}")
        for i in range(4):
            a(f"v_lshlrev_b32 v{48+2*i}, 16, v{56+i}"); a(f"v_and_b32 v{49+2*i}, 0xffff0000, v{56+i}")
        for i in range(4): a(f"v_add_f32 v{48+i}, v{48+i}, v{52+i}")
        a("v_add_f32 v48, v48, v50"); a("v_add_f32 v49, v49, v51"); a("v_add_f32 v48, v48, v49")
        reduce_quad("v48", "v_add_f32")
        a("v_add_f32_dpp v48, v48, v48 row_ror:4 row_mask:0xf bank_mask:0xf")
        a("v_add_f32_dpp v48, v48, v48 row_ror:8 row_mask:0xf bank_mask:0xf")
        reduce_rows("v48", "v49", "v_add_f32")
        bf16r("v48", "v48")
        a(f"v_mul_f32 v48, {hex(f2u(-LOG2E))}, v48"); a("v_exp_f32 v48, v48"); a("v_add_f32 v48, 1.0, v48"); a("v_rcp_f32 v48, v48")
        bf16r("v9", "v48")
        a("v_sub_f32 v10, 1.0, v9"); bf16r("v10", "v10")
        a("v_lshlrev_b32 v11, 16, v11")
    def qgather(nm):
        a(f"buffer_load_dwordx4 v[80:83], v15, {WS}, 0 offen sc1", name=nm+"0")
        a(f"buffer_load_dwordx4 v[84:87], v15, {WS}, 0 offen offset:16 sc1", name=nm+"1")
    def qaddr():
        a(f"s_lshl_b32 s61, {BB}, 14"); a(f"s_lshl_b32 s62, {KVH}, 11"); a("s_add_u32 s61, s61, s62"); a(f"s_add_u32 s61, s61, {QBUF}")
        a("v_bfe_u32 v15, v1, 2, 2"); a("v_lshlrev_b32 v15, 9, v15")
        a("v_lshrrev_b32 v6, 4, v1"); a("v_lshl_add_u32 v15, v6, 7, v15")
        a("v_and_b32 v7, 3, v1"); a("v_lshl_add_u32 v15, v7, 5, v15"); a("v_add_u32 v15, s61, v15")

    NV0 = 16
    def kphase(p0):
        D = {"Q": DK, "W": DW or DK, "N": DN or DK, "S": DS or DK, "H": DH or DK}[p0]
        p = "Q" if p0 in "SH" else p0
        st = {"n": NC}
        def K(upto=None, cnt=None):
            end = upto if upto is not None else st["n"] + cnt
            while st["n"] < end:
                n = st["n"]
                if n < 64: kvload("K", n, D)
                else: kvload("V", n - 64, D)
                st["n"] += 1
        a("s_waitcnt lgkmcnt(0)") if p != "Q" else None
        if p == "Q":
            a(f"s_lshl_b32 s61, {KVH}, 9"); a(f"s_xor_b32 s62, {RR}, {qx}"); a("s_lshl_b32 s62, s62, 5"); a("s_add_u32 s61, s61, s62"); a(f"s_lshl_b32 s62, {RR}, 5")
            a(f"s_mul_i32 s63, {KVH}, 224"); a("s_add_u32 s62, s62, s63"); a(f"s_sub_u32 s62, s62, {23*32}")
            a(f"s_cmp_lt_u32 {RR}, 16"); a("s_cselect_b32 s76, s61, s62")
            a(f"s_movk_i32 s61, 8192"); a(f"s_movk_i32 s62, 3584"); a(f"s_cselect_b32 {PITCH}, s61, s62")
            a(f"s_mov_b32 s61, {512*4096*2}"); a(f"s_mov_b32 s62, {512*1792*2}"); a("s_cselect_b32 s42, s61, s62"); a("s_mov_b32 s43, 0x20000")
            a("v_lshrrev_b32 v4, 2, v1"); a(f"s_lshl_b32 s61, {WAVE}, 7"); a("v_add_u32 v4, s61, v4")
            a(f"v_mul_u32_u24 v5, {PITCH}, v4")
            a("v_and_b32 v4, 3, v1"); a("v_lshrrev_b32 v6, 5, v1"); a("v_lshlrev_b32 v6, 1, v6"); a("v_xor_b32 v4, v4, v6")
            a("s_lshl_b32 s61, s76, 1"); a("v_add_u32 v5, s61, v5"); a("v_lshl_add_u32 v5, v4, 4, v5")
            a(f"s_lshl_b32 s62, {PITCH}, 4"); a(f"s_lshl_b32 s63, {WAVE}, 13"); a("s_mov_b32 s61, 0")
            a(f"s_cmp_lt_u32 {RR}, 16")
            a("s_waitcnt lgkmcnt(0)")
            a("s_cselect_b32 s40, s10, s16"); a("s_cselect_b32 s41, s11, s17")
            a("s_mov_b32 s32, s6"); a("s_mov_b32 s33, s7")
            for n in range(8):
                K(cnt=WSP)
                a(f"s_add_u32 m0, s63, {L_W + n*1024}")
                a(f"buffer_load_dwordx4 v5, s[40:43], s61 offen {wf} lds", name=f"W{n}")
                if WSP: kvn.append(f"W{n}")
                if n < 7: a("s_add_u32 s61, s61, s62")
            a(f"s_lshl_b32 s61, {WAVE}, 11"); a("v_lshl_add_u32 v7, v1, 4, s61")
            a(f"s_mul_i32 s61, {WAVE}, 2080"); a(f"s_add_u32 m0, s61, {L_X}")
            a("global_load_lds_dwordx4 v7, s[4:5]", name="X0")
            a(f"s_add_u32 m0, s61, {L_X+16}")
            a("global_load_lds_dwordx4 v7, s[4:5] offset:1024", name="X1")
        else:
            a("s_mov_b32 s32, s6"); a("s_mov_b32 s33, s7")
        if p == "Q":
            K(upto=max(NC, 6))
            a("s_min_u32 s61, s76, 1760"); a(f"s_and_b32 s62, {WAVE}, 1"); a("s_lshl_b32 s62, s62, 4"); a("s_add_u32 s61, s61, s62"); a("s_lshl_b32 s61, s61, 1")
            a("v_lshrrev_b32 v7, 4, v1"); a("v_lshl_add_u32 v4, v7, 3, s61")
            a("global_load_dwordx2 v[14:15], v4, s[18:19]", name="B1")
            consts()
            a("v_lshlrev_b32 v4, 3, v7"); a("v_bfe_u32 v5, v1, 2, 2"); a("v_add_u32 v4, v4, v5"); a("v_lshlrev_b32 v4, 6, v4")
            a("v_and_b32 v5, 3, v1"); a("v_lshl_add_u32 v4, v5, 3, v4")
            a(f"v_xor_b32 v5, {WAVE}, v7"); a("v_and_b32 v5, 1, v5"); a("v_lshl_add_u32 v4, v5, 5, v4")
            a("v_and_b32 v5, 7, v1"); a("v_mul_u32_u24 v6, 1040, v5"); a("v_lshl_add_u32 v6, v7, 4, v6")
            a(f"v_add_u32 v6, {L_X}, v6")
            a(f"s_cmp_lt_u32 {RR}, 16")
            a(f"s_movk_i32 s61, 16384"); a("s_movk_i32 s62, 7168"); a("s_cselect_b32 s61, s61, s62")
            a(f"s_mov_b32 s62, {QBUF}"); a(f"s_mov_b32 s63, {HBUF}"); a("s_cselect_b32 s62, s62, s63")
            a("s_lshl_b32 s63, s76, 2"); a("s_add_u32 s62, s62, s63"); a(f"s_lshl_b32 s63, {WAVE}, 6"); a("s_add_u32 s62, s62, s63")
            a("v_mul_u32_u24 v13, s61, v5"); a("v_lshl_add_u32 v13, v7, 4, v13"); a("v_add_u32 v13, s62, v13")
            K(upto=NC + D + 2)
            get_tag()
            a.wait_vm("X1")
            a("s_barrier")
            K(cnt=2)
            a(f"s_cmp_lt_u32 {WAVE}, 2"); a("s_cbranch_scc0 L_qh_done"+p0)
            a.cond = "QH"
            for s in range(16):
                a(f"ds_read_b64_tr_b16 v[{96+4*s}:{97+4*s}], v4 offset:{L_W + s*2048}")
                a(f"ds_read_b64_tr_b16 v[{98+4*s}:{99+4*s}], v4 offset:{L_W + s*2048 + 256}")
                a(f"ds_read_b128 v[{160+4*s}:{163+4*s}], v6 offset:{s*64}")
            a("s_waitcnt lgkmcnt(0)")
            for s in range(16):
                acc = 224 + 4*(s & 1)
                a(f"v_mfma_f32_16x16x32_bf16 v[{acc}:{acc+3}], v[{96+4*s}:{99+4*s}], v[{160+4*s}:{163+4*s}], " + ("0" if s < 2 else f"v[{acc}:{acc+3}]"))
            a(f"v_mov_b32 v237, {TAG}"); a(f"v_mov_b32 v239, {TAG}")
            for r in range(4): a(f"v_add_f32 v{224+r}, v{224+r}, v{228+r}")
            a(f"s_cmp_lt_u32 {RR}, 16"); a("s_cbranch_scc0 L_h_epi"+p0)
            a("v_cvt_pk_bf16_f32 v236, v224, v225"); a("v_cvt_pk_bf16_f32 v238, v226, v227")
            a("s_mov_b32 exec_lo, 0x00ff00ff"); a("s_mov_b32 exec_hi, 0x00ff00ff")
            a(f"buffer_store_dwordx4 v[236:239], v13, {WS}, 0 offen {LS}")
            a("s_branch L_qh_pub"+p0)
            a.label("L_h_epi"+p0)
            a.wait_vm("B1")
            a("v_lshlrev_b32 v232, 16, v14"); a("v_and_b32 v233, 0xffff0000, v14"); a("v_lshlrev_b32 v234, 16, v15"); a("v_and_b32 v235, 0xffff0000, v15")
            k1 = -2.0 * (2.0/3.141592653589793)**0.5 * LOG2E
            for r in range(4): bf16r(f"v{224+r}", f"v{224+r}")
            for r in range(4): a(f"v_add_f32 v{224+r}, v{224+r}, v{232+r}")
            for r in range(4): bf16r(f"v{224+r}", f"v{224+r}")
            for r in range(4): a(f"v_mul_f32 v{232+r}, v{224+r}, v{224+r}")
            a(f"v_mov_b32 v236, {hex(f2u(k1))}")
            for r in range(4): a(f"v_fmamk_f32 v{232+r}, v{232+r}, {hex(f2u(k1*0.044715))}, v236")
            for r in range(4): a(f"v_mul_f32 v{232+r}, v{232+r}, v{224+r}")
            for r in range(4): a(f"v_exp_f32 v{232+r}, v{232+r}")
            for r in range(4): a(f"v_add_f32 v{232+r}, 1.0, v{232+r}")
            for r in range(4): a(f"v_rcp_f32 v{232+r}, v{232+r}")
            for r in range(4): a(f"v_mul_f32 v{224+r}, v{224+r}, v{232+r}")
            a("v_cvt_pk_bf16_f32 v236, v224, v225"); a("v_cvt_pk_bf16_f32 v238, v226, v227")
            a("s_mov_b32 exec_lo, 0x00ff00ff"); a("s_mov_b32 exec_hi, 0x00ff00ff")
            a(f"buffer_store_dwordx4 v[236:239], v13, {WS}, 0 offen sc1")
            a.label("L_qh_pub"+p0)
            a("s_mov_b64 exec, -1")
            a.cond = None
            a.label("L_qh_done"+p0)
            stamp(1)
            K(upto=max(24, st["n"]))
        else:
            K(upto=D)
            consts()
            stamp(1)
            K(upto=18)
            if p == "W":
                srd(40, "s20", "s21", 1792*512*2)
                a("v_lshrrev_b32 v5, 3, v1"); a(f"s_lshl_b32 s61, {WAVE}, 6"); a("v_add_u32 v5, s61, v5"); a("v_lshlrev_b32 v5, 10, v5")
                a("v_and_b32 v4, 7, v1"); a("v_bfe_u32 v6, v1, 4, 1"); a("v_lshlrev_b32 v6, 1, v6"); a("v_xor_b32 v4, v4, v6")
                a("v_lshl_add_u32 v5, v4, 4, v5"); a("v_xor_b32 v6, 64, v5")
                a(f"s_sub_u32 s76, {RR}, 16")
                a("s_lshl_b32 s61, s76, 18"); a(f"s_lshl_b32 s62, {KVH}, 7"); a("s_add_u32 s61, s61, s62")
                a(f"s_lshl_b32 s63, {WAVE}, 13")
                for i in range(8):
                    a(f"s_add_u32 m0, s63, {L_W + i*1024}")
                    a(f"buffer_load_dwordx4 v{5+(i&1)}, s[40:43], s61 offen {wf} lds", name=f"W2_{i}")
                    if i < 7: a("s_add_u32 s61, s61, 8192")
                a("v_lshrrev_b32 v4, 4, v1"); a("v_lshlrev_b32 v4, 3, v4"); a("v_bfe_u32 v5, v1, 2, 2"); a("v_add_u32 v4, v4, v5")
                a("v_lshlrev_b32 v4, 7, v4"); a("v_and_b32 v5, 3, v1"); a("v_lshl_add_u32 v4, v5, 3, v4")
                a("v_bfe_u32 v5, v1, 3, 2"); a(f"v_xor_b32 v5, {WAVE}, v5"); a("v_lshl_add_u32 v4, v5, 5, v4")
            K(upto=24)
            get_tag()
        if not wolate: wo_dma()
        K(upto=max(44, st["n"]))
        qaddr()
        if p == "W":
            K(upto=56)
            a("s_lshl_b32 s61, s76, 10"); a(f"s_lshl_b32 s62, {WAVE}, 8"); a("s_add_u32 s61, s61, s62"); a(f"s_add_u32 s61, s61, {HBUF}")
            a("v_and_b32 v7, 7, v1"); a("v_mul_u32_u24 v7, 7168, v7"); a("v_lshl_add_u32 v7, v6, 5, v7"); a("v_add_u32 v7, s61, v7")
            def hgather(nm):
                for i in range(4):
                    a(f"buffer_load_dwordx4 v[{16+4*i}:{19+4*i}], v7, {WS}, 0 offen offset:{(i>>1)*128 + (i&1)*16} sc1", name=f"{nm}{i}")
            hgather("HG")
            a(f"s_lshl_b32 s61, {WAVE}, 11"); a(f"s_add_u32 s61, s61, {L_H}"); a("v_lshl_add_u32 v5, v1, 4, s61")
            a("v_lshlrev_b32 v13, 4, v1")
        K(upto=64)
        qgather("QG")
        if p == "W":
            K(upto=56 + D)
            a.wait_vm("HG3")
            a.label("L_h_chk")
            tagcheck([17 + 2*i for i in range(8)], "v14")
            retry("L_h", hgather)
            for i in range(1, 8): a(f"v_mov_b32 v{16+i}, v{16+2*i}")
            a("ds_write_b128 v5, v[16:19]"); a("ds_write_b128 v5, v[20:23] offset:1024")
            K(cnt=1)
            a("s_waitcnt lgkmcnt(0)")
            a("s_barrier")
            for s in range(8):
                a(f"ds_read_b64_tr_b16 v[{192+4*s}:{193+4*s}], v4 offset:{L_W + s*4096}")
                a(f"ds_read_b64_tr_b16 v[{194+4*s}:{195+4*s}], v4 offset:{L_W + s*4096 + 512}")
                a(f"ds_read_b128 v[{224+4*s}:{227+4*s}], v13 offset:{L_H + s*1024}")
            a(f"s_lshl_b32 s61, {KVH}, 15"); a("s_lshl_b32 s62, s76, 12"); a("s_add_u32 s61, s61, s62")
            a(f"s_lshl_b32 s62, {WAVE}, 7"); a("s_add_u32 s61, s61, s62"); a(f"s_add_u32 s61, s61, {FBUF}")
            a("v_and_b32 v7, 7, v1"); a("v_lshlrev_b32 v7, 9, v7"); a("v_lshl_add_u32 v7, v6, 5, v7"); a("v_add_u32 v7, s61, v7")
            for r in range(4): a(f"v_mov_b32 v{89+2*r}, {TAG}")
            K(cnt=1)
            a("s_waitcnt lgkmcnt(0)")
            for s in range(8):
                a(f"v_mfma_f32_16x16x32_bf16 v[16:19], v[{192+4*s}:{195+4*s}], v[{224+4*s}:{227+4*s}], " + ("0" if s == 0 else "v[16:19]"))
            K(cnt=1)
            for r in range(4): a(f"v_mov_b32 v{88+2*r}, v{16+r}")
            a("s_mov_b32 exec_lo, 0x00ff00ff"); a("s_mov_b32 exec_hi, 0x00ff00ff")
            a(f"buffer_store_dwordx4 v[88:91], v7, {WS}, 0 offen {LS}")
            a(f"buffer_store_dwordx4 v[92:95], v7, {WS}, 0 offen offset:16 {LS}")
            a("s_mov_b64 exec, -1")
        K(upto=64 + NV0)

    if cpf0:
        a("s_getpc_b64 s[62:63]")
        a.label("L_pc0")
        a(f"s_sub_u32 s62, s62, L_pc0-{NAME}"); a("s_subb_u32 s63, s63, 0")
        a(f"s_lshl_b32 s61, {RR}, 10"); a(f"s_lshl_b32 s100, {WAVE}, 8"); a("s_add_u32 s61, s61, s100"); a(f"s_min_u32 s61, s61, L_end-{NAME}-252")
        a("v_lshl_add_u32 v5, v1, 2, s61")
        a("global_load_dword v9, v5, s[62:63]", name="CPF")
    if NC:
        a("s_waitcnt lgkmcnt(0)")
        a("s_mov_b32 s32, s6"); a("s_mov_b32 s33, s7")
        for n in range(NC): kvload("K", n, 0)
    vm0 = list(a.vm); kv0 = list(kvn); so0 = cur["soff"]
    a(f"s_cmp_ge_u32 {RR}, 30"); a("s_cbranch_scc1 L_pathN")
    a(f"s_sub_u32 s61, {RR}, 16"); a("s_cmp_lt_u32 s61, 7"); a("s_cbranch_scc1 L_pathW")
    if DS: a(f"s_and_b32 s61, {RR}, 30"); a("s_cmp_eq_u32 s61, 6"); a("s_cbranch_scc1 L_pathS")
    if DH: a(f"s_cmp_ge_u32 {RR}, 23"); a("s_cbranch_scc1 L_pathH")
    for p in ["Q"] + (["S"] if DS else []) + (["H"] if DH else []) + ["W", "N"]:
        if p != "Q": a.label(f"L_path{p}")
        a.vm = list(vm0); kvn[:] = kv0; cur["soff"] = so0
        kphase(p)
        if p != "N": a("s_branch L_join")
    a.label("L_join")
    a.vm = [("QG0", True, None), ("QG1", True, None)] + [(f"V{i}", True, None) for i in range(NV0)]
    nv = NV0
    def V(D):
        nonlocal nv
        kvload("V", nv, D); nv += 1

    a.wait_vm("QG1")
    stamp(2)
    a.label("L_q_chk")
    tagcheck([81, 83, 85, 87], "v14")
    retry("L_q", qgather, flush=True)
    for i in range(4): a(f"v_mov_b32 v{40+i}, v{80+2*i}")
    def qk_mfma(u):
        for t in range(4):
            d = 48 + (u & 1)*16 + 4*t; k = 4*(4*u + t)
            a(f"v_mfma_f32_16x16x32_bf16 v[{d}:{d+3}], a[{k}:{k+3}], v[40:43], 0")
    def qk_red(u):
        base = 48 + (u & 1)*16
        for step in range(1, 4):
            for t in range(4):
                c = (t + step) & 3
                d = base + 4*t
                dst = f"v{16+u}" if (t == 0 and step == 3) else f"v{d+t}"
                a(f"v_add_f32_dpp {dst}, v{d+c}, v{d+t} quad_perm:[{c},{c},{c},{c}] row_mask:0xf bank_mask:0xf")
        for t in range(1, 4):
            a(f"v_cndmask_b32 v{16+u}, v{16+u}, v{base+5*t}, s[{62+2*t}:{63+2*t}]")
    qk_mfma(0)
    for u in range(16):
        if u < 15: qk_mfma(u+1)
        qk_red(u)
        if u % 2 == 1: V(DV)
    a("v_max3_f32 v48, v16, v17, v18")
    for i in range(6): a(f"v_max3_f32 v48, v48, v{19+2*i}, v{20+2*i}")
    a("v_max_f32 v48, v48, v31")
    reduce_quad("v48", "v_max_f32")
    reduce_rows("v48", "v49", "v_max_f32")
    a("v_mul_f32 v48, s72, v48")
    for u in range(16): a(f"v_fma_f32 v{16+u}, v{16+u}, s72, -v48")
    V(DV)
    for u in range(16): a(f"v_exp_f32 v{16+u}, v{16+u}")
    for i in range(8): a(f"v_add_f32 v{52+i}, v{16+2*i}, v{17+2*i}")
    for i in range(4): a(f"v_add_f32 v{52+i}, v{52+i}, v{56+i}")
    a("v_add_f32 v52, v52, v54"); a("v_add_f32 v53, v53, v55"); a("v_add_f32 v49, v52, v53")
    V(DV)
    reduce_quad("v49", "v_add_f32")
    reduce_rows("v49", "v50", "v_add_f32")
    a(f"s_lshl_b32 s61, {WAVE}, 9"); a(f"s_add_u32 s61, s61, {L_ML}")
    a("v_lshl_add_u32 v50, v1, 3, s61"); a("v_lshlrev_b32 v51, 3, v1"); a(f"v_add_u32 v51, {L_ML}, v51")
    a("ds_write_b64 v50, v[48:49]")
    V(DV)
    a("s_waitcnt lgkmcnt(0)")
    a("s_barrier")
    for w in range(4): a(f"ds_read_b64 v[{52+2*w}:{53+2*w}], v51 offset:{w*512}")
    a("v_lshrrev_b32 v4, 4, v1"); a("v_lshlrev_b32 v4, 5, v4"); a("v_bfe_u32 v6, v1, 3, 1"); a("v_lshl_add_u32 v4, v6, 3, v4")
    a("v_bfe_u32 v6, v1, 2, 1"); a("v_add_u32 v4, v4, v6"); a("v_lshlrev_b32 v4, 7, v4")
    a("v_and_b32 v6, 3, v1"); a("v_lshl_add_u32 v4, v6, 3, v4")
    a(f"s_and_b32 s61, {WAVE}, 2"); a("v_bfe_u32 v6, v1, 3, 2"); a("v_xor_b32 v6, s61, v6"); a("v_lshl_add_u32 v4, v6, 5, v4")
    a(f"v_add_u32 v4, {L_WO}, v4"); a("v_xor_b32 v13, 32, v4")
    def wo_frags():
        for s in range(4):
            for ct in range(2):
                r = 64 + (ct*4 + s)*4
                ad = "v4" if ct == 0 else "v13"
                a(f"ds_read_b64_tr_b16 a[{r}:{r+1}], {ad} offset:{s*256}")
                a(f"ds_read_b64_tr_b16 a[{r+2}:{r+3}], {ad} offset:{s*256 + 2048}")
    V(DV)
    a("s_waitcnt lgkmcnt(0)")
    if not wolate: wo_frags()
    a("v_max3_f32 v60, v52, v54, v56"); a("v_max_f32 v60, v60, v58")
    a("v_sub_f32 v48, v48, v60"); a("v_exp_f32 v48, v48")
    for w in range(4): a(f"v_sub_f32 v{52+2*w}, v{52+2*w}, v60")
    for w in range(4): a(f"v_exp_f32 v{52+2*w}, v{52+2*w}")
    a("v_mul_f32 v62, v52, v53")
    for w in range(1, 4): a(f"v_fmac_f32 v62, v{52+2*w}, v{53+2*w}")
    a(f"s_cmp_eq_u32 {WAVE}, 2"); a("s_cbranch_scc0 L_ml_done")
    a.cond = "W0"
    a(f"v_mov_b32 v61, {TAG}"); a(f"v_mov_b32 v63, {TAG}")
    a(f"v_writelane_b32 v60, {XCC}, 16")
    a("s_lshl_b32 s61, s77, 7"); a(f"s_add_u32 s61, s61, {MLBUF}"); a("v_lshl_add_u32 v5, v1, 2, s61")
    a("s_mov_b64 exec, 0x11111")
    a(f"buffer_store_dwordx4 v[60:63], v5, {WS}, 0 offen " + (LS if mlloc else "sc1"))
    a("s_mov_b64 exec, -1")
    a.cond = None
    a.label("L_ml_done")
    for u in range(16): a(f"v_mul_f32 v{16+u}, v{16+u}, v48")
    for t in range(8): a(f"v_cvt_pk_bf16_f32 v{32+t}, v{16+2*t}, v{17+2*t}")
    V(DV)
    stamp(4)
    a(f"s_and_b32 s61, {WAVE}, 1"); a("s_lshl_b32 s61, s61, 4"); a(f"s_lshl_b32 s62, {KVH}, 5"); a("s_add_u32 s61, s61, s62")
    a("v_lshrrev_b32 v6, 4, v1"); a("v_and_b32 v7, 15, v1")
    a(f"s_lshl_b32 s62, {KVH}, 15"); a(f"s_add_u32 s76, s62, {OBUF}")
    a(f"s_lshl_b32 s62, {SP}, 13"); a(f"s_and_b32 s63, {WAVE}, 1"); a("s_lshl_b32 s63, s63, 12"); a("s_add_u32 s62, s62, s63"); a("s_add_u32 s62, s62, s76")
    a("v_lshl_add_u32 v24, v1, 4, s62")
    a(f"s_lshr_b32 s62, {RR}, 4"); a("s_lshl_b32 s62, s62, 12"); a(f"s_lshl_b32 s63, {WAVE}, 10"); a("s_add_u32 s62, s62, s63")
    a(f"s_and_b32 s63, {RR}, 15"); a("s_lshl_b32 s63, s63, 4"); a("s_add_u32 s62, s62, s63"); a("s_add_u32 s62, s62, s76")
    a("v_lshlrev_b32 v8, 13, v6"); a("v_bfe_u32 v7, v1, 2, 2"); a("v_lshl_add_u32 v8, v7, 8, v8")
    a("v_and_b32 v7, 3, v1"); a("v_lshl_add_u32 v8, v7, 2, v8"); a("v_add_u32 v8, s62, v8")
    a("s_lshl_b32 s62, s61, 7"); a(f"s_lshl_b32 s63, {SP}, 4"); a("s_add_u32 s62, s62, s63"); a(f"s_add_u32 s62, s62, {MLBUF}")
    a("v_lshl_add_u32 v30, v6, 9, s62")
    a(f"s_lshl_b32 s62, {KVH}, 12"); a(f"s_add_u32 s62, s62, {MLBUF+64}"); a("v_and_b32 v29, 31, v1"); a("v_lshl_add_u32 v29, v29, 7, s62")
    a(f"s_and_b32 s61, {WAVE}, 1"); a("s_lshl_b32 s61, s61, 15"); a(f"s_lshl_b32 s62, {BB}, 16"); a("s_add_u32 s61, s61, s62")
    a(f"s_lshr_b32 s62, {WAVE}, 1"); a("s_lshl_b32 s62, s62, 12"); a("s_add_u32 s61, s61, s62")
    if pfull:
        a("s_lshl_b32 s62, s78, 7"); a("s_add_u32 s61, s61, s62"); a(f"s_add_u32 s61, s61, {PBUF}")
        a("v_lshlrev_b32 v25, 13, v6"); a("v_and_b32 v7, 15, v1"); a("v_lshl_add_u32 v25, v7, 3, v25"); a("v_add_u32 v25, s61, v25")
        if pswz:
            a("v_bfe_u32 v7, v25, 12, 4"); a("v_lshlrev_b32 v7, 8, v7"); a("v_xor_b32 v25, v25, v7")
        a("s_lshr_b32 s61, s77, 1"); a("s_lshl_b32 s61, s61, 12"); a(f"s_and_b32 s62, {SP}, 1"); a("s_lshl_b32 s62, s62, 6"); a("s_add_u32 s61, s61, s62"); a(f"s_add_u32 s61, s61, {PBUF}")
        a("v_lshrrev_b32 v26, 2, v1"); a("v_lshlrev_b32 v26, 7, v26"); a("v_and_b32 v7, 3, v1"); a("v_lshl_add_u32 v26, v7, 4, v26"); a("v_add_u32 v26, s61, v26")
    else:
        a("s_lshl_b32 s62, s78, 6"); a("s_add_u32 s61, s61, s62"); a(f"s_add_u32 s61, s61, {PBUF}")
        a("v_lshlrev_b32 v25, 13, v6"); a("v_bfe_u32 v7, v1, 3, 1"); a("v_lshl_add_u32 v25, v7, 11, v25")
        a("v_and_b32 v7, 7, v1"); a("v_lshl_add_u32 v25, v7, 3, v25"); a("v_add_u32 v25, s61, v25")
        if pswz:
            a("v_bfe_u32 v7, v25, 11, 4"); a("v_lshlrev_b32 v7, 7, v7"); a("v_xor_b32 v25, v25, v7")
        a("s_lshl_b32 s61, s77, 11"); a(f"s_add_u32 s61, s61, {PBUF}"); a("v_lshl_add_u32 v26, v1, 4, s61")
    a(f"s_lshl_b32 s61, {WAVE}, 11"); a(f"s_add_u32 s61, s61, {L_RED}"); a("v_lshl_add_u32 v27, v1, 2, s61")
    a(f"s_lshl_b32 s61, {WAVE}, 9"); a(f"s_add_u32 s61, s61, {L_RED}"); a("v_lshl_add_u32 v28, v1, 2, s61")
    a(f"s_lshl_b32 s61, {KVH}, 15"); a(f"s_lshl_b32 s62, {BB}, 9"); a("s_add_u32 s61, s61, s62"); a(f"s_add_u32 s61, s61, {FBUF}")
    a("v_bfe_u32 v31, v1, 2, 2"); a("v_lshlrev_b32 v31, 12, v31"); a("v_lshl_add_u32 v31, v12, 3, v31"); a("v_add_u32 v31, s61, v31")
    a(f"s_lshl_b32 s61, {BB}, 10"); a(f"s_lshl_b32 s62, {KVH}, 7"); a("s_add_u32 s61, s61, s62"); a("v_lshl_add_u32 v12, v12, 1, s61")
    a(f"s_and_b32 s75, {TAG}, 0x3ff")
    V(DV)

    def mlgather(nm):
        for r in range(4):
            a(f"buffer_load_dwordx4 v[{80+4*r}:{83+4*r}], v30, {WS}, 0 offen offset:{r*128} sc1", name=f"{nm}{r}")
        a(f"buffer_load_dwordx2 v[20:21], v29, {WS}, 0 offen sc1", name=f"{nm}4")
    def fgather(nm):
        a(f"s_movk_i32 s61, {4*4096}")
        a(f"buffer_load_dwordx2 v[16:17], v31, {WS}, 0 offen sc1", name=nm+"0")
        a("s_and_b32 exec_lo, exec_lo, 0x0fff0fff"); a("s_and_b32 exec_hi, exec_hi, 0x0fff0fff")
        a(f"s_cbranch_execz L_fg_skip{nm}")
        a(f"buffer_load_dwordx2 v[18:19], v31, {WS}, s61 offen sc1", name=nm+"1")
        a.label(f"L_fg_skip{nm}")
        a("s_mov_b64 exec, -1")
    PB = 192
    def poll1(nm, PB=PB):
        for s in range(4):
            a(f"buffer_load_dwordx4 v[{PB+4*s}:{PB+3+4*s}], v24, {WS}, 0 offen offset:{s*1024} sc1", name=f"{nm}{s}")
    def flgather(nm):
        a(f"buffer_load_dwordx2 v[20:21], v7, {WS}, 0 offen sc1", name=nm+"0")
    def ml_check():
        a.wait_vm("ML4")
        a.label("L_ml_chk")
        tagcheck([81 + 2*i for i in range(8)] + [21], "v14")
        retry("L_ml", mlgather, flush=True)
        a(f"s_mov_b32 {REM}, 0")
        if local:
            a(f"v_cmp_ne_u32 vcc, {XCC}, v20")
            a("s_cbranch_vccz L_samedie")
            a.cond = "rem"
            a(f"s_mov_b32 {REM}, 1")
            a("s_waitcnt vmcnt(0)"); a("buffer_wbl2 sc1"); a("s_waitcnt vmcnt(0)")
            a("s_lshl_b32 s61, s77, 4"); a(f"s_lshl_b32 s62, {WAVE}, 2"); a("s_add_u32 s61, s61, s62"); a(f"s_add_u32 s61, s61, {FLBUF}")
            a("v_mov_b32 v7, s61"); a(f"v_mov_b32 v14, {TAG}")
            a("s_mov_b64 exec, 1")
            a(f"buffer_store_dword v14, v7, {WS}, 0 offen sc1")
            a("s_mov_b64 exec, -1")
            a(f"s_lshl_b32 s61, {KVH}, 9"); a(f"s_add_u32 s61, s61, {FLBUF}"); a("v_lshl_add_u32 v7, v1, 3, s61")
            flgather("FL")
            a("s_waitcnt vmcnt(0)")
            a.label("L_fl_chk")
            tagcheck([20, 21], "v14")
            retry("L_fl", flgather)
            a.cond = None
            a.label("L_samedie")
        a("v_max3_f32 v14, v80, v84, v88"); a("v_max_f32 v14, v14, v92")
        for r in range(4): a(f"v_sub_f32 v{80+4*r}, v{80+4*r}, v14")
        for r in range(4): a(f"v_exp_f32 v{80+4*r}, v{80+4*r}")
        a("v_mul_f32 v14, v80, v82")
        for r in range(1, 4): a(f"v_fmac_f32 v14, v{80+4*r}, v{82+4*r}")
        a("v_rcp_f32 v14, v14")
        a("v_mov_b32 v42, 0xfffffc00")
        for r in range(4): a(f"v_mul_f32 v{80+4*r}, v{80+4*r}, v14")
    gathered = 0
    for tau in range(8):
        vb = 96 + (tau % 5)*32
        for w in range(4):
            needi = 8*tau + 4 + w
            while nv < 64 and nv <= needi + (DV if nv < EV else DE) and (nv - 40) < 8*tau:
                V(DV if nv < EV else DE)
                if nv == MLG:
                    gathered = 1
                    assert tau >= 4
                    a(f"s_cmp_eq_u32 {WAVE}, 3"); a("s_cbranch_scc0 L_fg_done")
                    a.cond = "F"
                    a("v_mov_b32 v18, 0"); a(f"v_mov_b32 v19, {TAG}")
                    fgather("FG")
                    gate_loads()
                    if warm:
                        a(f"buffer_load_dwordx4 v[216:219], v26, {WS}, 0 offen " + ("sc1" if warm == 1 else "sc1 nt"))
                        a(f"buffer_load_dwordx4 v[220:223], v26, {WS}, 0 offen offset:{2048 if pfull else 1024} " + ("sc1" if warm == 1 else "sc1 nt"))
                    a.cond = None
                    a.label("L_fg_done")
                    mlgather("ML")
            if nv == 64 and gathered == 1:
                gathered = 2
                assert tau >= 5
                if wolate: wo_dma()
                ml_check()
            if prepoll and tau == 7 and w == 0:
                assert gathered == 2
                poll1("P0")
            if w == 0:
                for x in range(4):
                    a(f"v_mov_b32_dpp v{44+x}, v{32+tau} quad_perm:[{x},{x},{x},{x}] row_mask:0xf bank_mask:0xf")
            a.wait_vm(f"V{needi}")
            if tau == 7 and w == 3: stamp(5)
            ra = vb + 4*w; rb = vb + 4*(4 + w)
            def perm(m):
                a(f"v_perm_b32 v{48+4*m+w}, v{rb+(m>>1)}, v{ra+(m>>1)}, s{70+(m&1)}")
            def mf(m):
                a(f"v_mfma_f32_16x16x32_bf16 a[{32+4*m}:{35+4*m}], v[44:47], v[{48+4*m}:{51+4*m}], " + ("0" if tau == 0 else f"a[{32+4*m}:{35+4*m}]"))
            if w < 3:
                for m in range(8): perm(m)
            else:
                perm(0); perm(1); perm(2)
                for m in range(8):
                    mf(m)
                    if m + 3 < 8: perm(m + 3)
    assert nv == 64 and gathered == 2
    def sentinel(PB=PB):
        a(f"v_max3_u32 v14, v{PB}, v{PB+1}, v{PB+2}")
        for i in range(6): a(f"v_max3_u32 v14, v14, v{PB+3+2*i}, v{PB+4+2*i}")
        a(f"v_max_u32 v14, v14, v{PB+15}")
        a("v_cmp_eq_u32 vcc, -1, v14")
    for m in range(0, 8, 2):
        a(f"ds_write2st64_b32 v27, a{32+4*m}, a{36+4*m} offset0:{m} offset1:{m+1}")
    a("s_waitcnt lgkmcnt(0)")
    a("s_barrier")
    for w in range(4): a(f"ds_read2st64_b32 v[{48+2*w}:{49+2*w}], v28 offset0:{w*8} offset1:{w*8+1}")
    a(f"s_cmp_eq_u32 {REM}, 0")
    a("s_waitcnt lgkmcnt(0)")
    a("v_add_f32 v48, v48, v50"); a("v_add_f32 v49, v49, v51"); a("v_add_f32 v52, v52, v54"); a("v_add_f32 v53, v53, v55")
    a("v_add_f32 v48, v48, v52"); a("v_add_f32 v49, v49, v53")
    a("v_cvt_pk_bf16_f32 v48, v48, v49"); a("v_min_u32 v48, -2, v48")
    if local:
        a("s_cbranch_scc0 L_st_far")
        a(f"buffer_store_dword v48, v8, {WS}, 0 offen")
        a.label("L_st_done")
    else:
        a(f"buffer_store_dword v48, v8, {WS}, 0 offen sc1")
    stamp(6)
    poll1("P1")
    if wolate:
        a("s_waitcnt vmcnt(5)")
        a("s_barrier")
        wo_frags()
    def p1_mfma(PB=PB):
        for s in range(4):
            for ct in range(2):
                acc = 64 + 4*ct; r = 64 + (ct*4 + s)*4
                a(f"v_mfma_f32_16x16x32_bf16 v[{acc}:{acc+3}], v[{PB+4*s}:{PB+3+4*s}], a[{r}:{r+3}], " + ("0" if s == 0 else f"v[{acc}:{acc+3}]"))
    if not pipe1:
        a("s_waitcnt vmcnt(0) lgkmcnt(0)")
        stamp(3)
        a.label("L_p1_chk")
        if spec: p1_mfma()
        sentinel()
        retry("L_p1", poll1, sleep=True)
        if fine: stamp(1)
        if not spec: p1_mfma()
    else:
        PC = 224
        poll1("P1b", PC)
        a("s_waitcnt lgkmcnt(0)")
        stamp(3)
        a.label("L_p1_chk")
        a("s_waitcnt vmcnt(4)")
        sentinel()
        a("s_cbranch_vccz L_p1_ok")
        a("s_mov_b64 exec, vcc"); poll1("R1"); a("s_mov_b64 exec, -1")
        a("s_waitcnt vmcnt(4)")
        sentinel(PC)
        a("s_cbranch_vccz L_p1_okb")
        a("s_mov_b64 exec, vcc"); poll1("R1b", PC); a("s_mov_b64 exec, -1")
        a(f"s_cmp_eq_u32 {SPIN}, 0"); a("s_cbranch_scc1 L_p1_okb")
        a(f"s_sub_u32 {SPIN}, {SPIN}, 1")
        a("s_branch L_p1_chk")
        a.label("L_p1_okb")
        if fine: stamp(1)
        p1_mfma(PC)
        a("s_branch L_p1_sum")
        a.label("L_p1_ok")
        if fine: stamp(1)
        p1_mfma()
        a.label("L_p1_sum")
    a("v_mul_f32 v40, v64, v80"); a("v_mul_f32 v41, v68, v80")
    for r in range(1, 4):
        a(f"v_fmac_f32 v40, v{64+r}, v{80+4*r}"); a(f"v_fmac_f32 v41, v{68+r}, v{80+4*r}")
    a("v_and_or_b32 v40, v40, v42, s75"); a("v_and_or_b32 v41, v41, v42, s75")
    if sbar and not x4: a("s_barrier")
    if x4:
        a("v_mov_b32_dpp v42, v40 quad_perm:[1,1,3,3] row_mask:0xf bank_mask:0xf")
        a("v_mov_b32_dpp v43, v41 quad_perm:[1,1,3,3] row_mask:0xf bank_mask:0xf")
        a("s_mov_b32 exec_lo, 0x55555555"); a("s_mov_b32 exec_hi, 0x55555555")
        if sbar: a("s_barrier")
        a(f"buffer_store_dwordx4 v[40:43], v25, {WS}, 0 offen sc1")
        a("s_mov_b64 exec, -1")
    else:
        a(f"buffer_store_dwordx2 v[40:41], v25, {WS}, 0 offen sc1")
    stamp(7)
    if fbar and not sbar: a("s_barrier")
    a(f"s_cmp_eq_u32 {WAVE}, 3"); a("s_cbranch_scc0 L_fin")
    a.cond = "F"
    def poll2(nm, base=96):
        for s in range(2):
            a(f"buffer_load_dwordx4 v[{base+4*s}:{base+3+4*s}], v26, {WS}, 0 offen offset:{s*(2048 if pfull else 1024)} sc1", name=f"{nm}{s}")
    if not ackf: poll2("P2")
    gate()
    a.label("L_f_chk")
    tagcheck([17, 19], "v14")
    retry("L_f", fgather)
    a("v_add_f32 v16, v16, v18")
    a("v_add_f32_dpp v16, v16, v16 row_ror:4 row_mask:0xf bank_mask:0xf")
    a("v_add_f32_dpp v16, v16, v16 row_ror:8 row_mask:0xf bank_mask:0xf")
    bf16r("v16", "v16"); a("v_add_f32 v16, v16, v11"); bf16r("v16", "v16"); a("v_mul_f32 v16, v16, v10"); bf16r("v16", "v16")
    if ackf:
        a("s_waitcnt vmcnt(0)")
        poll2("P2")
    if not pipe:
        a("s_waitcnt vmcnt(0)")
        if fine: stamp(4)
        a.label("L_p2_chk")
        tagcheck([96 + i for i in range(8)], "v14", mask="0x3ff")
        retry("L_p2", poll2)
    else:
        a("s_nop 15"); a("s_nop 7")
        poll2("P3", 104)
        a.label("L_p2_chk")
        a("s_waitcnt vmcnt(2)")
        tagcheck([96 + i for i in range(8)], "v14", mask="0x3ff")
        a("s_cbranch_vccz L_p2_ok")
        a("s_mov_b64 exec, vcc"); poll2("R2"); a("s_mov_b64 exec, -1")
        a("s_waitcnt vmcnt(2)")
        tagcheck([104 + i for i in range(8)], "v14", mask="0x3ff")
        a("s_cbranch_vccz L_p2_okb")
        a("s_mov_b64 exec, vcc"); poll2("R3", 104); a("s_mov_b64 exec, -1")
        a(f"s_cmp_eq_u32 {SPIN}, 0"); a("s_cbranch_scc1 L_p2_okb")
        a(f"s_sub_u32 {SPIN}, {SPIN}, 1")
        a("s_branch L_p2_chk")
        a.label("L_p2_okb")
        for i in range(4): a(f"v_add_f32 v{112+i}, v{104+i}, v{108+i}")
        a("s_branch L_p2_sum")
        a.label("L_p2_ok")
    for i in range(4): a(f"v_add_f32 v{112+i}, v{96+i}, v{100+i}")
    a.label("L_p2_sum")
    a("v_permlane16_swap_b32 v112, v113"); a("v_permlane16_swap_b32 v114, v115")
    a("v_add_f32 v112, v112, v113"); a("v_add_f32 v114, v114, v115")
    a("v_permlane32_swap_b32 v112, v114"); a("v_add_f32 v112, v112, v114")
    a("v_add_f32_dpp v112, v112, v112 row_ror:4 row_mask:0xf bank_mask:0xf")
    a("v_add_f32_dpp v112, v112, v112 row_ror:8 row_mask:0xf bank_mask:0xf")
    bf16r("v112", "v112"); a("v_mul_f32 v112, v112, v9"); bf16r("v112", "v112"); a("v_add_f32 v112, v112, v16")
    a("v_cvt_pk_bf16_f32 v112, v112, v112")
    a("s_mov_b32 exec_lo, 0x000f000f"); a("s_mov_b32 exec_hi, 0x000f000f")
    a("global_store_short v12, v112, s[26:27]")
    a("s_cmp_eq_u32 s2, 0"); a("s_cbranch_scc0 L_noep")
    a("s_mov_b64 exec, 1")
    a(f"v_mov_b32 v113, {TAG}"); a("v_mov_b32 v114, 0")
    a(f"buffer_store_dword v113, v114, {WS}, 0 offen sc1")
    a.label("L_noep")
    a("s_mov_b64 exec, -1")
    a.cond = None
    a.label("L_fin")
    if hold:
        if holdwg >= 0: a(f"s_cmp_eq_u32 s2, {holdwg}"); a("s_cbranch_scc0 L_end")
        a.label("L_hold")
        a("s_memrealtime s[98:99]"); a("s_waitcnt lgkmcnt(0)"); a("s_sub_u32 s98, s98, s96"); a(f"s_cmp_lt_u32 s98, {hold}"); a("s_cbranch_scc1 L_hold")
    if stamps:
        stamp(8)
        a("s_waitcnt vmcnt(0)")
        stamp(9)
        a("s_waitcnt lgkmcnt(0)")
        for i in range(10): a(f"v_mov_b32 v{96+i}, s{80+2*i}")
        a("s_getreg_b32 s61, hwreg(HW_REG_HW_ID)"); a("s_lshl_b32 s61, s61, 4"); a(f"s_or_b32 s61, s61, {XCC}")
        a(f"v_mov_b32 v{96+10}, s61"); a(f"v_mov_b32 v{96+11}, {SPIN}")
        a(f"s_lshl_b32 s61, s2, 2"); a(f"s_add_u32 s61, s61, {WAVE}"); a("s_lshl_b32 s61, s61, 6"); a(f"s_add_u32 s61, s61, {STAMP}")
        a("v_mov_b32 v5, s61"); a("s_mov_b64 exec, 1")
        for i in range(3): a(f"buffer_store_dwordx4 v[{96+4*i}:{99+4*i}], v5, {WS}, 0 offen offset:{16*i}")
        if dbg:
            srd(40, "s28", "s29", 256)
            a("v_not_b32 v110, v96"); a("v_mov_b32 v5, 0")
            a("buffer_atomic_umax v110, v5, s[40:43], 0 offen")
            for i in range(10): a(f"buffer_atomic_umax v{96+i}, v5, s[40:43], 0 offen offset:{4+4*i}")
    a.label("L_end")
    a("s_endpgm")
    if local:
        a.label("L_st_far")
        a(f"buffer_store_dword v48, v8, {WS}, 0 offen sc1")
        a("s_branch L_st_done")
    a.raw('.section .rodata,"a"'); a.raw(".p2align 6"); a.raw(f".amdhsa_kernel {NAME}")
    a.raw("  .amdhsa_next_free_vgpr 512"); a.raw("  .amdhsa_next_free_sgpr 102"); a.raw("  .amdhsa_accum_offset 256")
    a.raw("  .amdhsa_group_segment_fixed_size 0"); a.raw("  .amdhsa_kernarg_size 112"); a.raw("  .amdhsa_user_sgpr_count 2")
    a.raw("  .amdhsa_user_sgpr_kernarg_segment_ptr 1"); a.raw("  .amdhsa_system_sgpr_workgroup_id_x 1"); a.raw(".end_amdhsa_kernel")
    return a.text()

def parse(args):
    kw = {}
    for x in args:
        k, v = x.split("=")
        kw[k] = int(v) if v.lstrip('-').isdigit() else (v.replace("+", " ") if v not in ("True", "False") else v == "True")
    return kw
if __name__ == "__main__":
    import build
    out = sys.argv[1]
    open(out, "w").write(gen(**parse(sys.argv[2:])))
    print(build.build(out))
```

```python
import re

def _regs(tok):
    tok = tok.strip()
    tok = tok.lstrip('-')
    if tok.startswith('abs(') : tok = tok[4:-1]
    if tok.startswith('|'): tok = tok.strip('|')
    m = re.fullmatch(r'([vas])(\d+)', tok)
    if m: return {(m.group(1), int(m.group(2)))}
    m = re.fullmatch(r'([vas])\[(\d+):(\d+)\]', tok)
    if m: return {(m.group(1), i) for i in range(int(m.group(2)), int(m.group(3))+1)}
    if tok in ('vcc', 'vcc_lo', 'vcc_hi'): return {('s', 'vcc')}
    if tok == 'm0': return {('s', 'm0')}
    if tok in ('exec', 'exec_lo', 'exec_hi'): return {('s', 'exec')}
    return set()

TRANS = ('v_exp_', 'v_log_', 'v_rcp_', 'v_rsq_', 'v_sqrt_', 'v_sin_', 'v_cos_')

class Ins:
    def __init__(self, text):
        self.text = text
        t = text.split(';')[0].strip()
        self.op = t.split()[0]
        rest = t[len(self.op):].strip()
        ops = []; cur = ''; depth = 0
        for ch in rest:
            if ch == '[': depth += 1
            if ch == ']': depth -= 1
            if ch == ',' and depth == 0: ops.append(cur); cur = ''
            else: cur += ch
        if cur.strip(): ops.append(cur)
        toks = []
        for o in ops:
            o = o.strip()
            toks.append(o.split()[0] if o else o)
        self.toks = toks
        op = self.op
        self.mfma = op.startswith('v_mfma')
        self.valu = op.startswith('v_') and not self.mfma
        self.salu = op.startswith('s_')
        self.ds = op.startswith('ds_')
        self.vmem = op.startswith(('buffer_', 'global_'))
        self.dpp = '_dpp' in op or 'quad_perm' in t or 'row_' in t
        self.trans = op.startswith(TRANS)
        self.permlane = op.startswith('v_permlane')
        self.readlane = op.startswith(('v_readfirstlane', 'v_readlane'))
        self.ldsdma = self.vmem and (t.endswith(' lds') or ' lds ' in t or 'load_lds' in op)
        R = [_regs(x) for x in toks]
        self.dst = set(); self.src = set()
        allr = set().union(*R) if R else set()
        if self.mfma:
            self.dst = R[0]; self.A = R[1]; self.B = R[2]; self.C = R[3]; self.src = R[1] | R[2] | R[3]
        elif self.valu:
            if self.permlane:
                self.dst = R[0] | R[1]; self.src = R[0] | R[1]
            else:
                self.dst = R[0]; self.src = set().union(*R[1:]) if len(R) > 1 else set()
                if op.startswith(('v_add_co', 'v_sub_co', 'v_addc_co', 'v_subb_co')):
                    self.dst = R[0] | R[1]; self.src = set().union(*R[2:])
                if self.dpp or op.startswith(('v_fmac', 'v_dot2c')): self.src |= R[0]
                if op.startswith('v_cndmask') and len(R) == 3: self.src |= {('s', 'vcc')}
        elif self.ds:
            if op.startswith(('ds_read', 'ds_bpermute', 'ds_permute', 'ds_swizzle')):
                self.dst = R[0]; self.src = set().union(*R[1:])
            else:
                self.src = allr
        elif self.vmem:
            self.store = ('store' in op) or ('atomic' in op)
            if op in ('buffer_wbl2', 'buffer_inv'):
                pass
            elif self.store or self.ldsdma:
                self.src = allr
                if self.store:
                    self.data = R[0] if op.startswith('buffer_') else R[1]
                    self.wide = op.endswith(('x3', 'x4'))
            else:
                self.dst = R[0]; self.src = set().union(*R[1:])
            if self.ldsdma: self.src |= {('s', 'm0')}
        elif self.salu:
            if op.startswith(('s_cmp', 's_cbranch', 's_branch', 's_waitcnt', 's_barrier', 's_nop', 's_sleep', 's_endpgm', 's_setprio', 's_bitcmp')):
                self.src = allr
            else:
                self.dst = R[0] if R else set(); self.src = set().union(*R[1:]) if len(R) > 1 else set()
                if 'saveexec' in op: self.dst |= {('s', 'exec')}
        self.states = 1
        if op == 's_nop': self.states = int(toks[0], 0) + 1

def vg(s): return {r for r in s if r[0] in 'va'}
def sg(s): return {r for r in s if r[0] == 's'}

def need(p, c):
    n = 0
    if p.valu:
        w = vg(p.dst)
        if c.valu and c.dpp and (w & c.src): n = max(n, 2)
        if c.mfma and (w & c.src): n = max(n, 2)
        if c.valu and c.permlane and (w & c.src): n = max(n, 2)
        if c.valu and c.readlane and (w & c.src): n = max(n, 1)
        if p.trans and (c.valu or c.mfma) and (w & c.src): n = max(n, 1)
        ws = sg(p.dst)
        if ws:
            if c.valu and (ws & c.src): n = max(n, 2)
            if c.vmem and (ws & c.src): n = max(n, 5)
            if c.op.startswith('s_cbranch_vcc') and ('s', 'vcc') in ws: n = max(n, 1)
            if c.salu and (ws & c.src): n = max(n, 1)
    if p.mfma:
        D = p.dst
        if c.valu and (D & (c.src | c.dst)): n = max(n, 8)
        if (c.ds or c.vmem) and (D & (c.src | c.dst)): n = max(n, 8)
        if c.mfma:
            if D & (c.A | c.B): n = max(n, 8)
            if (D & c.C) and D != c.C: n = max(n, 6)
            if (D & c.dst) and D != c.C: n = max(n, 6)
        if c.valu and (p.C & c.dst): n = max(n, 3)
    if p.salu and ('s', 'm0') in p.dst and c.vmem and c.ldsdma: n = max(n, 1)
    if p.vmem and getattr(p, 'store', False) and getattr(p, 'wide', False):
        if (p.data & c.dst): n = max(n, 2)
    return n

class Asm:
    def __init__(self):
        self.lines = []
        self.hist = []
        self.snap = {}
        self.vm = []
        self.ctx = set()
        self.cond = None
        self.nops = 0
    def raw(self, s): self.lines.append(s)
    def c(self, s): self.lines.append('    ; ' + s)
    def _age(self, k):
        for h in self.hist: h[1] += k
        self.hist = [h for h in self.hist if h[1] < 12]
    def label(self, name):
        self.lines.append(name + ':')
        for snap in self.snap.get(name, []):
            self.hist += [[i, a] for i, a in snap]
    def __call__(self, text, name=None):
        ins = Ins(text)
        req = 0
        for p, age in self.hist:
            req = max(req, need(p, ins) - age)
        if req > 0:
            self.lines.append(f'    s_nop {req-1}')
            self.nops += 1
            self._age(req)
        self.lines.append('    ' + text)
        self._age(ins.states)
        self.hist.append([ins, 0])
        if ins.op.startswith(('s_cbranch', 's_branch')):
            self.snap.setdefault(ins.toks[0], []).append([(i, a) for i, a in self.hist])
            if ins.op == 's_branch': self.hist = []
        if ins.vmem and ins.op not in ('buffer_wbl2', 'buffer_inv'):
            self.vm.append((name, not getattr(ins, 'store', False), self.cond))
    def younger(self, name, ctx=()):
        idx = max(i for i, v in enumerate(self.vm) if v[0] == name)
        return sum(1 for v in self.vm[idx+1:] if v[1] and (v[2] is None or v[2] in ctx or v[2] == self.cond))
    def wait_vm(self, name, ctx=()):
        n = min(self.younger(name, ctx), 63)
        self(f's_waitcnt vmcnt({n})')
        return n
    def pace_vm(self, name):
        idx = max(i for i, v in enumerate(self.vm) if v[0] == name)
        n = sum(1 for v in self.vm[idx+1:] if (v[2] is None or v[2] == self.cond))
        self(f's_waitcnt vmcnt({min(n, 63)})')
    def text(self): return '\n'.join(self.lines) + '\n'
```

```python
import sys, struct
from asmlib import Asm

NAME = "gated_mix__gqa_block_cached__dense_activation_gelu__decode_kernel"
HEADER = open("gated_mix__gqa_block_cached__dense_activation_gelu__decode.s.ref").read().split("; Override launch")[0]

def f2u(x): return struct.unpack('<I', struct.pack('<f', x))[0]
LOG2E = 1.4426950408889634

QBUF, HBUF, MLBUF, FLBUF, OBUF, FBUF, PBUF, STAMP = 0x10000, 0x30000, 0x40000, 0x48000, 0x50000, 0x90000, 0x100000, 0x400000
L_W, L_H, L_WO, L_X, L_ML, L_RED, L_END = 0, 0x8000, 0x10000, 0x14000, 0x16100, 0x17000, 0x19000

def gen(DK=6, DV=6, DE=16, EV=48, kv="nt", wf="nt", stamps=False, wolate=True, MLG=52, spin=0x100000,
        scramble=False, local=True, prepoll=False, flushn=255, slp=0, slpn=8, fbar=True, dbg=False, touch=0, codepf=0, hold=0, holdwg=-1, qx=0, WSP=0, DN=5, DW=6, DS=9, DH=7, spec=False, x4=True, pswz=False, fine=False, warm=0, pfull=True, sbar=True, ackf=True, pipe=True, NC=0, cpf0=True, mlloc=True, pipe1=False, prod=0, pafter=1, nowo=False, now2=False, wopost=False):
    a = Asm()
    a.raw(HEADER + f"; @launch grid=(256,1,1) block=(256,1,1) lds={L_END}")
    a.raw('.amdgcn_target "amdgcn-amd-amdhsa--gfx950"')
    a.raw(".text"); a.raw(f".globl {NAME}"); a.raw(".p2align 8"); a.raw(f".type {NAME},@function"); a.raw(f"{NAME}:")
    LS = "" if local else "sc1"
    def stamp(i):
        if stamps: a(f"s_memrealtime s[{80+2*i}:{81+2*i}]")
    WAVE, KVH, BB, SP, RR, TAG, SOFF, PITCH, XCC, REM = "s52", "s53", "s54", "s55", "s57", "s58", "s59", "s60", "s56", "s74"
    SPIN = "s73"
    def srd(base, lo, hi, size):
        a(f"s_mov_b32 s{base}, {lo}"); a(f"s_mov_b32 s{base+1}, {hi}"); a(f"s_mov_b32 s{base+2}, {size}"); a(f"s_mov_b32 s{base+3}, 0x20000")
    def bf16r(dst, src):
        a(f"v_cvt_pk_bf16_f32 {dst}, {src}, {src}"); a(f"v_and_b32 {dst}, 0xffff0000, {dst}")
    WS = "s[48:51]"
    def reduce_rows(v, t, op):
        a(f"v_mov_b32 {t}, {v}"); a(f"v_permlane16_swap_b32 {v}, {t}"); a(f"{op} {v}, {v}, {t}")
        a(f"v_mov_b32 {t}, {v}"); a(f"v_permlane32_swap_b32 {v}, {t}"); a(f"{op} {v}, {v}, {t}")
    def reduce_quad(v, op):
        a(f"{op}_dpp {v}, {v}, {v} quad_perm:[1,0,3,2] row_mask:0xf bank_mask:0xf")
        a(f"{op}_dpp {v}, {v}, {v} quad_perm:[2,3,0,1] row_mask:0xf bank_mask:0xf")
    def tagcheck(regs, t, mask=None):
        a(f"v_xor_b32 {t}, {TAG}, v{regs[0]}")
        for r in regs[1:]:
            a(f"v_bitop3_b32 {t}, {t}, v{r}, {TAG} bitop3:0xf6")
        if mask: a(f"v_and_b32 {t}, {mask}, {t}")
        a(f"v_cmp_ne_u32 vcc, 0, {t}")
    def retry(lbl, reissue, flush=False, sleep=False):
        a(f"s_cbranch_vccz {lbl}_ok")
        a(f"s_cmp_eq_u32 {SPIN}, 0"); a(f"s_cbranch_scc1 {lbl}_ok")
        a(f"s_sub_u32 {SPIN}, {SPIN}, 1")
        if flush and local:
            a(f"s_and_b32 s61, {SPIN}, {flushn}"); a(f"s_cbranch_scc1 {lbl}_nf")
            a("s_waitcnt vmcnt(0)"); a("buffer_wbl2 sc1")
            a.label(f"{lbl}_nf")
        if sleep and slp:
            a("s_bcnt1_i32_b64 s61, vcc"); a(f"s_cmp_le_u32 s61, {slpn}"); a(f"s_cbranch_scc1 {lbl}_ns"); a(f"s_sleep {slp}"); a.label(f"{lbl}_ns")
        old = a.cond; a.cond = "retry" + lbl
        a("s_mov_b64 exec, vcc")
        reissue("R" + lbl)
        a("s_mov_b64 exec, -1")
        a.cond = old
        a("s_waitcnt vmcnt(0)")
        a(f"s_branch {lbl}_chk")
        a.label(f"{lbl}_ok")

    stamp(0)
    if hold: a("s_memrealtime s[96:97]")
    a("s_cmp_ge_u32 s2, 256"); a("s_cbranch_scc1 L_end")
    a("s_load_dwordx16 s[4:19], s[0:1], 0")
    a("s_load_dwordx8 s[20:27], s[0:1], 64")
    a("s_load_dwordx4 s[28:31], s[0:1], 96")
    if scramble:
        a("s_lshr_b32 s3, s2, 3"); a("s_and_b32 s3, s3, 7"); a("s_xor_b32 s2, s2, s3")
    a("v_lshrrev_b32 v4, 6, v0"); a("v_and_b32 v1, 63, v0"); a(f"v_readfirstlane_b32 {WAVE}, v4")
    a(f"s_and_b32 {KVH}, s2, 7"); a(f"s_lshr_b32 {BB}, s2, 5"); a(f"s_bfe_u32 {SP}, s2, 0x20003"); a(f"s_lshr_b32 {RR}, s2, 3")
    a(f"s_lshl_b32 s61, {BB}, 5"); a(f"s_lshl_b32 s62, {KVH}, 2"); a("s_add_u32 s61, s61, s62"); a(f"s_add_u32 s61, s61, {SP}")
    a("s_lshl_b32 s61, s61, 18"); a(f"s_lshl_b32 s62, {WAVE}, 12"); a("s_add_u32 s61, s61, s62")
    a("v_and_b32 v2, 3, v1"); a("v_lshlrev_b32 v2, 4, v2")
    a("v_bfe_u32 v4, v1, 2, 2"); a("v_lshl_add_u32 v2, v4, 8, v2")
    a("v_lshrrev_b32 v4, 4, v1"); a("v_lshl_add_u32 v2, v4, 6, v2")
    a("v_add_u32 v2, s61, v2")
    a("v_lshl_add_u32 v3, v1, 4, s61")
    a(f"s_mov_b32 {SOFF}, 0")
    a("s_mov_b32 s34, 0x4000000"); a("s_mov_b32 s35, 0x20000")

    cur = {"soff": 0}
    kvn = []
    def kvload(which, n, D):
        off = (n >> 2) * 16384; imm = (n & 3) * 1024
        if off != cur["soff"]:
            a(f"s_mov_b32 {SOFF}, {off}"); cur["soff"] = off
        if D >= 30:
            idx = n + (64 if which == "V" else 0)
            D = (D*(idx+1))//10 - (D*idx)//10
        if D and len(kvn) >= D: a.pace_vm(kvn[-D])
        if which == "K":
            a(f"buffer_load_dwordx4 a[{4*n}:{4*n+3}], v2, s[32:35], {SOFF} offen offset:{imm} {kv}", name=f"K{n}")
        else:
            r = 96 + (n % 40) * 4
            a(f"buffer_load_dwordx4 v[{r}:{r+3}], v3, s[36:39], {SOFF} offen offset:{imm} {kv}", name=f"V{n}")
        kvn.append(f"{which}{n}")

    def consts():
        a(f"s_load_dword {TAG}, s[30:31], 0")
        if touch:
            a(f"s_lshl_b32 s61, {BB}, 5"); a(f"s_lshl_b32 s62, {KVH}, 2"); a("s_add_u32 s61, s61, s62"); a(f"s_add_u32 s61, s61, {SP}"); a("s_lshl_b32 s61, s61, 18")
            a("s_load_dword s100, s[8:9], s61")
            a(f"s_lshl_b32 s61, {KVH}, 19")
            a("s_load_dword s100, s[12:13], s61")
            a("s_load_dword s100, s[26:27], 0")
            if touch > 1:
                a("s_load_dword s100, s[22:23], 0"); a("s_load_dword s100, s[24:25], 0"); a("s_load_dword s100, s[4:5], 0"); a("s_load_dword s100, s[20:21], 0")
        if codepf:
            a("s_getpc_b64 s[62:63]")
            lab = f"L_pc{len(a.lines)}"
            a.label(lab)
            a(f"s_sub_u32 s62, s62, {lab}-{NAME}"); a("s_subb_u32 s63, s63, 0")
            a(f"s_lshl_b32 s61, {RR}, 10"); a(f"s_lshl_b32 s100, {WAVE}, 8"); a("s_add_u32 s61, s61, s100"); a(f"s_min_u32 s61, s61, L_end-{NAME}-252")
            a("v_lshl_add_u32 v5, v1, 2, s61")
            a("global_load_dword v9, v5, s[62:63]")
        srd(36, "s8", "s9", "0x4000000")
        srd(48, "s30", "s31", "0x10000000")
        a("s_mov_b32 s64, 0x22222222"); a("s_mov_b32 s65, 0x22222222")
        a("s_mov_b32 s66, 0x44444444"); a("s_mov_b32 s67, 0x44444444")
        a("s_mov_b32 s68, 0x88888888"); a("s_mov_b32 s69, 0x88888888")
        a("s_mov_b32 s70, 0x05040100"); a("s_mov_b32 s71, 0x07060302")
        a(f"s_mov_b32 s72, {hex(f2u(128**-0.5*LOG2E))}")
        a(f"s_mov_b32 {SPIN}, {spin}")
        a(f"s_getreg_b32 {XCC}, hwreg(HW_REG_XCC_ID, 0, 4)")
        srd(44, "s12", "s13", 4096*512*2)
        a(f"s_lshl_b32 s77, {KVH}, 5"); a(f"s_add_u32 s77, s77, {RR}")
        a("s_lshl_b32 s61, s77, 10"); a(f"s_lshl_b32 s62, {WAVE}, 8"); a("s_add_u32 s61, s61, s62"); a(f"s_add_u32 s61, s61, {OBUF}")
        a("v_lshl_add_u32 v8, v1, 2, s61")
        a(f"s_lshl_b32 s61, {KVH}, 2"); a(f"s_add_u32 s78, s61, {SP}")
        a(f"s_lshr_b32 s61, {SP}, 1"); a("s_lshl_b32 s61, s61, 5"); a(f"s_and_b32 s62, {SP}, 1"); a("s_lshl_b32 s62, s62, 3"); a("s_add_u32 s79, s61, s62")
        a("v_and_b32 v12, 3, v1"); a("v_lshlrev_b32 v12, 1, v12"); a("v_and_b32 v5, 16, v1"); a("v_add_u32 v12, v12, v5")
        a("v_lshrrev_b32 v5, 5, v1"); a("v_add3_u32 v12, v12, v5, s79")
        a("v_mov_b32 v5, -1")
        a(f"buffer_store_dword v5, v8, {WS}, 0 offen {LS}", name="CLR")
    def get_tag():
        a("s_waitcnt lgkmcnt(0)")
        a(f"s_add_u32 {TAG}, {TAG}, 1")
    def wo_dma():
        a("v_lshrrev_b32 v5, 3, v1"); a(f"s_lshl_b32 s61, {WAVE}, 5"); a("v_add_u32 v5, s61, v5"); a("v_lshlrev_b32 v5, 10, v5")
        a(f"s_and_b32 s61, {WAVE}, 1"); a("s_lshl_b32 s61, s61, 2")
        a("v_and_b32 v6, 7, v1"); a("v_xor_b32 v6, s61, v6"); a("v_lshl_add_u32 v5, v6, 4, v5"); a("v_xor_b32 v6, 32, v5")
        a("s_lshl_b32 s61, s78, 17"); a(f"s_lshl_b32 s62, {BB}, 7"); a("s_add_u32 s61, s61, s62")
        a(f"s_lshl_b32 s63, {WAVE}, 12")
        for i in range(0 if nowo else 4):
            a(f"s_add_u32 m0, s63, {L_WO + i*1024}")
            a(f"buffer_load_dwordx4 v{5+(i&1)}, s[44:47], s61 offen {wf} lds", name=f"WO{i}")
            if i < 3: a("s_add_u32 s61, s61, 8192")
    def gate_loads():
        a(f"s_lshl_b32 s61, {BB}, 10"); a("v_lshl_add_u32 v5, v1, 4, s61")
        a("global_load_dwordx4 v[208:211], v5, s[4:5]", name="GX")
        a("v_lshlrev_b32 v5, 4, v1")
        a("global_load_dwordx4 v[212:215], v5, s[24:25]", name="GW")
        a("v_and_b32 v5, 0x3ff, v12")
        a("global_load_ushort v11, v5, s[22:23]", name="GB2")
    def gate():
        for i in range(4):
            a(f"v_lshlrev_b32 v{48+2*i}, 16, v{208+i}"); a(f"v_and_b32 v{49+2*i}, 0xffff0000, v{208+i}")
            a(f"v_lshlrev_b32 v{56+2*i}, 16, v{212+i}"); a(f"v_and_b32 v{57+2*i}, 0xffff0000, v{212+i}")
        for i in range(8): a(f"v_mul_f32 v{48+i}, v{48+i}, v{56+i}")
        for i in range(4): a(f"v_cvt_pk_bf16_f32 v{56+i}, v{48+2*i}, v{49+2*i}")
        for i in range(4):
            a(f"v_lshlrev_b32 v{48+2*i}, 16, v{56+i}"); a(f"v_and_b32 v{49+2*i}, 0xffff0000, v{56+i}")
        for i in range(4): a(f"v_add_f32 v{48+i}, v{48+i}, v{52+i}")
        a("v_add_f32 v48, v48, v50"); a("v_add_f32 v49, v49, v51"); a("v_add_f32 v48, v48, v49")
        reduce_quad("v48", "v_add_f32")
        a("v_add_f32_dpp v48, v48, v48 row_ror:4 row_mask:0xf bank_mask:0xf")
        a("v_add_f32_dpp v48, v48, v48 row_ror:8 row_mask:0xf bank_mask:0xf")
        reduce_rows("v48", "v49", "v_add_f32")
        bf16r("v48", "v48")
        a(f"v_mul_f32 v48, {hex(f2u(-LOG2E))}, v48"); a("v_exp_f32 v48, v48"); a("v_add_f32 v48, 1.0, v48"); a("v_rcp_f32 v48, v48")
        bf16r("v9", "v48")
        a("v_sub_f32 v10, 1.0, v9"); bf16r("v10", "v10")
        a("v_lshlrev_b32 v11, 16, v11")
    def qgather(nm):
        a(f"buffer_load_dwordx4 v[80:83], v15, {WS}, 0 offen sc1", name=nm+"0")
        a(f"buffer_load_dwordx4 v[84:87], v15, {WS}, 0 offen offset:16 sc1", name=nm+"1")
    def qaddr():
        a(f"s_lshl_b32 s61, {BB}, 14"); a(f"s_lshl_b32 s62, {KVH}, 11"); a("s_add_u32 s61, s61, s62"); a(f"s_add_u32 s61, s61, {QBUF}")
        a("v_bfe_u32 v15, v1, 2, 2"); a("v_lshlrev_b32 v15, 9, v15")
        a("v_lshrrev_b32 v6, 4, v1"); a("v_lshl_add_u32 v15, v6, 7, v15")
        a("v_and_b32 v7, 3, v1"); a("v_lshl_add_u32 v15, v7, 5, v15"); a("v_add_u32 v15, s61, v15")

    NV0 = 16
    def kphase(p0):
        D = {"Q": DK, "W": DW or DK, "N": DN or DK, "S": DS or DK, "H": DH or DK}[p0]
        p = "Q" if p0 in "SH" else p0
        DR = D
        if D >= 30: D = (D + 9)//10
        st = {"n": NC}
        def K(upto=None, cnt=None):
            end = upto if upto is not None else st["n"] + cnt
            while st["n"] < end:
                n = st["n"]
                if n < 64: kvload("K", n, DR)
                else: kvload("V", n - 64, DR)
                st["n"] += 1
        a("s_waitcnt lgkmcnt(0)") if p != "Q" else None
        if p == "Q":
            a(f"s_lshl_b32 s61, {KVH}, 9"); a(f"s_xor_b32 s62, {RR}, {qx}"); a("s_lshl_b32 s62, s62, 5"); a("s_add_u32 s61, s61, s62"); a(f"s_lshl_b32 s62, {RR}, 5")
            a(f"s_mul_i32 s63, {KVH}, 224"); a("s_add_u32 s62, s62, s63"); a(f"s_sub_u32 s62, s62, {23*32}")
            a(f"s_cmp_lt_u32 {RR}, 16"); a("s_cselect_b32 s76, s61, s62")
            a(f"s_movk_i32 s61, 8192"); a(f"s_movk_i32 s62, 3584"); a(f"s_cselect_b32 {PITCH}, s61, s62")
            a(f"s_mov_b32 s61, {512*4096*2}"); a(f"s_mov_b32 s62, {512*1792*2}"); a("s_cselect_b32 s42, s61, s62"); a("s_mov_b32 s43, 0x20000")
            a("v_lshrrev_b32 v4, 2, v1"); a(f"s_lshl_b32 s61, {WAVE}, 7"); a("v_add_u32 v4, s61, v4")
            a(f"v_mul_u32_u24 v5, {PITCH}, v4")
            a("v_and_b32 v4, 3, v1"); a("v_lshrrev_b32 v6, 5, v1"); a("v_lshlrev_b32 v6, 1, v6"); a("v_xor_b32 v4, v4, v6")
            a("s_lshl_b32 s61, s76, 1"); a("v_add_u32 v5, s61, v5"); a("v_lshl_add_u32 v5, v4, 4, v5")
            a(f"s_lshl_b32 s62, {PITCH}, 4"); a(f"s_lshl_b32 s63, {WAVE}, 13"); a("s_mov_b32 s61, 0")
            a(f"s_cmp_lt_u32 {RR}, 16")
            a("s_waitcnt lgkmcnt(0)")
            a("s_cselect_b32 s40, s10, s16"); a("s_cselect_b32 s41, s11, s17")
            a("s_mov_b32 s32, s6"); a("s_mov_b32 s33, s7")
            for n in range(8):
                K(cnt=WSP)
                a(f"s_add_u32 m0, s63, {L_W + n*1024}")
                a(f"buffer_load_dwordx4 v5, s[40:43], s61 offen {wf} lds", name=f"W{n}")
                if WSP: kvn.append(f"W{n}")
                if n < 7: a("s_add_u32 s61, s61, s62")
            a(f"s_lshl_b32 s61, {WAVE}, 11"); a("v_lshl_add_u32 v7, v1, 4, s61")
            a(f"s_mul_i32 s61, {WAVE}, 2080"); a(f"s_add_u32 m0, s61, {L_X}")
            a("global_load_lds_dwordx4 v7, s[4:5]", name="X0")
            a(f"s_add_u32 m0, s61, {L_X+16}")
            a("global_load_lds_dwordx4 v7, s[4:5] offset:1024", name="X1")
        else:
            a("s_mov_b32 s32, s6"); a("s_mov_b32 s33, s7")
        if p == "Q":
            K(upto=max(NC, 6))
            a("s_min_u32 s61, s76, 1760"); a(f"s_and_b32 s62, {WAVE}, 1"); a("s_lshl_b32 s62, s62, 4"); a("s_add_u32 s61, s61, s62"); a("s_lshl_b32 s61, s61, 1")
            a("v_lshrrev_b32 v7, 4, v1"); a("v_lshl_add_u32 v4, v7, 3, s61")
            a("global_load_dwordx2 v[14:15], v4, s[18:19]", name="B1")
            consts()
            a("v_lshlrev_b32 v4, 3, v7"); a("v_bfe_u32 v5, v1, 2, 2"); a("v_add_u32 v4, v4, v5"); a("v_lshlrev_b32 v4, 6, v4")
            a("v_and_b32 v5, 3, v1"); a("v_lshl_add_u32 v4, v5, 3, v4")
            a(f"v_xor_b32 v5, {WAVE}, v7"); a("v_and_b32 v5, 1, v5"); a("v_lshl_add_u32 v4, v5, 5, v4")
            a("v_and_b32 v5, 7, v1"); a("v_mul_u32_u24 v6, 1040, v5"); a("v_lshl_add_u32 v6, v7, 4, v6")
            a(f"v_add_u32 v6, {L_X}, v6")
            a(f"s_cmp_lt_u32 {RR}, 16")
            a(f"s_movk_i32 s61, 16384"); a("s_movk_i32 s62, 7168"); a("s_cselect_b32 s61, s61, s62")
            a(f"s_mov_b32 s62, {QBUF}"); a(f"s_mov_b32 s63, {HBUF}"); a("s_cselect_b32 s62, s62, s63")
            a("s_lshl_b32 s63, s76, 2"); a("s_add_u32 s62, s62, s63"); a(f"s_lshl_b32 s63, {WAVE}, 6"); a("s_add_u32 s62, s62, s63")
            a("v_mul_u32_u24 v13, s61, v5"); a("v_lshl_add_u32 v13, v7, 4, v13"); a("v_add_u32 v13, s62, v13")
            K(upto=NC + D + 2)
            get_tag()
            a.wait_vm("X1")
            a("s_barrier")
            K(cnt=2)
            a(f"s_cmp_lt_u32 {WAVE}, 2"); a("s_cbranch_scc0 L_qh_done"+p0)
            a.cond = "QH"
            for s in range(16):
                a(f"ds_read_b64_tr_b16 v[{96+4*s}:{97+4*s}], v4 offset:{L_W + s*2048}")
                a(f"ds_read_b64_tr_b16 v[{98+4*s}:{99+4*s}], v4 offset:{L_W + s*2048 + 256}")
                a(f"ds_read_b128 v[{160+4*s}:{163+4*s}], v6 offset:{s*64}")
            a("s_waitcnt lgkmcnt(0)")
            for s in range(16):
                acc = 224 + 4*(s & 1)
                a(f"v_mfma_f32_16x16x32_bf16 v[{acc}:{acc+3}], v[{96+4*s}:{99+4*s}], v[{160+4*s}:{163+4*s}], " + ("0" if s < 2 else f"v[{acc}:{acc+3}]"))
            a(f"v_mov_b32 v237, {TAG}"); a(f"v_mov_b32 v239, {TAG}")
            for r in range(4): a(f"v_add_f32 v{224+r}, v{224+r}, v{228+r}")
            a(f"s_cmp_lt_u32 {RR}, 16"); a("s_cbranch_scc0 L_h_epi"+p0)
            a("v_cvt_pk_bf16_f32 v236, v224, v225"); a("v_cvt_pk_bf16_f32 v238, v226, v227")
            a("s_mov_b32 exec_lo, 0x00ff00ff"); a("s_mov_b32 exec_hi, 0x00ff00ff")
            a(f"buffer_store_dwordx4 v[236:239], v13, {WS}, 0 offen {LS}")
            a("s_branch L_qh_pub"+p0)
            a.label("L_h_epi"+p0)
            a.wait_vm("B1")
            a("v_lshlrev_b32 v232, 16, v14"); a("v_and_b32 v233, 0xffff0000, v14"); a("v_lshlrev_b32 v234, 16, v15"); a("v_and_b32 v235, 0xffff0000, v15")
            k1 = -2.0 * (2.0/3.141592653589793)**0.5 * LOG2E
            for r in range(4): bf16r(f"v{224+r}", f"v{224+r}")
            for r in range(4): a(f"v_add_f32 v{224+r}, v{224+r}, v{232+r}")
            for r in range(4): bf16r(f"v{224+r}", f"v{224+r}")
            for r in range(4): a(f"v_mul_f32 v{232+r}, v{224+r}, v{224+r}")
            a(f"v_mov_b32 v236, {hex(f2u(k1))}")
            for r in range(4): a(f"v_fmamk_f32 v{232+r}, v{232+r}, {hex(f2u(k1*0.044715))}, v236")
            for r in range(4): a(f"v_mul_f32 v{232+r}, v{232+r}, v{224+r}")
            for r in range(4): a(f"v_exp_f32 v{232+r}, v{232+r}")
            for r in range(4): a(f"v_add_f32 v{232+r}, 1.0, v{232+r}")
            for r in range(4): a(f"v_rcp_f32 v{232+r}, v{232+r}")
            for r in range(4): a(f"v_mul_f32 v{224+r}, v{224+r}, v{232+r}")
            a("v_cvt_pk_bf16_f32 v236, v224, v225"); a("v_cvt_pk_bf16_f32 v238, v226, v227")
            a("s_mov_b32 exec_lo, 0x00ff00ff"); a("s_mov_b32 exec_hi, 0x00ff00ff")
            a(f"buffer_store_dwordx4 v[236:239], v13, {WS}, 0 offen sc1")
            a.label("L_qh_pub"+p0)
            a("s_mov_b64 exec, -1")
            a.cond = None
            a.label("L_qh_done"+p0)
            stamp(1)
            K(upto=max(24, st["n"]))
        else:
            K(upto=D)
            consts()
            stamp(1)
            K(upto=18)
            if p == "W":
                srd(40, "s20", "s21", 1792*512*2)
                a("v_lshrrev_b32 v5, 3, v1"); a(f"s_lshl_b32 s61, {WAVE}, 6"); a("v_add_u32 v5, s61, v5"); a("v_lshlrev_b32 v5, 10, v5")
                a("v_and_b32 v4, 7, v1"); a("v_bfe_u32 v6, v1, 4, 1"); a("v_lshlrev_b32 v6, 1, v6"); a("v_xor_b32 v4, v4, v6")
                a("v_lshl_add_u32 v5, v4, 4, v5"); a("v_xor_b32 v6, 64, v5")
                a(f"s_sub_u32 s76, {RR}, 16")
                a("s_lshl_b32 s61, s76, 18"); a(f"s_lshl_b32 s62, {KVH}, 7"); a("s_add_u32 s61, s61, s62")
                a(f"s_lshl_b32 s63, {WAVE}, 13")
                for i in range(0 if now2 else 8):
                    a(f"s_add_u32 m0, s63, {L_W + i*1024}")
                    a(f"buffer_load_dwordx4 v{5+(i&1)}, s[40:43], s61 offen {wf} lds", name=f"W2_{i}")
                    if i < 7: a("s_add_u32 s61, s61, 8192")
                a("v_lshrrev_b32 v4, 4, v1"); a("v_lshlrev_b32 v4, 3, v4"); a("v_bfe_u32 v5, v1, 2, 2"); a("v_add_u32 v4, v4, v5")
                a("v_lshlrev_b32 v4, 7, v4"); a("v_and_b32 v5, 3, v1"); a("v_lshl_add_u32 v4, v5, 3, v4")
                a("v_bfe_u32 v5, v1, 3, 2"); a(f"v_xor_b32 v5, {WAVE}, v5"); a("v_lshl_add_u32 v4, v5, 5, v4")
            K(upto=24)
            get_tag()
        if not wolate: wo_dma()
        K(upto=max(44, st["n"]))
        qaddr()
        if p == "W":
            K(upto=56)
            a("s_lshl_b32 s61, s76, 10"); a(f"s_lshl_b32 s62, {WAVE}, 8"); a("s_add_u32 s61, s61, s62"); a(f"s_add_u32 s61, s61, {HBUF}")
            a("v_and_b32 v7, 7, v1"); a("v_mul_u32_u24 v7, 7168, v7"); a("v_lshl_add_u32 v7, v6, 5, v7"); a("v_add_u32 v7, s61, v7")
            def hgather(nm):
                for i in range(4):
                    a(f"buffer_load_dwordx4 v[{16+4*i}:{19+4*i}], v7, {WS}, 0 offen offset:{(i>>1)*128 + (i&1)*16} sc1", name=f"{nm}{i}")
            hgather("HG")
            a(f"s_lshl_b32 s61, {WAVE}, 11"); a(f"s_add_u32 s61, s61, {L_H}"); a("v_lshl_add_u32 v5, v1, 4, s61")
            a("v_lshlrev_b32 v13, 4, v1")
        K(upto=64)
        qgather("QG")
        if p == "W":
            K(upto=56 + D)
            a.wait_vm("HG3")
            a.label("L_h_chk")
            tagcheck([17 + 2*i for i in range(8)], "v14")
            retry("L_h", hgather)
            for i in range(1, 8): a(f"v_mov_b32 v{16+i}, v{16+2*i}")
            a("ds_write_b128 v5, v[16:19]"); a("ds_write_b128 v5, v[20:23] offset:1024")
            K(cnt=1)
            a("s_waitcnt lgkmcnt(0)")
            a("s_barrier")
            for s in range(8):
                a(f"ds_read_b64_tr_b16 v[{192+4*s}:{193+4*s}], v4 offset:{L_W + s*4096}")
                a(f"ds_read_b64_tr_b16 v[{194+4*s}:{195+4*s}], v4 offset:{L_W + s*4096 + 512}")
                a(f"ds_read_b128 v[{224+4*s}:{227+4*s}], v13 offset:{L_H + s*1024}")
            a(f"s_lshl_b32 s61, {KVH}, 15"); a("s_lshl_b32 s62, s76, 12"); a("s_add_u32 s61, s61, s62")
            a(f"s_lshl_b32 s62, {WAVE}, 7"); a("s_add_u32 s61, s61, s62"); a(f"s_add_u32 s61, s61, {FBUF}")
            a("v_and_b32 v7, 7, v1"); a("v_lshlrev_b32 v7, 9, v7"); a("v_lshl_add_u32 v7, v6, 5, v7"); a("v_add_u32 v7, s61, v7")
            for r in range(4): a(f"v_mov_b32 v{89+2*r}, {TAG}")
            K(cnt=1)
            a("s_waitcnt lgkmcnt(0)")
            for s in range(8):
                a(f"v_mfma_f32_16x16x32_bf16 v[16:19], v[{192+4*s}:{195+4*s}], v[{224+4*s}:{227+4*s}], " + ("0" if s == 0 else "v[16:19]"))
            K(cnt=1)
            for r in range(4): a(f"v_mov_b32 v{88+2*r}, v{16+r}")
            a("s_mov_b32 exec_lo, 0x00ff00ff"); a("s_mov_b32 exec_hi, 0x00ff00ff")
            a(f"buffer_store_dwordx4 v[88:91], v7, {WS}, 0 offen {LS}")
            a(f"buffer_store_dwordx4 v[92:95], v7, {WS}, 0 offen offset:16 {LS}")
            a("s_mov_b64 exec, -1")
        K(upto=64 + NV0)

    if cpf0:
        a("s_getpc_b64 s[62:63]")
        a.label("L_pc0")
        a(f"s_sub_u32 s62, s62, L_pc0-{NAME}"); a("s_subb_u32 s63, s63, 0")
        a(f"s_lshl_b32 s61, {RR}, 10"); a(f"s_lshl_b32 s100, {WAVE}, 8"); a("s_add_u32 s61, s61, s100"); a(f"s_min_u32 s61, s61, L_end-{NAME}-252")
        a("v_lshl_add_u32 v5, v1, 2, s61")
        a("global_load_dword v9, v5, s[62:63]", name="CPF")
    if NC:
        a("s_waitcnt lgkmcnt(0)")
        a("s_mov_b32 s32, s6"); a("s_mov_b32 s33, s7")
        for n in range(NC): kvload("K", n, 0)
    vm0 = list(a.vm); kv0 = list(kvn); so0 = cur["soff"]
    a(f"s_cmp_ge_u32 {RR}, 30"); a("s_cbranch_scc1 L_pathN")
    a(f"s_sub_u32 s61, {RR}, 16"); a("s_cmp_lt_u32 s61, 7"); a("s_cbranch_scc1 L_pathW")
    if DS: a(f"s_and_b32 s61, {RR}, 30"); a("s_cmp_eq_u32 s61, 6"); a("s_cbranch_scc1 L_pathS")
    if DH: a(f"s_cmp_ge_u32 {RR}, 23"); a("s_cbranch_scc1 L_pathH")
    for p in ["Q"] + (["S"] if DS else []) + (["H"] if DH else []) + ["W", "N"]:
        if p != "Q": a.label(f"L_path{p}")
        a.vm = list(vm0); kvn[:] = kv0; cur["soff"] = so0
        kphase(p)
        if p != "N": a("s_branch L_join")
    a.label("L_join")
    a.vm = [("QG0", True, None), ("QG1", True, None)] + [(f"V{i}", True, None) for i in range(NV0)]
    nv = NV0
    def V(D):
        nonlocal nv
        kvload("V", nv, D); nv += 1

    a.wait_vm("QG1")
    stamp(2)
    a.label("L_q_chk")
    tagcheck([81, 83, 85, 87], "v14")
    retry("L_q", qgather, flush=True)
    for i in range(4): a(f"v_mov_b32 v{40+i}, v{80+2*i}")
    def qk_mfma(u):
        for t in range(4):
            d = 48 + (u & 1)*16 + 4*t; k = 4*(4*u + t)
            a(f"v_mfma_f32_16x16x32_bf16 v[{d}:{d+3}], a[{k}:{k+3}], v[40:43], 0")
    def qk_red(u):
        base = 48 + (u & 1)*16
        for step in range(1, 4):
            for t in range(4):
                c = (t + step) & 3
                d = base + 4*t
                dst = f"v{16+u}" if (t == 0 and step == 3) else f"v{d+t}"
                a(f"v_add_f32_dpp {dst}, v{d+c}, v{d+t} quad_perm:[{c},{c},{c},{c}] row_mask:0xf bank_mask:0xf")
        for t in range(1, 4):
            a(f"v_cndmask_b32 v{16+u}, v{16+u}, v{base+5*t}, s[{62+2*t}:{63+2*t}]")
    qk_mfma(0)
    for u in range(16):
        if u < 15: qk_mfma(u+1)
        qk_red(u)
        if u % 2 == 1: V(DV)
    a("v_max3_f32 v48, v16, v17, v18")
    for i in range(6): a(f"v_max3_f32 v48, v48, v{19+2*i}, v{20+2*i}")
    a("v_max_f32 v48, v48, v31")
    reduce_quad("v48", "v_max_f32")
    reduce_rows("v48", "v49", "v_max_f32")
    a("v_mul_f32 v48, s72, v48")
    for u in range(16): a(f"v_fma_f32 v{16+u}, v{16+u}, s72, -v48")
    V(DV)
    for u in range(16): a(f"v_exp_f32 v{16+u}, v{16+u}")
    for i in range(8): a(f"v_add_f32 v{52+i}, v{16+2*i}, v{17+2*i}")
    for i in range(4): a(f"v_add_f32 v{52+i}, v{52+i}, v{56+i}")
    a("v_add_f32 v52, v52, v54"); a("v_add_f32 v53, v53, v55"); a("v_add_f32 v49, v52, v53")
    V(DV)
    reduce_quad("v49", "v_add_f32")
    reduce_rows("v49", "v50", "v_add_f32")
    a(f"s_lshl_b32 s61, {WAVE}, 9"); a(f"s_add_u32 s61, s61, {L_ML}")
    a("v_lshl_add_u32 v50, v1, 3, s61"); a("v_lshlrev_b32 v51, 3, v1"); a(f"v_add_u32 v51, {L_ML}, v51")
    a("ds_write_b64 v50, v[48:49]")
    V(DV)
    a("s_waitcnt lgkmcnt(0)")
    a("s_barrier")
    for w in range(4): a(f"ds_read_b64 v[{52+2*w}:{53+2*w}], v51 offset:{w*512}")
    a("v_lshrrev_b32 v4, 4, v1"); a("v_lshlrev_b32 v4, 5, v4"); a("v_bfe_u32 v6, v1, 3, 1"); a("v_lshl_add_u32 v4, v6, 3, v4")
    a("v_bfe_u32 v6, v1, 2, 1"); a("v_add_u32 v4, v4, v6"); a("v_lshlrev_b32 v4, 7, v4")
    a("v_and_b32 v6, 3, v1"); a("v_lshl_add_u32 v4, v6, 3, v4")
    a(f"s_and_b32 s61, {WAVE}, 2"); a("v_bfe_u32 v6, v1, 3, 2"); a("v_xor_b32 v6, s61, v6"); a("v_lshl_add_u32 v4, v6, 5, v4")
    a(f"v_add_u32 v4, {L_WO}, v4"); a("v_xor_b32 v13, 32, v4")
    def wo_frags():
        for s in range(4):
            for ct in range(2):
                r = 64 + (ct*4 + s)*4
                ad = "v4" if ct == 0 else "v13"
                a(f"ds_read_b64_tr_b16 a[{r}:{r+1}], {ad} offset:{s*256}")
                a(f"ds_read_b64_tr_b16 a[{r+2}:{r+3}], {ad} offset:{s*256 + 2048}")
    V(DV)
    a("s_waitcnt lgkmcnt(0)")
    if not wolate: wo_frags()
    a("v_max3_f32 v60, v52, v54, v56"); a("v_max_f32 v60, v60, v58")
    a("v_sub_f32 v48, v48, v60"); a("v_exp_f32 v48, v48")
    for w in range(4): a(f"v_sub_f32 v{52+2*w}, v{52+2*w}, v60")
    for w in range(4): a(f"v_exp_f32 v{52+2*w}, v{52+2*w}")
    a("v_mul_f32 v62, v52, v53")
    for w in range(1, 4): a(f"v_fmac_f32 v62, v{52+2*w}, v{53+2*w}")
    a(f"s_cmp_eq_u32 {WAVE}, 2"); a("s_cbranch_scc0 L_ml_done")
    a.cond = "W0"
    a(f"v_mov_b32 v61, {TAG}"); a(f"v_mov_b32 v63, {TAG}")
    a(f"v_writelane_b32 v60, {XCC}, 16")
    a("s_lshl_b32 s61, s77, 7"); a(f"s_add_u32 s61, s61, {MLBUF}"); a("v_lshl_add_u32 v5, v1, 2, s61")
    a("s_mov_b64 exec, 0x11111")
    a(f"buffer_store_dwordx4 v[60:63], v5, {WS}, 0 offen " + (LS if mlloc else "sc1"))
    a("s_mov_b64 exec, -1")
    a.cond = None
    a.label("L_ml_done")
    for u in range(16): a(f"v_mul_f32 v{16+u}, v{16+u}, v48")
    for t in range(8): a(f"v_cvt_pk_bf16_f32 v{32+t}, v{16+2*t}, v{17+2*t}")
    V(DV)
    stamp(4)
    a(f"s_and_b32 s61, {WAVE}, 1"); a("s_lshl_b32 s61, s61, 4"); a(f"s_lshl_b32 s62, {KVH}, 5"); a("s_add_u32 s61, s61, s62")
    a("v_lshrrev_b32 v6, 4, v1"); a("v_and_b32 v7, 15, v1")
    if prod == 1:
        a("s_lshl_b32 s62, s61, 10"); a(f"s_lshl_b32 s63, {SP}, 6"); a("s_add_u32 s62, s62, s63"); a(f"s_add_u32 s62, s62, {OBUF}")
        a("v_lshlrev_b32 v24, 10, v7"); a("v_lshl_add_u32 v24, v6, 4, v24"); a("v_add_u32 v24, s62, v24")
    elif prod == 2:
        a("s_lshl_b32 s62, s61, 10"); a(f"s_lshl_b32 s63, {SP}, 8"); a("s_add_u32 s62, s62, s63"); a(f"s_add_u32 s62, s62, {OBUF}")
        a("v_lshlrev_b32 v24, 10, v7"); a("v_lshl_add_u32 v24, v6, 4, v24"); a("v_add_u32 v24, s62, v24")
        a("s_lshl_b32 s62, s77, 10"); a(f"s_lshl_b32 s63, {WAVE}, 6"); a("s_add_u32 s62, s62, s63"); a(f"s_add_u32 s62, s62, {OBUF}")
        a("v_lshlrev_b32 v8, 8, v6"); a("v_lshl_add_u32 v8, v7, 2, v8"); a("v_add_u32 v8, s62, v8")
    else:
        a(f"s_lshl_b32 s62, {KVH}, 15"); a(f"s_add_u32 s76, s62, {OBUF}")
        a(f"s_lshl_b32 s62, {SP}, 13"); a(f"s_and_b32 s63, {WAVE}, 1"); a("s_lshl_b32 s63, s63, 12"); a("s_add_u32 s62, s62, s63"); a("s_add_u32 s62, s62, s76")
        a("v_lshl_add_u32 v24, v1, 4, s62")
        a(f"s_lshr_b32 s62, {RR}, 4"); a("s_lshl_b32 s62, s62, 12"); a(f"s_lshl_b32 s63, {WAVE}, 10"); a("s_add_u32 s62, s62, s63")
        a(f"s_and_b32 s63, {RR}, 15"); a("s_lshl_b32 s63, s63, 4"); a("s_add_u32 s62, s62, s63"); a("s_add_u32 s62, s62, s76")
        a("v_lshlrev_b32 v8, 13, v6"); a("v_bfe_u32 v7, v1, 2, 2"); a("v_lshl_add_u32 v8, v7, 8, v8")
        a("v_and_b32 v7, 3, v1"); a("v_lshl_add_u32 v8, v7, 2, v8"); a("v_add_u32 v8, s62, v8")
    a("s_lshl_b32 s62, s61, 7"); a(f"s_lshl_b32 s63, {SP}, 4"); a("s_add_u32 s62, s62, s63"); a(f"s_add_u32 s62, s62, {MLBUF}")
    a("v_lshl_add_u32 v30, v6, 9, s62")
    a(f"s_lshl_b32 s62, {KVH}, 12"); a(f"s_add_u32 s62, s62, {MLBUF+64}"); a("v_and_b32 v29, 31, v1"); a("v_lshl_add_u32 v29, v29, 7, s62")
    a(f"s_and_b32 s61, {WAVE}, 1"); a("s_lshl_b32 s61, s61, 15"); a(f"s_lshl_b32 s62, {BB}, 16"); a("s_add_u32 s61, s61, s62")
    a(f"s_lshr_b32 s62, {WAVE}, 1"); a("s_lshl_b32 s62, s62, 12"); a("s_add_u32 s61, s61, s62")
    if pfull:
        a("s_lshl_b32 s62, s78, 7"); a("s_add_u32 s61, s61, s62"); a(f"s_add_u32 s61, s61, {PBUF}")
        a("v_lshlrev_b32 v25, 13, v6"); a("v_and_b32 v7, 15, v1"); a("v_lshl_add_u32 v25, v7, 3, v25"); a("v_add_u32 v25, s61, v25")
        if pswz:
            a("v_bfe_u32 v7, v25, 12, 4"); a("v_lshlrev_b32 v7, 8, v7"); a("v_xor_b32 v25, v25, v7")
        a("s_lshr_b32 s61, s77, 1"); a("s_lshl_b32 s61, s61, 12"); a(f"s_and_b32 s62, {SP}, 1"); a("s_lshl_b32 s62, s62, 6"); a("s_add_u32 s61, s61, s62"); a(f"s_add_u32 s61, s61, {PBUF}")
        a("v_lshrrev_b32 v26, 2, v1"); a("v_lshlrev_b32 v26, 7, v26"); a("v_and_b32 v7, 3, v1"); a("v_lshl_add_u32 v26, v7, 4, v26"); a("v_add_u32 v26, s61, v26")
    else:
        a("s_lshl_b32 s62, s78, 6"); a("s_add_u32 s61, s61, s62"); a(f"s_add_u32 s61, s61, {PBUF}")
        a("v_lshlrev_b32 v25, 13, v6"); a("v_bfe_u32 v7, v1, 3, 1"); a("v_lshl_add_u32 v25, v7, 11, v25")
        a("v_and_b32 v7, 7, v1"); a("v_lshl_add_u32 v25, v7, 3, v25"); a("v_add_u32 v25, s61, v25")
        if pswz:
            a("v_bfe_u32 v7, v25, 11, 4"); a("v_lshlrev_b32 v7, 7, v7"); a("v_xor_b32 v25, v25, v7")
        a("s_lshl_b32 s61, s77, 11"); a(f"s_add_u32 s61, s61, {PBUF}"); a("v_lshl_add_u32 v26, v1, 4, s61")
    a(f"s_lshl_b32 s61, {WAVE}, 11"); a(f"s_add_u32 s61, s61, {L_RED}"); a("v_lshl_add_u32 v27, v1, 2, s61")
    a(f"s_lshl_b32 s61, {WAVE}, 9"); a(f"s_add_u32 s61, s61, {L_RED}"); a("v_lshl_add_u32 v28, v1, 2, s61")
    a(f"s_lshl_b32 s61, {KVH}, 15"); a(f"s_lshl_b32 s62, {BB}, 9"); a("s_add_u32 s61, s61, s62"); a(f"s_add_u32 s61, s61, {FBUF}")
    a("v_bfe_u32 v31, v1, 2, 2"); a("v_lshlrev_b32 v31, 12, v31"); a("v_lshl_add_u32 v31, v12, 3, v31"); a("v_add_u32 v31, s61, v31")
    a(f"s_lshl_b32 s61, {BB}, 10"); a(f"s_lshl_b32 s62, {KVH}, 7"); a("s_add_u32 s61, s61, s62"); a("v_lshl_add_u32 v12, v12, 1, s61")
    a(f"s_and_b32 s75, {TAG}, 0x3ff")
    V(DV)

    def mlgather(nm):
        for r in range(4):
            a(f"buffer_load_dwordx4 v[{80+4*r}:{83+4*r}], v30, {WS}, 0 offen offset:{r*128} sc1", name=f"{nm}{r}")
        a(f"buffer_load_dwordx2 v[20:21], v29, {WS}, 0 offen sc1", name=f"{nm}4")
    def fgather(nm):
        a(f"s_movk_i32 s61, {4*4096}")
        a(f"buffer_load_dwordx2 v[16:17], v31, {WS}, 0 offen sc1", name=nm+"0")
        a("s_and_b32 exec_lo, exec_lo, 0x0fff0fff"); a("s_and_b32 exec_hi, exec_hi, 0x0fff0fff")
        a(f"s_cbranch_execz L_fg_skip{nm}")
        a(f"buffer_load_dwordx2 v[18:19], v31, {WS}, s61 offen sc1", name=nm+"1")
        a.label(f"L_fg_skip{nm}")
        a("s_mov_b64 exec, -1")
    PB = 192
    def poll1(nm, PB=PB):
        for s in range(4):
            a(f"buffer_load_dwordx4 v[{PB+4*s}:{PB+3+4*s}], v24, {WS}, 0 offen offset:{s*[1024,256,64][prod]} sc1", name=f"{nm}{s}")
    def flgather(nm):
        a(f"buffer_load_dwordx2 v[20:21], v7, {WS}, 0 offen sc1", name=nm+"0")
    def ml_check():
        a.wait_vm("ML4")
        a.label("L_ml_chk")
        tagcheck([81 + 2*i for i in range(8)] + [21], "v14")
        retry("L_ml", mlgather, flush=True)
        a(f"s_mov_b32 {REM}, 0")
        if local:
            a(f"v_cmp_ne_u32 vcc, {XCC}, v20")
            a("s_cbranch_vccz L_samedie")
            a.cond = "rem"
            a(f"s_mov_b32 {REM}, 1")
            a("s_waitcnt vmcnt(0)"); a("buffer_wbl2 sc1"); a("s_waitcnt vmcnt(0)")
            a("s_lshl_b32 s61, s77, 4"); a(f"s_lshl_b32 s62, {WAVE}, 2"); a("s_add_u32 s61, s61, s62"); a(f"s_add_u32 s61, s61, {FLBUF}")
            a("v_mov_b32 v7, s61"); a(f"v_mov_b32 v14, {TAG}")
            a("s_mov_b64 exec, 1")
            a(f"buffer_store_dword v14, v7, {WS}, 0 offen sc1")
            a("s_mov_b64 exec, -1")
            a(f"s_lshl_b32 s61, {KVH}, 9"); a(f"s_add_u32 s61, s61, {FLBUF}"); a("v_lshl_add_u32 v7, v1, 3, s61")
            flgather("FL")
            a("s_waitcnt vmcnt(0)")
            a.label("L_fl_chk")
            tagcheck([20, 21], "v14")
            retry("L_fl", flgather)
            a.cond = None
            a.label("L_samedie")
        a("v_max3_f32 v14, v80, v84, v88"); a("v_max_f32 v14, v14, v92")
        for r in range(4): a(f"v_sub_f32 v{80+4*r}, v{80+4*r}, v14")
        for r in range(4): a(f"v_exp_f32 v{80+4*r}, v{80+4*r}")
        a("v_mul_f32 v14, v80, v82")
        for r in range(1, 4): a(f"v_fmac_f32 v14, v{80+4*r}, v{82+4*r}")
        a("v_rcp_f32 v14, v14")
        a("v_mov_b32 v42, 0xfffffc00")
        for r in range(4): a(f"v_mul_f32 v{80+4*r}, v{80+4*r}, v14")
    gathered = 0
    for tau in range(8):
        vb = 96 + (tau % 5)*32
        for w in range(4):
            needi = 8*tau + 4 + w
            while nv < 64 and nv <= needi + ((DV if DV < 30 else (DV+9)//10) if nv < EV else DE) and (nv - 40) < 8*tau:
                V(DV if nv < EV else DE)
                if nv == MLG:
                    gathered = 1
                    assert tau >= 4
                    a(f"s_cmp_eq_u32 {WAVE}, 3"); a("s_cbranch_scc0 L_fg_done")
                    a.cond = "F"
                    a("v_mov_b32 v18, 0"); a(f"v_mov_b32 v19, {TAG}")
                    fgather("FG")
                    gate_loads()
                    if warm:
                        a(f"buffer_load_dwordx4 v[216:219], v26, {WS}, 0 offen " + ("sc1" if warm == 1 else "sc1 nt"))
                        a(f"buffer_load_dwordx4 v[220:223], v26, {WS}, 0 offen offset:{2048 if pfull else 1024} " + ("sc1" if warm == 1 else "sc1 nt"))
                    a.cond = None
                    a.label("L_fg_done")
                    mlgather("ML")
            if nv == 64 and gathered == 1:
                gathered = 2
                assert tau >= 5
                if wolate and not wopost: wo_dma()
                ml_check()
            if prepoll and tau == 7 and w == 0:
                assert gathered == 2
                poll1("P0")
            if w == 0:
                for x in range(4):
                    a(f"v_mov_b32_dpp v{44+x}, v{32+tau} quad_perm:[{x},{x},{x},{x}] row_mask:0xf bank_mask:0xf")
            a.wait_vm(f"V{needi}")
            if tau == 7 and w == 3: stamp(5)
            ra = vb + 4*w; rb = vb + 4*(4 + w)
            def perm(m):
                a(f"v_perm_b32 v{48+4*m+w}, v{rb+(m>>1)}, v{ra+(m>>1)}, s{70+(m&1)}")
            def mf(m):
                a(f"v_mfma_f32_16x16x32_bf16 a[{32+4*m}:{35+4*m}], v[44:47], v[{48+4*m}:{51+4*m}], " + ("0" if tau == 0 else f"a[{32+4*m}:{35+4*m}]"))
            if w < 3:
                for m in range(8): perm(m)
            else:
                perm(0); perm(1); perm(2)
                for m in range(8):
                    mf(m)
                    if m + 3 < 8: perm(m + 3)
    assert nv == 64 and gathered == 2
    def sentinel(PB=PB):
        a(f"v_max3_u32 v14, v{PB}, v{PB+1}, v{PB+2}")
        for i in range(6): a(f"v_max3_u32 v14, v14, v{PB+3+2*i}, v{PB+4+2*i}")
        a(f"v_max_u32 v14, v14, v{PB+15}")
        a("v_cmp_eq_u32 vcc, -1, v14")
    for m in range(0, 8, 2):
        a(f"ds_write2st64_b32 v27, a{32+4*m}, a{36+4*m} offset0:{m} offset1:{m+1}")
    a("s_waitcnt lgkmcnt(0)")
    a("s_barrier")
    for w in range(4): a(f"ds_read2st64_b32 v[{48+2*w}:{49+2*w}], v28 offset0:{w*8} offset1:{w*8+1}")
    a(f"s_cmp_eq_u32 {REM}, 0")
    a("s_waitcnt lgkmcnt(0)")
    a("v_add_f32 v48, v48, v50"); a("v_add_f32 v49, v49, v51"); a("v_add_f32 v52, v52, v54"); a("v_add_f32 v53, v53, v55")
    a("v_add_f32 v48, v48, v52"); a("v_add_f32 v49, v49, v53")
    a("v_cvt_pk_bf16_f32 v48, v48, v49"); a("v_min_u32 v48, -2, v48")
    if local:
        a("s_cbranch_scc0 L_st_far")
        a(f"buffer_store_dword v48, v8, {WS}, 0 offen")
        a.label("L_st_done")
    else:
        a(f"buffer_store_dword v48, v8, {WS}, 0 offen sc1")
    stamp(6)
    if wopost:
        wo_dma(); a("s_waitcnt vmcnt(0)")
    if pafter:
        a("s_waitcnt vmcnt(1)")
        a("s_barrier")
        if pafter == 1: poll1("P1")
        wo_frags()
        if pafter == 3: a("s_waitcnt vmcnt(0)")
        if pafter >= 2: poll1("P1")
    else:
        if prod and prepoll:
            a("s_waitcnt vmcnt(1)")
            sentinel()
            a("s_or_b32 vcc_lo, vcc_lo, 1")
            a("s_mov_b64 exec, vcc")
        poll1("P1")
        if prod and prepoll: a("s_mov_b64 exec, -1")
        if wolate:
            a("s_waitcnt vmcnt(5)")
            a("s_barrier")
            wo_frags()
    def p1_mfma(PB=PB):
        for s in range(4):
            for ct in range(2):
                acc = 64 + 4*ct; r = 64 + (ct*4 + s)*4
                a(f"v_mfma_f32_16x16x32_bf16 v[{acc}:{acc+3}], v[{PB+4*s}:{PB+3+4*s}], a[{r}:{r+3}], " + ("0" if s == 0 else f"v[{acc}:{acc+3}]"))
    if not pipe1:
        a("s_waitcnt vmcnt(0) lgkmcnt(0)")
        stamp(3)
        a.label("L_p1_chk")
        if spec: p1_mfma()
        sentinel()
        retry("L_p1", poll1, sleep=True)
        if fine: stamp(1)
        if not spec: p1_mfma()
    else:
        PC = 224
        poll1("P1b", PC)
        a("s_waitcnt lgkmcnt(0)")
        stamp(3)
        a.label("L_p1_chk")
        a("s_waitcnt vmcnt(4)")
        sentinel()
        a("s_cbranch_vccz L_p1_ok")
        a("s_mov_b64 exec, vcc"); poll1("R1"); a("s_mov_b64 exec, -1")
        a("s_waitcnt vmcnt(4)")
        sentinel(PC)
        a("s_cbranch_vccz L_p1_okb")
        a("s_mov_b64 exec, vcc"); poll1("R1b", PC); a("s_mov_b64 exec, -1")
        a(f"s_cmp_eq_u32 {SPIN}, 0"); a("s_cbranch_scc1 L_p1_okb")
        a(f"s_sub_u32 {SPIN}, {SPIN}, 1")
        a("s_branch L_p1_chk")
        a.label("L_p1_okb")
        if fine: stamp(1)
        p1_mfma(PC)
        a("s_branch L_p1_sum")
        a.label("L_p1_ok")
        if fine: stamp(1)
        p1_mfma()
        a.label("L_p1_sum")
    a("v_mul_f32 v40, v64, v80"); a("v_mul_f32 v41, v68, v80")
    for r in range(1, 4):
        a(f"v_fmac_f32 v40, v{64+r}, v{80+4*r}"); a(f"v_fmac_f32 v41, v{68+r}, v{80+4*r}")
    a("v_and_or_b32 v40, v40, v42, s75"); a("v_and_or_b32 v41, v41, v42, s75")
    if sbar and not x4: a("s_barrier")
    if x4:
        a("v_mov_b32_dpp v42, v40 quad_perm:[1,1,3,3] row_mask:0xf bank_mask:0xf")
        a("v_mov_b32_dpp v43, v41 quad_perm:[1,1,3,3] row_mask:0xf bank_mask:0xf")
        a("s_mov_b32 exec_lo, 0x55555555"); a("s_mov_b32 exec_hi, 0x55555555")
        if sbar: a("s_barrier")
        a(f"buffer_store_dwordx4 v[40:43], v25, {WS}, 0 offen sc1")
        a("s_mov_b64 exec, -1")
    else:
        a(f"buffer_store_dwordx2 v[40:41], v25, {WS}, 0 offen sc1")
    stamp(7)
    if fbar and not sbar: a("s_barrier")
    a(f"s_cmp_eq_u32 {WAVE}, 3"); a("s_cbranch_scc0 L_fin")
    a.cond = "F"
    def poll2(nm, base=96):
        for s in range(2):
            a(f"buffer_load_dwordx4 v[{base+4*s}:{base+3+4*s}], v26, {WS}, 0 offen offset:{s*(2048 if pfull else 1024)} sc1", name=f"{nm}{s}")
    if not ackf: poll2("P2")
    gate()
    a.label("L_f_chk")
    tagcheck([17, 19], "v14")
    retry("L_f", fgather)
    a("v_add_f32 v16, v16, v18")
    a("v_add_f32_dpp v16, v16, v16 row_ror:4 row_mask:0xf bank_mask:0xf")
    a("v_add_f32_dpp v16, v16, v16 row_ror:8 row_mask:0xf bank_mask:0xf")
    bf16r("v16", "v16"); a("v_add_f32 v16, v16, v11"); bf16r("v16", "v16"); a("v_mul_f32 v16, v16, v10"); bf16r("v16", "v16")
    if ackf:
        a("s_waitcnt vmcnt(0)")
        poll2("P2")
    if not pipe:
        a("s_waitcnt vmcnt(0)")
        if fine: stamp(4)
        a.label("L_p2_chk")
        tagcheck([96 + i for i in range(8)], "v14", mask="0x3ff")
        retry("L_p2", poll2)
    else:
        a("s_nop 15"); a("s_nop 7")
        poll2("P3", 104)
        a.label("L_p2_chk")
        a("s_waitcnt vmcnt(2)")
        tagcheck([96 + i for i in range(8)], "v14", mask="0x3ff")
        a("s_cbranch_vccz L_p2_ok")
        a("s_mov_b64 exec, vcc"); poll2("R2"); a("s_mov_b64 exec, -1")
        a("s_waitcnt vmcnt(2)")
        tagcheck([104 + i for i in range(8)], "v14", mask="0x3ff")
        a("s_cbranch_vccz L_p2_okb")
        a("s_mov_b64 exec, vcc"); poll2("R3", 104); a("s_mov_b64 exec, -1")
        a(f"s_cmp_eq_u32 {SPIN}, 0"); a("s_cbranch_scc1 L_p2_okb")
        a(f"s_sub_u32 {SPIN}, {SPIN}, 1")
        a("s_branch L_p2_chk")
        a.label("L_p2_okb")
        for i in range(4): a(f"v_add_f32 v{112+i}, v{104+i}, v{108+i}")
        a("s_branch L_p2_sum")
        a.label("L_p2_ok")
    for i in range(4): a(f"v_add_f32 v{112+i}, v{96+i}, v{100+i}")
    a.label("L_p2_sum")
    a("v_permlane16_swap_b32 v112, v113"); a("v_permlane16_swap_b32 v114, v115")
    a("v_add_f32 v112, v112, v113"); a("v_add_f32 v114, v114, v115")
    a("v_permlane32_swap_b32 v112, v114"); a("v_add_f32 v112, v112, v114")
    a("v_add_f32_dpp v112, v112, v112 row_ror:4 row_mask:0xf bank_mask:0xf")
    a("v_add_f32_dpp v112, v112, v112 row_ror:8 row_mask:0xf bank_mask:0xf")
    bf16r("v112", "v112"); a("v_mul_f32 v112, v112, v9"); bf16r("v112", "v112"); a("v_add_f32 v112, v112, v16")
    a("v_cvt_pk_bf16_f32 v112, v112, v112")
    a("s_mov_b32 exec_lo, 0x000f000f"); a("s_mov_b32 exec_hi, 0x000f000f")
    a("global_store_short v12, v112, s[26:27]")
    a("s_cmp_eq_u32 s2, 0"); a("s_cbranch_scc0 L_noep")
    a("s_mov_b64 exec, 1")
    a(f"v_mov_b32 v113, {TAG}"); a("v_mov_b32 v114, 0")
    a(f"buffer_store_dword v113, v114, {WS}, 0 offen sc1")
    a.label("L_noep")
    a("s_mov_b64 exec, -1")
    a.cond = None
    a.label("L_fin")
    if hold:
        if holdwg >= 0: a(f"s_cmp_eq_u32 s2, {holdwg}"); a("s_cbranch_scc0 L_end")
        a.label("L_hold")
        a("s_memrealtime s[98:99]"); a("s_waitcnt lgkmcnt(0)"); a("s_sub_u32 s98, s98, s96"); a(f"s_cmp_lt_u32 s98, {hold}"); a("s_cbranch_scc1 L_hold")
    if stamps:
        stamp(8)
        a("s_waitcnt vmcnt(0)")
        stamp(9)
        a("s_waitcnt lgkmcnt(0)")
        for i in range(10): a(f"v_mov_b32 v{96+i}, s{80+2*i}")
        a("s_getreg_b32 s61, hwreg(HW_REG_HW_ID)"); a("s_lshl_b32 s61, s61, 4"); a(f"s_or_b32 s61, s61, {XCC}")
        a(f"v_mov_b32 v{96+10}, s61"); a(f"v_mov_b32 v{96+11}, {SPIN}")
        a(f"s_lshl_b32 s61, s2, 2"); a(f"s_add_u32 s61, s61, {WAVE}"); a("s_lshl_b32 s61, s61, 6"); a(f"s_add_u32 s61, s61, {STAMP}")
        a("v_mov_b32 v5, s61"); a("s_mov_b64 exec, 1")
        for i in range(3): a(f"buffer_store_dwordx4 v[{96+4*i}:{99+4*i}], v5, {WS}, 0 offen offset:{16*i}")
        if dbg:
            srd(40, "s28", "s29", 256)
            a("v_not_b32 v110, v96"); a("v_mov_b32 v5, 0")
            a("buffer_atomic_umax v110, v5, s[40:43], 0 offen")
            for i in range(10): a(f"buffer_atomic_umax v{96+i}, v5, s[40:43], 0 offen offset:{4+4*i}")
    a.label("L_end")
    a("s_endpgm")
    if local:
        a.label("L_st_far")
        a(f"buffer_store_dword v48, v8, {WS}, 0 offen sc1")
        a("s_branch L_st_done")
    a.raw('.section .rodata,"a"'); a.raw(".p2align 6"); a.raw(f".amdhsa_kernel {NAME}")
    a.raw("  .amdhsa_next_free_vgpr 512"); a.raw("  .amdhsa_next_free_sgpr 102"); a.raw("  .amdhsa_accum_offset 256")
    a.raw("  .amdhsa_group_segment_fixed_size 0"); a.raw("  .amdhsa_kernarg_size 112"); a.raw("  .amdhsa_user_sgpr_count 2")
    a.raw("  .amdhsa_user_sgpr_kernarg_segment_ptr 1"); a.raw("  .amdhsa_system_sgpr_workgroup_id_x 1"); a.raw(".end_amdhsa_kernel")
    return a.text()

def parse(args):
    kw = {}
    for x in args:
        k, v = x.split("=")
        kw[k] = int(v) if v.lstrip('-').isdigit() else (v.replace("+", " ") if v not in ("True", "False") else v == "True")
    return kw
if __name__ == "__main__":
    import build
    out = sys.argv[1]
    open(out, "w").write(gen(**parse(sys.argv[2:])))
    print(build.build(out))
```

```python
import sys, struct
from asmlib import Asm

NAME = "gated_mix__gqa_block_cached__dense_activation_gelu__decode_kernel"
HEADER = open("gated_mix__gqa_block_cached__dense_activation_gelu__decode.s.ref").read().split("; Override launch")[0]


DOC = """
; ---------------------------------------------------------------------------------------------------------------
; ---------------------------------------------------------------------------------------------------------------"""

def f2u(x): return struct.unpack('<I', struct.pack('<f', x))[0]
LOG2E = 1.4426950408889634

QBUF, HBUF, MLBUF, FLBUF, OBUF, FBUF, PBUF, STAMP = 0x10000, 0x30000, 0x40000, 0x48000, 0x50000, 0x90000, 0x100000, 0x400000
RACE = 0xe0000
L_W, L_H, L_WO, L_X, L_ML, L_RED, L_END = 0, 0x8000, 0x10000, 0x14000, 0x16100, 0x17000, 0x19000

def gen(DK=62, DV=6, DE=16, EV=48, kv="nt", wf="nt", stamps=False, wolate=True, MLG=52, spin=0x100000,
        scramble=False, local=True, prepoll=False, flushn=255, slp=0, slpn=8, fbar=True, dbg=False, touch=0, codepf=0, hold=0, holdwg=-1, qx=0, WSP=0, DN=51, DW=56, DS=8, DH=66, spec=False, x4=True, pswz=False, fine=False, warm=0, pfull=True, sbar=True, ackf=True, pipe=True, NC=0, cpf0=True, mlloc=True, pipe1=False, prod=0, pafter=4, nowo=False, now2=False, wopost=False, MLE=0, MLC=0, ph="", xb=False, noqw=False, pre="", DFE=0, DFN=0, DFT=32, pol=-1, dbl=0, ofl="", ewb=0, efl="", fmid=True, trim=True):
    a = Asm()
    a.raw(HEADER + f"; @launch grid=(256,1,1) block=(256,1,1) lds={L_END}")
    a.raw('.amdgcn_target "amdgcn-amd-amdhsa--gfx950"' + DOC)
    a.raw(".text"); a.raw(f".globl {NAME}"); a.raw(".p2align 8"); a.raw(f".type {NAME},@function"); a.raw(f"{NAME}:")
    LS = "" if local else "sc1"
    def stamp(i):
        if stamps: a(f"s_memrealtime s[{80+2*i}:{81+2*i}]")
    WAVE, KVH, BB, SP, RR, TAG, SOFF, PITCH, XCC, REM = "s52", "s53", "s54", "s55", "s57", "s58", "s59", "s60", "s56", "s74"
    SPIN = "s73"
    def srd(base, lo, hi, size):
        a(f"s_mov_b32 s{base}, {lo}"); a(f"s_mov_b32 s{base+1}, {hi}"); a(f"s_mov_b32 s{base+2}, {size}"); a(f"s_mov_b32 s{base+3}, 0x20000")
    def bf16r(dst, src):
        a(f"v_cvt_pk_bf16_f32 {dst}, {src}, {src}"); a(f"v_and_b32 {dst}, 0xffff0000, {dst}")
    WS = "s[48:51]"
    def reduce_rows(v, t, op):
        a(f"v_mov_b32 {t}, {v}"); a(f"v_permlane16_swap_b32 {v}, {t}"); a(f"{op} {v}, {v}, {t}")
        a(f"v_mov_b32 {t}, {v}"); a(f"v_permlane32_swap_b32 {v}, {t}"); a(f"{op} {v}, {v}, {t}")
    def reduce_quad(v, op):
        a(f"{op}_dpp {v}, {v}, {v} quad_perm:[1,0,3,2] row_mask:0xf bank_mask:0xf")
        a(f"{op}_dpp {v}, {v}, {v} quad_perm:[2,3,0,1] row_mask:0xf bank_mask:0xf")
    def tagcheck(regs, t, mask=None):
        a(f"v_xor_b32 {t}, {TAG}, v{regs[0]}")
        for r in regs[1:]:
            a(f"v_bitop3_b32 {t}, {t}, v{r}, {TAG} bitop3:0xf6")
        if mask: a(f"v_and_b32 {t}, {mask}, {t}")
        a(f"v_cmp_ne_u32 vcc, 0, {t}")
    def retry(lbl, reissue, flush=False, sleep=False):
        a(f"s_cbranch_vccz {lbl}_ok")
        a(f"s_cmp_eq_u32 {SPIN}, 0"); a(f"s_cbranch_scc1 {lbl}_ok")
        a(f"s_sub_u32 {SPIN}, {SPIN}, 1")
        if flush and local:
            a(f"s_and_b32 s61, {SPIN}, {flushn}"); a(f"s_cbranch_scc1 {lbl}_nf")
            a("s_waitcnt vmcnt(0)"); a("buffer_wbl2 sc1")
            a.label(f"{lbl}_nf")
        if sleep and slp:
            a("s_bcnt1_i32_b64 s61, vcc"); a(f"s_cmp_le_u32 s61, {slpn}"); a(f"s_cbranch_scc1 {lbl}_ns"); a(f"s_sleep {slp}"); a.label(f"{lbl}_ns")
        old = a.cond; a.cond = "retry" + lbl
        a("s_mov_b64 exec, vcc")
        reissue("R" + lbl)
        a("s_mov_b64 exec, -1")
        a.cond = old
        a("s_waitcnt vmcnt(0)")
        a(f"s_branch {lbl}_chk")
        a.label(f"{lbl}_ok")

    stamp(0)
    if hold: a("s_memrealtime s[96:97]")
    a("s_cmp_ge_u32 s2, 256"); a("s_cbranch_scc1 L_end")
    a("s_load_dwordx16 s[4:19], s[0:1], 0")
    a("s_load_dwordx8 s[20:27], s[0:1], 64")
    a("s_load_dwordx4 s[28:31], s[0:1], 96")
    if scramble:
        a("s_lshr_b32 s3, s2, 3"); a("s_and_b32 s3, s3, 7"); a("s_xor_b32 s2, s2, s3")
    a("v_lshrrev_b32 v4, 6, v0"); a("v_and_b32 v1, 63, v0"); a(f"v_readfirstlane_b32 {WAVE}, v4")
    a(f"s_and_b32 {KVH}, s2, 7"); a(f"s_lshr_b32 {BB}, s2, 5"); a(f"s_bfe_u32 {SP}, s2, 0x20003"); a(f"s_lshr_b32 {RR}, s2, 3")
    a(f"s_lshl_b32 s61, {BB}, 5"); a(f"s_lshl_b32 s62, {KVH}, 2"); a("s_add_u32 s61, s61, s62"); a(f"s_add_u32 s61, s61, {SP}")
    a("s_lshl_b32 s61, s61, 18"); a(f"s_lshl_b32 s62, {WAVE}, 12"); a("s_add_u32 s61, s61, s62")
    a("v_and_b32 v2, 3, v1"); a("v_lshlrev_b32 v2, 4, v2")
    a("v_bfe_u32 v4, v1, 2, 2"); a("v_lshl_add_u32 v2, v4, 8, v2")
    a("v_lshrrev_b32 v4, 4, v1"); a("v_lshl_add_u32 v2, v4, 6, v2")
    a("v_add_u32 v2, s61, v2")
    a("v_lshl_add_u32 v3, v1, 4, s61")
    if ph:
        a("s_mov_b32 s3, 0")
        if "h" in ph: a(f"s_lshl_b32 s3, {BB}, 14")
        if "H" in ph: a(f"s_lshl_b32 s3, {BB}, 15")
        if "l" in ph: a(f"s_and_b32 s62, {BB}, 3"); a("s_lshl_b32 s62, s62, 10"); a("s_or_b32 s3, s3, s62")
        if "s" in ph: a(f"s_lshl_b32 s62, {SP}, 10"); a("s_or_b32 s3, s3, s62")
        if "v" in ph: a(f"s_lshl_b32 s62, {WAVE}, 10"); a("s_or_b32 s3, s3, s62")
        a(f"s_mov_b32 {SOFF}, s3")
    else:
        a(f"s_mov_b32 {SOFF}, 0")
    a("s_mov_b32 s34, 0x4000000"); a("s_mov_b32 s35, 0x20000")

    cur = {"soff": 0}
    kvn = []
    def kvload(which, n, D):
        off = (n >> 2) * 16384; imm = (n & 3) * 1024
        if xb:
            j = n//2; t = j//4
            off = ((t//2)*16 + (t%2)*4 + (n%2)*8)*4096; imm = (j%4)*1024
        if set(ph) & set("lvs"):
            off += imm; imm = 0
        if off != cur["soff"]:
            a(f"s_xor_b32 {SOFF}, s3, {off}" if ph else f"s_mov_b32 {SOFF}, {off}"); cur["soff"] = off
        if D >= 30:
            idx = n + (64 if which == "V" else 0)
            D = D//10 + (1 if (79 - idx) < (D % 10)*8 else 0)
        if D and len(kvn) >= D: a.pace_vm(kvn[-D])
        if which == "K":
            a(f"buffer_load_dwordx4 a[{4*n}:{4*n+3}], v2, s[32:35], {SOFF} offen offset:{imm} {kv}", name=f"K{n}")
        else:
            r = 96 + (n % 40) * 4
            a(f"buffer_load_dwordx4 v[{r}:{r+3}], v3, s[36:39], {SOFF} offen offset:{imm} {kv}", name=f"V{n}")
        kvn.append(f"{which}{n}")

    def consts():
        a(f"s_load_dword {TAG}, s[30:31], 0")
        if touch:
            a(f"s_lshl_b32 s61, {BB}, 5"); a(f"s_lshl_b32 s62, {KVH}, 2"); a("s_add_u32 s61, s61, s62"); a(f"s_add_u32 s61, s61, {SP}"); a("s_lshl_b32 s61, s61, 18")
            a("s_load_dword s100, s[8:9], s61")
            a(f"s_lshl_b32 s61, {KVH}, 19")
            a("s_load_dword s100, s[12:13], s61")
            a("s_load_dword s100, s[26:27], 0")
            if touch > 1:
                a("s_load_dword s100, s[22:23], 0"); a("s_load_dword s100, s[24:25], 0"); a("s_load_dword s100, s[4:5], 0"); a("s_load_dword s100, s[20:21], 0")
        if codepf:
            a("s_getpc_b64 s[62:63]")
            lab = f"L_pc{len(a.lines)}"
            a.label(lab)
            a(f"s_sub_u32 s62, s62, {lab}-{NAME}"); a("s_subb_u32 s63, s63, 0")
            a(f"s_lshl_b32 s61, {RR}, 10"); a(f"s_lshl_b32 s100, {WAVE}, 8"); a("s_add_u32 s61, s61, s100"); a(f"s_min_u32 s61, s61, L_end-{NAME}-252")
            a("v_lshl_add_u32 v5, v1, 2, s61")
            a("global_load_dword v9, v5, s[62:63]")
        srd(36, "s8", "s9", "0x4000000")
        srd(48, "s30", "s31", "0x10000000")
        a("s_mov_b32 s64, 0x22222222"); a("s_mov_b32 s65, 0x22222222")
        a("s_mov_b32 s66, 0x44444444"); a("s_mov_b32 s67, 0x44444444")
        a("s_mov_b32 s68, 0x88888888"); a("s_mov_b32 s69, 0x88888888")
        a("s_mov_b32 s70, 0x05040100"); a("s_mov_b32 s71, 0x07060302")
        a(f"s_mov_b32 s72, {hex(f2u(128**-0.5*LOG2E))}")
        a(f"s_mov_b32 {SPIN}, {spin}")
        a(f"s_getreg_b32 {XCC}, hwreg(HW_REG_XCC_ID, 0, 4)")
        srd(44, "s12", "s13", 4096*512*2)
        a(f"s_lshl_b32 s77, {KVH}, 5"); a(f"s_add_u32 s77, s77, {RR}")
        a("s_lshl_b32 s61, s77, 10"); a(f"s_lshl_b32 s62, {WAVE}, 8"); a("s_add_u32 s61, s61, s62"); a(f"s_add_u32 s61, s61, {OBUF}")
        a("v_lshl_add_u32 v8, v1, 2, s61")
        a(f"s_lshl_b32 s61, {KVH}, 2"); a(f"s_add_u32 s78, s61, {SP}")
        a(f"s_lshr_b32 s61, {SP}, 1"); a("s_lshl_b32 s61, s61, 5"); a(f"s_and_b32 s62, {SP}, 1"); a("s_lshl_b32 s62, s62, 3"); a("s_add_u32 s79, s61, s62")
        a("v_and_b32 v12, 3, v1"); a("v_lshlrev_b32 v12, 1, v12"); a("v_and_b32 v5, 16, v1"); a("v_add_u32 v12, v12, v5")
        a("v_lshrrev_b32 v5, 5, v1"); a("v_add3_u32 v12, v12, v5, s79")
        if "o" in pre:
            a(f"buffer_load_dword v10, v8, {WS}, 0 offen sc1", name="PRE0")
        else:
            a("v_mov_b32 v5, -1")
            a(f"buffer_store_dword v5, v8, {WS}, 0 offen {LS}", name="CLR")
        if "m" in pre:
            a("s_lshl_b32 s61, s77, 7"); a(f"s_add_u32 s61, s61, {MLBUF}"); a("v_mov_b32 v5, s61")
            a(f"buffer_load_dword v10, v5, {WS}, 0 offen sc1", name="PRE1")
    def get_tag():
        a("s_waitcnt lgkmcnt(0)")
        a(f"s_add_u32 {TAG}, {TAG}, 1")
    def wo_dma():
        a("v_lshrrev_b32 v5, 3, v1"); a(f"s_lshl_b32 s61, {WAVE}, 5"); a("v_add_u32 v5, s61, v5"); a("v_lshlrev_b32 v5, 10, v5")
        a(f"s_and_b32 s61, {WAVE}, 1"); a("s_lshl_b32 s61, s61, 2")
        a("v_and_b32 v6, 7, v1"); a("v_xor_b32 v6, s61, v6"); a("v_lshl_add_u32 v5, v6, 4, v5"); a("v_xor_b32 v6, 32, v5")
        a("s_lshl_b32 s61, s78, 17"); a(f"s_lshl_b32 s62, {BB}, 7"); a("s_add_u32 s61, s61, s62")
        a(f"s_lshl_b32 s63, {WAVE}, 12")
        for i in range(0 if nowo else 4):
            a(f"s_add_u32 m0, s63, {L_WO + i*1024}")
            a(f"buffer_load_dwordx4 v{5+(i&1)}, s[44:47], s61 offen {wf} lds", name=f"WO{i}")
            if i < 3: a("s_add_u32 s61, s61, 8192")
    def gate_loads():
        a(f"s_lshl_b32 s61, {BB}, 10"); a("v_lshl_add_u32 v5, v1, 4, s61")
        a("global_load_dwordx4 v[208:211], v5, s[4:5]", name="GX")
        a("v_lshlrev_b32 v5, 4, v1")
        a("global_load_dwordx4 v[212:215], v5, s[24:25]", name="GW")
        a("v_and_b32 v5, 0x3ff, v12")
        a("global_load_ushort v11, v5, s[22:23]", name="GB2")
    def gate():
        for i in range(4):
            a(f"v_lshlrev_b32 v{48+2*i}, 16, v{208+i}"); a(f"v_and_b32 v{49+2*i}, 0xffff0000, v{208+i}")
            a(f"v_lshlrev_b32 v{56+2*i}, 16, v{212+i}"); a(f"v_and_b32 v{57+2*i}, 0xffff0000, v{212+i}")
        for i in range(8): a(f"v_mul_f32 v{48+i}, v{48+i}, v{56+i}")
        for i in range(4): a(f"v_cvt_pk_bf16_f32 v{56+i}, v{48+2*i}, v{49+2*i}")
        for i in range(4):
            a(f"v_lshlrev_b32 v{48+2*i}, 16, v{56+i}"); a(f"v_and_b32 v{49+2*i}, 0xffff0000, v{56+i}")
        for i in range(4): a(f"v_add_f32 v{48+i}, v{48+i}, v{52+i}")
        a("v_add_f32 v48, v48, v50"); a("v_add_f32 v49, v49, v51"); a("v_add_f32 v48, v48, v49")
        reduce_quad("v48", "v_add_f32")
        a("v_add_f32_dpp v48, v48, v48 row_ror:4 row_mask:0xf bank_mask:0xf")
        a("v_add_f32_dpp v48, v48, v48 row_ror:8 row_mask:0xf bank_mask:0xf")
        reduce_rows("v48", "v49", "v_add_f32")
        bf16r("v48", "v48")
        a(f"v_mul_f32 v48, {hex(f2u(-LOG2E))}, v48"); a("v_exp_f32 v48, v48"); a("v_add_f32 v48, 1.0, v48"); a("v_rcp_f32 v48, v48")
        bf16r("v9", "v48")
        a("v_sub_f32 v10, 1.0, v9"); bf16r("v10", "v10")
        a("v_lshlrev_b32 v11, 16, v11")
    def qgather(nm):
        a(f"buffer_load_dwordx4 v[80:83], v15, {WS}, 0 offen sc1", name=nm+"0")
        a(f"buffer_load_dwordx4 v[84:87], v15, {WS}, 0 offen offset:16 sc1", name=nm+"1")
    def qaddr():
        a(f"s_lshl_b32 s61, {BB}, 14"); a(f"s_lshl_b32 s62, {KVH}, 11"); a("s_add_u32 s61, s61, s62"); a(f"s_add_u32 s61, s61, {QBUF}")
        a("v_bfe_u32 v15, v1, 2, 2"); a("v_lshlrev_b32 v15, 9, v15")
        a("v_lshrrev_b32 v6, 4, v1"); a("v_lshl_add_u32 v15, v6, 7, v15")
        a("v_and_b32 v7, 3, v1"); a("v_lshl_add_u32 v15, v7, 5, v15"); a("v_add_u32 v15, s61, v15")

    NV0 = 16
    def kphase(p0):
        D = {"Q": DK, "W": DW or DK, "N": DN or DK, "S": DS or DK, "H": DH or DK}[p0]
        p = "Q" if p0 in "SH" else p0
        DR = D
        if D >= 30: D = (D + 9)//10
        st = {"n": NC}
        def K(upto=None, cnt=None):
            end = upto if upto is not None else st["n"] + cnt
            while st["n"] < end:
                n = st["n"]
                if n < 64: kvload("K", n, DR)
                else: kvload("V", n - 64, DR)
                st["n"] += 1
        a("s_waitcnt lgkmcnt(0)") if p != "Q" else None
        if p == "Q":
            a(f"s_lshl_b32 s61, {KVH}, 3"); a(f"s_add_u32 s61, s61, {RR}")
            a(f"s_sub_u32 s62, s2, {23*8}")
            a(f"s_cmp_lt_u32 {RR}, 16"); a("s_cselect_b32 s76, s61, s62")
            a(f"s_movk_i32 s61, 8192"); a(f"s_movk_i32 s62, 3584"); a(f"s_cselect_b32 {PITCH}, s61, s62")
            a(f"s_mov_b32 s61, {512*4096*2}"); a(f"s_mov_b32 s62, {512*1792*2}"); a("s_cselect_b32 s42, s61, s62"); a("s_mov_b32 s43, 0x20000")
            a("s_lshl_b32 s76, s76, 6")
            a("v_lshrrev_b32 v4, 3, v1"); a(f"s_lshl_b32 s61, {WAVE}, 7"); a("v_add_u32 v4, s61, v4")
            a(f"v_mul_u32_u24 v5, {PITCH}, v4")
            a("v_and_b32 v4, 7, v1"); a("v_bfe_u32 v6, v1, 4, 1"); a("v_lshlrev_b32 v6, 1, v6"); a("v_xor_b32 v4, v4, v6")
            a("s_lshl_b32 s61, s76, 1"); a("v_add_u32 v5, s61, v5"); a("v_lshl_add_u32 v5, v4, 4, v5"); a("v_xor_b32 v6, 64, v5")
            a(f"s_lshl_b32 s62, {PITCH}, 3"); a(f"s_lshl_b32 s63, {WAVE}, 14"); a("s_mov_b32 s61, 0")
            a(f"s_cmp_lt_u32 {RR}, 16")
            a("s_waitcnt lgkmcnt(0)")
            a("s_cselect_b32 s40, s10, s16"); a("s_cselect_b32 s41, s11, s17")
            a("s_mov_b32 s32, s6"); a("s_mov_b32 s33, s7")
            for n in range(16):
                a(f"s_add_u32 m0, s63, {L_W + n*1024}")
                a(f"buffer_load_dwordx4 v{5+(n&1)}, s[40:43], s61 offen {wf} lds", name=f"W{n}")
                if n < 15: a("s_add_u32 s61, s61, s62")
            a(f"s_lshl_b32 s61, {WAVE}, 11"); a("v_lshl_add_u32 v7, v1, 4, s61")
            a(f"s_mul_i32 s61, {WAVE}, 2080"); a(f"s_add_u32 m0, s61, {L_X}")
            a("global_load_lds_dwordx4 v7, s[4:5]", name="X0")
            a(f"s_add_u32 m0, s61, {L_X+16}")
            a("global_load_lds_dwordx4 v7, s[4:5] offset:1024", name="X1")
        else:
            a("s_mov_b32 s32, s6"); a("s_mov_b32 s33, s7")
        if p == "Q":
            K(upto=max(NC, 6))
            a("s_min_u32 s61, s76, 1728"); a(f"s_lshl_b32 s62, {WAVE}, 4"); a("s_add_u32 s61, s61, s62"); a("s_lshl_b32 s61, s61, 1")
            a("v_lshrrev_b32 v7, 4, v1"); a("v_lshl_add_u32 v4, v7, 3, s61")
            a("global_load_dwordx2 v[14:15], v4, s[18:19]", name="B1")
            consts()
            a("v_lshlrev_b32 v4, 3, v7"); a("v_bfe_u32 v5, v1, 2, 2"); a("v_add_u32 v4, v4, v5"); a("v_lshlrev_b32 v4, 7, v4")
            a("v_and_b32 v5, 3, v1"); a("v_lshl_add_u32 v4, v5, 3, v4")
            a("v_bfe_u32 v5, v1, 3, 2"); a(f"v_xor_b32 v5, {WAVE}, v5"); a("v_lshl_add_u32 v4, v5, 5, v4")
            a("v_and_b32 v5, 7, v1"); a("v_mul_u32_u24 v6, 1040, v5"); a("v_lshl_add_u32 v6, v7, 4, v6")
            a(f"v_add_u32 v6, {L_X}, v6")
            a(f"s_cmp_lt_u32 {RR}, 16")
            a(f"s_movk_i32 s61, 16384"); a("s_movk_i32 s62, 7168"); a("s_cselect_b32 s61, s61, s62")
            a(f"s_mov_b32 s62, {QBUF}"); a(f"s_mov_b32 s63, {HBUF}"); a("s_cselect_b32 s62, s62, s63")
            a("s_lshl_b32 s63, s76, 2"); a("s_add_u32 s62, s62, s63"); a(f"s_lshl_b32 s63, {WAVE}, 6"); a("s_add_u32 s62, s62, s63")
            a("v_mul_u32_u24 v13, s61, v5"); a("v_lshl_add_u32 v13, v7, 4, v13"); a("v_add_u32 v13, s62, v13")
            if "q" in pre and p0 != "H":
                a(f"buffer_load_dwordx4 v[48:51], v13, {WS}, 0 offen sc1", name="PRE2")
            K(upto=NC + D + 2)
            get_tag()
            a.wait_vm("X1")
            a("s_barrier")
            K(cnt=2)
            for s in range(16):
                a(f"ds_read_b64_tr_b16 v[{96+4*s}:{97+4*s}], v4 offset:{L_W + s*4096}")
                a(f"ds_read_b64_tr_b16 v[{98+4*s}:{99+4*s}], v4 offset:{L_W + s*4096 + 512}")
                a(f"ds_read_b128 v[{160+4*s}:{163+4*s}], v6 offset:{s*64}")
            K(cnt=1)
            a("s_waitcnt lgkmcnt(0)")
            for s in range(16):
                acc = 224 + 4*(s & 1)
                a(f"v_mfma_f32_16x16x32_bf16 v[{acc}:{acc+3}], v[{96+4*s}:{99+4*s}], v[{160+4*s}:{163+4*s}], " + ("0" if s < 2 else f"v[{acc}:{acc+3}]"))
            K(cnt=1)
            a.cond = "QH"
            a(f"v_mov_b32 v237, {TAG}"); a(f"v_mov_b32 v239, {TAG}")
            for r in range(4): a(f"v_add_f32 v{224+r}, v{224+r}, v{228+r}")
            a(f"s_cmp_lt_u32 {RR}, 16"); a("s_cbranch_scc0 L_h_epi"+p0)
            a("v_cvt_pk_bf16_f32 v236, v224, v225"); a("v_cvt_pk_bf16_f32 v238, v226, v227")
            a("s_mov_b32 exec_lo, 0x00ff00ff"); a("s_mov_b32 exec_hi, 0x00ff00ff")
            a(f"buffer_store_dwordx4 v[236:239], v13, {WS}, 0 offen {LS}")
            a("s_branch L_qh_pub"+p0)
            a.label("L_h_epi"+p0)
            a.wait_vm("B1")
            a("v_lshlrev_b32 v232, 16, v14"); a("v_and_b32 v233, 0xffff0000, v14"); a("v_lshlrev_b32 v234, 16, v15"); a("v_and_b32 v235, 0xffff0000, v15")
            k1 = -2.0 * (2.0/3.141592653589793)**0.5 * LOG2E
            for r in range(4): bf16r(f"v{224+r}", f"v{224+r}")
            for r in range(4): a(f"v_add_f32 v{224+r}, v{224+r}, v{232+r}")
            for r in range(4): bf16r(f"v{224+r}", f"v{224+r}")
            for r in range(4): a(f"v_mul_f32 v{232+r}, v{224+r}, v{224+r}")
            a(f"v_mov_b32 v236, {hex(f2u(k1))}")
            for r in range(4): a(f"v_fmamk_f32 v{232+r}, v{232+r}, {hex(f2u(k1*0.044715))}, v236")
            for r in range(4): a(f"v_mul_f32 v{232+r}, v{232+r}, v{224+r}")
            for r in range(4): a(f"v_exp_f32 v{232+r}, v{232+r}")
            for r in range(4): a(f"v_add_f32 v{232+r}, 1.0, v{232+r}")
            for r in range(4): a(f"v_rcp_f32 v{232+r}, v{232+r}")
            for r in range(4): a(f"v_mul_f32 v{224+r}, v{224+r}, v{232+r}")
            a("v_cvt_pk_bf16_f32 v236, v224, v225"); a("v_cvt_pk_bf16_f32 v238, v226, v227")
            a("s_mov_b32 exec_lo, 0x00ff00ff"); a("s_mov_b32 exec_hi, 0x00ff00ff")
            a(f"buffer_store_dwordx4 v[236:239], v13, {WS}, 0 offen sc1")
            a.label("L_qh_pub"+p0)
            a("s_mov_b64 exec, -1")
            a.cond = None
            a.label("L_qh_done"+p0)
            stamp(1)
            K(upto=max(24, st["n"]))
        else:
            K(upto=D)
            consts()
            stamp(1)
            K(upto=18)
            if p == "W":
                srd(40, "s20", "s21", 1792*512*2)
                a("v_lshrrev_b32 v5, 3, v1"); a(f"s_lshl_b32 s61, {WAVE}, 6"); a("v_add_u32 v5, s61, v5"); a("v_lshlrev_b32 v5, 10, v5")
                a("v_and_b32 v4, 7, v1"); a("v_bfe_u32 v6, v1, 4, 1"); a("v_lshlrev_b32 v6, 1, v6"); a("v_xor_b32 v4, v4, v6")
                a("v_lshl_add_u32 v5, v4, 4, v5"); a("v_xor_b32 v6, 64, v5")
                a(f"s_sub_u32 s76, {RR}, 16")
                a("s_lshl_b32 s61, s76, 18"); a(f"s_lshl_b32 s62, {KVH}, 7"); a("s_add_u32 s61, s61, s62")
                a(f"s_lshl_b32 s63, {WAVE}, 13")
                for i in range(0 if now2 else 8):
                    a(f"s_add_u32 m0, s63, {L_W + i*1024}")
                    a(f"buffer_load_dwordx4 v{5+(i&1)}, s[40:43], s61 offen {wf} lds", name=f"W2_{i}")
                    if i < 7: a("s_add_u32 s61, s61, 8192")
                a("v_lshrrev_b32 v4, 4, v1"); a("v_lshlrev_b32 v4, 3, v4"); a("v_bfe_u32 v5, v1, 2, 2"); a("v_add_u32 v4, v4, v5")
                a("v_lshlrev_b32 v4, 7, v4"); a("v_and_b32 v5, 3, v1"); a("v_lshl_add_u32 v4, v5, 3, v4")
                a("v_bfe_u32 v5, v1, 3, 2"); a(f"v_xor_b32 v5, {WAVE}, v5"); a("v_lshl_add_u32 v4, v5, 5, v4")
            K(upto=24)
            get_tag()
        if not wolate: wo_dma()
        K(upto=max(30, st["n"]))
        if "o" in pre:
            a("v_mov_b32 v5, -1")
            a(f"buffer_store_dword v5, v8, {WS}, 0 offen {LS}", name="CLR")
        if "f" in pre and p == "W":
            a(f"s_lshl_b32 s61, {KVH}, 15"); a("s_lshl_b32 s62, s76, 12"); a("s_add_u32 s61, s61, s62")
            a(f"s_lshl_b32 s62, {WAVE}, 10"); a("s_add_u32 s61, s61, s62"); a(f"s_add_u32 s61, s61, {FBUF}")
            a("v_lshl_add_u32 v5, v1, 4, s61")
            a(f"buffer_load_dwordx4 v[48:51], v5, {WS}, 0 offen sc1", name="PRE3")
        K(upto=max(44, st["n"]))
        qaddr()
        if p == "W":
            K(upto=56)
            a("s_lshl_b32 s61, s76, 10"); a(f"s_lshl_b32 s62, {WAVE}, 8"); a("s_add_u32 s61, s61, s62"); a(f"s_add_u32 s61, s61, {HBUF}")
            a("v_and_b32 v7, 7, v1"); a("v_mul_u32_u24 v7, 7168, v7"); a("v_lshl_add_u32 v7, v6, 5, v7"); a("v_add_u32 v7, s61, v7")
            def hgather(nm):
                for i in range(4):
                    a(f"buffer_load_dwordx4 v[{16+4*i}:{19+4*i}], v7, {WS}, 0 offen offset:{(i>>1)*128 + (i&1)*16} sc1", name=f"{nm}{i}")
            hgather("HG")
            a(f"s_lshl_b32 s61, {WAVE}, 11"); a(f"s_add_u32 s61, s61, {L_H}"); a("v_lshl_add_u32 v5, v1, 4, s61")
            a("v_lshlrev_b32 v13, 4, v1")
        K(upto=64)
        qgather("QG")
        if p == "W":
            K(upto=56 + D)
            a.wait_vm("HG3")
            a.label("L_h_chk")
            tagcheck([17 + 2*i for i in range(8)], "v14")
            retry("L_h", hgather)
            for i in range(1, 8): a(f"v_mov_b32 v{16+i}, v{16+2*i}")
            a("ds_write_b128 v5, v[16:19]"); a("ds_write_b128 v5, v[20:23] offset:1024")
            K(cnt=1)
            a("s_waitcnt lgkmcnt(0)")
            a("s_barrier")
            for s in range(8):
                a(f"ds_read_b64_tr_b16 v[{192+4*s}:{193+4*s}], v4 offset:{L_W + s*4096}")
                a(f"ds_read_b64_tr_b16 v[{194+4*s}:{195+4*s}], v4 offset:{L_W + s*4096 + 512}")
                a(f"ds_read_b128 v[{224+4*s}:{227+4*s}], v13 offset:{L_H + s*1024}")
            a(f"s_lshl_b32 s61, {KVH}, 15"); a("s_lshl_b32 s62, s76, 12"); a("s_add_u32 s61, s61, s62")
            a(f"s_lshl_b32 s62, {WAVE}, 7"); a("s_add_u32 s61, s61, s62"); a(f"s_add_u32 s61, s61, {FBUF}")
            a("v_and_b32 v7, 7, v1"); a("v_lshlrev_b32 v7, 9, v7"); a("v_lshl_add_u32 v7, v6, 5, v7"); a("v_add_u32 v7, s61, v7")
            for r in range(4): a(f"v_mov_b32 v{89+2*r}, {TAG}")
            K(cnt=1)
            a("s_waitcnt lgkmcnt(0)")
            for s in range(8):
                a(f"v_mfma_f32_16x16x32_bf16 v[16:19], v[{192+4*s}:{195+4*s}], v[{224+4*s}:{227+4*s}], " + ("0" if s == 0 else "v[16:19]"))
            K(cnt=1)
            for r in range(4): a(f"v_mov_b32 v{88+2*r}, v{16+r}")
            a("s_mov_b32 exec_lo, 0x00ff00ff"); a("s_mov_b32 exec_hi, 0x00ff00ff")
            a(f"buffer_store_dwordx4 v[88:91], v7, {WS}, 0 offen {LS}")
            a(f"buffer_store_dwordx4 v[92:95], v7, {WS}, 0 offen offset:16 {LS}")
            a("s_mov_b64 exec, -1")
        K(upto=64 + NV0)

    if cpf0:
        a.c("pull this kernel's code into the L2 (each wave 256 bytes)")
        a("s_getpc_b64 s[62:63]")
        a.label("L_pc0")
        a(f"s_sub_u32 s62, s62, L_pc0-{NAME}"); a("s_subb_u32 s63, s63, 0")
        a(f"s_lshl_b32 s61, {RR}, 10"); a(f"s_lshl_b32 s100, {WAVE}, 8"); a("s_add_u32 s61, s61, s100"); a(f"s_min_u32 s61, s61, L_end-{NAME}-252")
        a("v_lshl_add_u32 v5, v1, 2, s61")
        a("global_load_dword v9, v5, s[62:63]", name="CPF")
    if NC:
        a("s_waitcnt lgkmcnt(0)")
        a("s_mov_b32 s32, s6"); a("s_mov_b32 s33, s7")
        for n in range(NC): kvload("K", n, 0)
    vm0 = list(a.vm); kv0 = list(kvn); so0 = cur["soff"]
    a(f"s_cmp_ge_u32 s2, {23*8+28}"); a("s_cbranch_scc1 L_pathN")
    a(f"s_cmp_ge_u32 {RR}, 23"); a("s_cbranch_scc1 L_pathH")
    a(f"s_cmp_ge_u32 {RR}, 16"); a("s_cbranch_scc1 L_pathW")
    a(f"s_cmp_ge_u32 {RR}, 8"); a("s_cbranch_scc1 L_pathN")
    a(f"s_cmp_eq_u32 {RR}, 3"); a("s_cbranch_scc1 L_pathS")
    for p in ["Q"] + (["S"] if DS else []) + (["H"] if DH else []) + ["W", "N"]:
        if p != "Q": a.label(f"L_path{p}")
        a.c({"Q": "K phase, q tile", "S": "K phase, q tile whose wq lines answer slowly (deeper queue)", "H": "K phase, FFN hidden tile", "W": "K phase, second FFN product", "N": "K phase, no side job"}[p])
        a.vm = list(vm0); kvn[:] = kv0; cur["soff"] = so0
        kphase(p)
        if p != "N": a("s_branch L_join")
    a.label("L_join")
    a.vm = [("QG0", True, None), ("QG1", True, None)] + [(f"V{i}", True, None) for i in range(NV0)]
    nv = NV0
    def V(D):
        nonlocal nv
        kvload("V", nv, D); nv += 1

    a.c("---------------- QK ----------------")
    a.wait_vm("QG1")
    stamp(2)
    a.label("L_q_chk")
    tagcheck([81, 83, 85, 87], "v14")
    retry("L_q", qgather, flush=True)
    for i in range(4): a(f"v_mov_b32 v{40+i}, v{80+2*i}")
    def qk_mfma(u):
        for t in range(4):
            d = 48 + (u & 1)*16 + 4*t; k = 4*(4*u + t)
            a(f"v_mfma_f32_16x16x32_bf16 v[{d}:{d+3}], a[{k}:{k+3}], v[40:43], 0")
    def qk_red(u):
        base = 48 + (u & 1)*16
        for step in range(1, 4):
            for t in range(4):
                c = (t + step) & 3
                d = base + 4*t
                dst = f"v{16+u}" if (t == 0 and step == 3) else f"v{d+t}"
                a(f"v_add_f32_dpp {dst}, v{d+c}, v{d+t} quad_perm:[{c},{c},{c},{c}] row_mask:0xf bank_mask:0xf")
        for t in range(1, 4):
            a(f"v_cndmask_b32 v{16+u}, v{16+u}, v{base+5*t}, s[{62+2*t}:{63+2*t}]")
    qk_mfma(0)
    for u in range(16):
        if u < 15: qk_mfma(u+1)
        qk_red(u)
        if u % 2 == 1: V(DV)
    a.c("---------------- softmax ----------------")
    a("v_max3_f32 v48, v16, v17, v18")
    for i in range(6): a(f"v_max3_f32 v48, v48, v{19+2*i}, v{20+2*i}")
    a("v_max_f32 v48, v48, v31")
    reduce_quad("v48", "v_max_f32")
    reduce_rows("v48", "v49", "v_max_f32")
    a("v_mul_f32 v48, s72, v48")
    for u in range(16): a(f"v_fma_f32 v{16+u}, v{16+u}, s72, -v48")
    V(DV)
    for u in range(16): a(f"v_exp_f32 v{16+u}, v{16+u}")
    for i in range(8): a(f"v_add_f32 v{52+i}, v{16+2*i}, v{17+2*i}")
    for i in range(4): a(f"v_add_f32 v{52+i}, v{52+i}, v{56+i}")
    a("v_add_f32 v52, v52, v54"); a("v_add_f32 v53, v53, v55"); a("v_add_f32 v49, v52, v53")
    V(DV)
    reduce_quad("v49", "v_add_f32")
    reduce_rows("v49", "v50", "v_add_f32")
    a(f"s_lshl_b32 s61, {WAVE}, 9"); a(f"s_add_u32 s61, s61, {L_ML}")
    a("v_lshl_add_u32 v50, v1, 3, s61"); a("v_lshlrev_b32 v51, 3, v1"); a(f"v_add_u32 v51, {L_ML}, v51")
    a("ds_write_b64 v50, v[48:49]")
    V(DV)
    a("s_waitcnt lgkmcnt(0)")
    a("s_barrier")
    for w in range(4): a(f"ds_read_b64 v[{52+2*w}:{53+2*w}], v51 offset:{w*512}")
    a("v_lshrrev_b32 v4, 4, v1"); a("v_lshlrev_b32 v4, 5, v4"); a("v_bfe_u32 v6, v1, 3, 1"); a("v_lshl_add_u32 v4, v6, 3, v4")
    a("v_bfe_u32 v6, v1, 2, 1"); a("v_add_u32 v4, v4, v6"); a("v_lshlrev_b32 v4, 7, v4")
    a("v_and_b32 v6, 3, v1"); a("v_lshl_add_u32 v4, v6, 3, v4")
    a(f"s_and_b32 s61, {WAVE}, 2"); a("v_bfe_u32 v6, v1, 3, 2"); a("v_xor_b32 v6, s61, v6"); a("v_lshl_add_u32 v4, v6, 5, v4")
    a(f"v_add_u32 v4, {L_WO}, v4"); a("v_xor_b32 v13, 32, v4")
    def wo_frags():
        for s in range(4):
            for ct in range(2):
                r = 64 + (ct*4 + s)*4
                ad = "v4" if ct == 0 else "v13"
                a(f"ds_read_b64_tr_b16 a[{r}:{r+1}], {ad} offset:{s*256}")
                a(f"ds_read_b64_tr_b16 a[{r+2}:{r+3}], {ad} offset:{s*256 + 2048}")
    V(DV)
    a("s_waitcnt lgkmcnt(0)")
    if not wolate: wo_frags()
    a("v_max3_f32 v60, v52, v54, v56"); a("v_max_f32 v60, v60, v58")
    a("v_sub_f32 v48, v48, v60"); a("v_exp_f32 v48, v48")
    for w in range(4): a(f"v_sub_f32 v{52+2*w}, v{52+2*w}, v60")
    for w in range(4): a(f"v_exp_f32 v{52+2*w}, v{52+2*w}")
    a("v_mul_f32 v62, v52, v53")
    for w in range(1, 4): a(f"v_fmac_f32 v62, v{52+2*w}, v{53+2*w}")
    a(f"s_cmp_eq_u32 {WAVE}, 2"); a("s_cbranch_scc0 L_ml_done")
    a.cond = "W0"
    a(f"v_mov_b32 v61, {TAG}"); a(f"v_mov_b32 v63, {TAG}")
    a(f"v_writelane_b32 v60, {XCC}, 16")
    a("s_lshl_b32 s61, s77, 7"); a(f"s_add_u32 s61, s61, {MLBUF}"); a("v_lshl_add_u32 v5, v1, 2, s61")
    a("s_mov_b64 exec, 0x11111")
    a(f"buffer_store_dwordx4 v[60:63], v5, {WS}, 0 offen " + (LS if mlloc else "sc1"))
    a("s_mov_b64 exec, -1")
    a.cond = None
    a.label("L_ml_done")
    for u in range(16): a(f"v_mul_f32 v{16+u}, v{16+u}, v48")
    for t in range(8): a(f"v_cvt_pk_bf16_f32 v{32+t}, v{16+2*t}, v{17+2*t}")
    V(DV)
    stamp(4)
    a.c("---------------- tail addresses ----------------")
    a(f"s_and_b32 s61, {WAVE}, 1"); a("s_lshl_b32 s61, s61, 4"); a(f"s_lshl_b32 s62, {KVH}, 5"); a("s_add_u32 s61, s61, s62")
    a("v_lshrrev_b32 v6, 4, v1"); a("v_and_b32 v7, 15, v1")
    if prod == 1:
        a("s_lshl_b32 s62, s61, 10"); a(f"s_lshl_b32 s63, {SP}, 6"); a("s_add_u32 s62, s62, s63"); a(f"s_add_u32 s62, s62, {OBUF}")
        a("v_lshlrev_b32 v24, 10, v7"); a("v_lshl_add_u32 v24, v6, 4, v24"); a("v_add_u32 v24, s62, v24")
    elif prod == 2:
        a("s_lshl_b32 s62, s61, 10"); a(f"s_lshl_b32 s63, {SP}, 8"); a("s_add_u32 s62, s62, s63"); a(f"s_add_u32 s62, s62, {OBUF}")
        a("v_lshlrev_b32 v24, 10, v7"); a("v_lshl_add_u32 v24, v6, 4, v24"); a("v_add_u32 v24, s62, v24")
        a("s_lshl_b32 s62, s77, 10"); a(f"s_lshl_b32 s63, {WAVE}, 6"); a("s_add_u32 s62, s62, s63"); a(f"s_add_u32 s62, s62, {OBUF}")
        a("v_lshlrev_b32 v8, 8, v6"); a("v_lshl_add_u32 v8, v7, 2, v8"); a("v_add_u32 v8, s62, v8")
    else:
        a(f"s_lshl_b32 s62, {KVH}, 15"); a(f"s_add_u32 s76, s62, {OBUF}")
        a(f"s_lshl_b32 s62, {SP}, 13"); a(f"s_and_b32 s63, {WAVE}, 1"); a("s_lshl_b32 s63, s63, 12"); a("s_add_u32 s62, s62, s63"); a("s_add_u32 s62, s62, s76")
        a("v_lshl_add_u32 v24, v1, 4, s62")
        a(f"s_lshr_b32 s62, {RR}, 4"); a("s_lshl_b32 s62, s62, 12"); a(f"s_lshl_b32 s63, {WAVE}, 10"); a("s_add_u32 s62, s62, s63")
        a(f"s_and_b32 s63, {RR}, 15"); a("s_lshl_b32 s63, s63, 4"); a("s_add_u32 s62, s62, s63"); a("s_add_u32 s62, s62, s76")
        a("v_lshlrev_b32 v8, 13, v6"); a("v_bfe_u32 v7, v1, 2, 2"); a("v_lshl_add_u32 v8, v7, 8, v8")
        a("v_and_b32 v7, 3, v1"); a("v_lshl_add_u32 v8, v7, 2, v8"); a("v_add_u32 v8, s62, v8")
    a("s_lshl_b32 s62, s61, 7"); a(f"s_lshl_b32 s63, {SP}, 4"); a("s_add_u32 s62, s62, s63"); a(f"s_add_u32 s62, s62, {MLBUF}")
    a("v_lshl_add_u32 v30, v6, 9, s62")
    a(f"s_lshl_b32 s62, {KVH}, 12"); a(f"s_add_u32 s62, s62, {MLBUF+64}"); a("v_and_b32 v29, 31, v1"); a("v_lshl_add_u32 v29, v29, 7, s62")
    a(f"s_and_b32 s61, {WAVE}, 1"); a("s_lshl_b32 s61, s61, 15"); a(f"s_lshl_b32 s62, {BB}, 16"); a("s_add_u32 s61, s61, s62")
    a(f"s_lshr_b32 s62, {WAVE}, 1"); a("s_lshl_b32 s62, s62, 12"); a("s_add_u32 s61, s61, s62")
    if pfull:
        a("s_lshl_b32 s62, s78, 7"); a("s_add_u32 s61, s61, s62"); a(f"s_add_u32 s61, s61, {PBUF}")
        a("v_lshlrev_b32 v25, 13, v6"); a("v_and_b32 v7, 15, v1"); a("v_lshl_add_u32 v25, v7, 3, v25"); a("v_add_u32 v25, s61, v25")
        if pswz:
            a("v_bfe_u32 v7, v25, 12, 4"); a("v_lshlrev_b32 v7, 8, v7"); a("v_xor_b32 v25, v25, v7")
        a("s_lshr_b32 s61, s77, 1"); a("s_lshl_b32 s61, s61, 12"); a(f"s_and_b32 s62, {SP}, 1"); a("s_lshl_b32 s62, s62, 6"); a("s_add_u32 s61, s61, s62"); a(f"s_add_u32 s61, s61, {PBUF}")
        a("v_lshrrev_b32 v26, 2, v1"); a("v_lshlrev_b32 v26, 7, v26"); a("v_and_b32 v7, 3, v1"); a("v_lshl_add_u32 v26, v7, 4, v26"); a("v_add_u32 v26, s61, v26")
        if pol >= 0:
            for reg, cg in (("v25", BB), ("v26", KVH)):
                a(f"v_and_b32 v7, 0x7e000, {reg}"); a(f"v_add_u32 {reg}, {reg}, v7")
                a(f"s_lshr_b32 s61, {cg}, 2"); a(f"s_xor_b32 s61, s61, {pol & 1}")
                if pol >= 2: a(f"s_mov_b32 s61, {pol & 1}")
                if dbl and (reg == "v25" or dbl == 2): a("s_mov_b32 s61, 0")
                a("s_lshl_b32 s61, s61, 13"); a(f"v_add_u32 {reg}, s61, {reg}")
    else:
        a("s_lshl_b32 s62, s78, 6"); a("s_add_u32 s61, s61, s62"); a(f"s_add_u32 s61, s61, {PBUF}")
        a("v_lshlrev_b32 v25, 13, v6"); a("v_bfe_u32 v7, v1, 3, 1"); a("v_lshl_add_u32 v25, v7, 11, v25")
        a("v_and_b32 v7, 7, v1"); a("v_lshl_add_u32 v25, v7, 3, v25"); a("v_add_u32 v25, s61, v25")
        if pswz:
            a("v_bfe_u32 v7, v25, 11, 4"); a("v_lshlrev_b32 v7, 7, v7"); a("v_xor_b32 v25, v25, v7")
        a("s_lshl_b32 s61, s77, 11"); a(f"s_add_u32 s61, s61, {PBUF}"); a("v_lshl_add_u32 v26, v1, 4, s61")
    a(f"s_lshl_b32 s61, {WAVE}, 11"); a(f"s_add_u32 s61, s61, {L_RED}"); a("v_lshl_add_u32 v27, v1, 2, s61")
    a(f"s_lshl_b32 s61, {WAVE}, 9"); a(f"s_add_u32 s61, s61, {L_RED}"); a("v_lshl_add_u32 v28, v1, 2, s61")
    a(f"s_lshl_b32 s61, {KVH}, 15"); a(f"s_lshl_b32 s62, {BB}, 9"); a("s_add_u32 s61, s61, s62"); a(f"s_add_u32 s61, s61, {FBUF}")
    a("v_bfe_u32 v31, v1, 2, 2"); a("v_lshlrev_b32 v31, 12, v31"); a("v_lshl_add_u32 v31, v12, 3, v31"); a("v_add_u32 v31, s61, v31")
    a(f"s_lshl_b32 s61, {BB}, 10"); a(f"s_lshl_b32 s62, {KVH}, 7"); a("s_add_u32 s61, s61, s62"); a("v_lshl_add_u32 v12, v12, 1, s61")
    a(f"s_and_b32 s75, {TAG}, 0x3ff")
    if dbl: a("s_movk_i32 s101, 8192")
    V(DV)

    def mlgather(nm):
        for r in range(4):
            a(f"buffer_load_dwordx4 v[{80+4*r}:{83+4*r}], v30, {WS}, 0 offen offset:{r*128} sc1", name=f"{nm}{r}")
        a(f"buffer_load_dwordx2 v[20:21], v29, {WS}, 0 offen sc1", name=f"{nm}4")
    def fgather(nm):
        a(f"s_movk_i32 s61, {4*4096}")
        a(f"buffer_load_dwordx2 v[16:17], v31, {WS}, 0 offen sc1", name=nm+"0")
        a("s_and_b32 exec_lo, exec_lo, 0x0fff0fff"); a("s_and_b32 exec_hi, exec_hi, 0x0fff0fff")
        a(f"s_cbranch_execz L_fg_skip{nm}")
        a(f"buffer_load_dwordx2 v[18:19], v31, {WS}, s61 offen sc1", name=nm+"1")
        a.label(f"L_fg_skip{nm}")
        a("s_mov_b64 exec, -1")
    PB = 192
    def poll1(nm, PB=PB):
        for s in range(4):
            a(f"buffer_load_dwordx4 v[{PB+4*s}:{PB+3+4*s}], v24, {WS}, 0 offen offset:{s*[1024,256,64][prod]} sc1", name=f"{nm}{s}")
    def flgather(nm):
        a(f"buffer_load_dwordx2 v[20:21], v7, {WS}, 0 offen sc1", name=nm+"0")
    def ml_check():
        a.c("(max, sum) of the partners: also vouches for their slot clears; form the combine weights")
        a.wait_vm("ML4")
        a.label("L_ml_chk")
        tagcheck([81 + 2*i for i in range(8)] + [21], "v14")
        retry("L_ml", mlgather, flush=True)
        a(f"s_mov_b32 {REM}, 0")
        if local:
            a(f"v_cmp_ne_u32 vcc, {XCC}, v20")
            a("s_cbranch_vccz L_samedie")
            a.c("the group spans dies: write back, say so, wait until every wave of the group did")
            a.cond = "rem"
            a(f"s_mov_b32 {REM}, 1")
            a("s_waitcnt vmcnt(0)"); a("buffer_wbl2 sc1"); a("s_waitcnt vmcnt(0)")
            a("s_lshl_b32 s61, s77, 4"); a(f"s_lshl_b32 s62, {WAVE}, 2"); a("s_add_u32 s61, s61, s62"); a(f"s_add_u32 s61, s61, {FLBUF}")
            a("v_mov_b32 v7, s61"); a(f"v_mov_b32 v14, {TAG}")
            a("s_mov_b64 exec, 1")
            a(f"buffer_store_dword v14, v7, {WS}, 0 offen sc1")
            a("s_mov_b64 exec, -1")
            a(f"s_lshl_b32 s61, {KVH}, 9"); a(f"s_add_u32 s61, s61, {FLBUF}"); a("v_lshl_add_u32 v7, v1, 3, s61")
            flgather("FL")
            a("s_waitcnt vmcnt(0)")
            a.label("L_fl_chk")
            tagcheck([20, 21], "v14")
            retry("L_fl", flgather)
            a.cond = None
            a.label("L_samedie")
        a("v_max3_f32 v14, v80, v84, v88"); a("v_max_f32 v14, v14, v92")
        for r in range(4): a(f"v_sub_f32 v{80+4*r}, v{80+4*r}, v14")
        for r in range(4): a(f"v_exp_f32 v{80+4*r}, v{80+4*r}")
        a("v_mul_f32 v14, v80, v82")
        for r in range(1, 4): a(f"v_fmac_f32 v14, v{80+4*r}, v{82+4*r}")
        a("v_rcp_f32 v14, v14")
        a("v_mov_b32 v42, 0xfffffc00")
        for r in range(4): a(f"v_mul_f32 v{80+4*r}, v{80+4*r}, v14")
    a.c("---------------- PV ----------------")
    gathered = 0
    for tau in range(8):
        vb = 96 + (tau % 5)*32
        for w in range(4):
            needi = 8*tau + 4 + w
            while nv < 64 and nv <= needi + ((DV if DV < 30 else (DV+9)//10) if nv < EV else DE) and (nv - 40) < 8*tau:
                V(DV if nv < EV else DE)
                if DFE and nv == DFE:
                    a(f"buffer_load_dwordx2 v[22:23], v29, {WS}, 0 offen sc1", name="DF")
                if MLE and nv == MLE: mlgather("ML")
                if MLE and nv == MLC: ml_check()
                if nv == MLG:
                    gathered = 1
                    assert tau >= 4
                    a(f"s_cmp_eq_u32 {WAVE}, 3"); a("s_cbranch_scc0 L_fg_done")
                    a.cond = "F"
                    a("v_mov_b32 v18, 0"); a(f"v_mov_b32 v19, {TAG}")
                    fgather("FG")
                    gate_loads()
                    if warm:
                        a(f"buffer_load_dwordx4 v[216:219], v26, {WS}, 0 offen " + ("sc1" if warm == 1 else "sc1 nt"))
                        a(f"buffer_load_dwordx4 v[220:223], v26, {WS}, 0 offen offset:{2048 if pfull else 1024} " + ("sc1" if warm == 1 else "sc1 nt"))
                    a.cond = None
                    a.label("L_fg_done")
                    if not MLE: mlgather("ML")
            if nv == 64 and gathered == 1:
                gathered = 2
                assert tau >= 5
                if wolate and not wopost:
                    if DFE:
                        a.wait_vm("DF")
                        a(f"v_cmp_ne_u32 vcc, {TAG}, v23"); a("s_bcnt1_i32_b32 s100, vcc_lo")
                        a(f"s_cmp_gt_u32 s100, {DFN}"); a("s_cbranch_scc0 L_wo_now")
                        a.cond = "wo"; a("s_mov_b64 exec, 1"); poll1("DUM"); a("s_mov_b64 exec, -1"); a.cond = None
                        a("s_branch L_wo_skip")
                        a.label("L_wo_now")
                        wo_dma()
                        a.label("L_wo_skip")
                    else: wo_dma()
                if not MLE: ml_check()
            if prepoll and tau == 7 and w == 0:
                assert gathered == 2
                poll1("P0")
            if w == 0:
                for x in range(4):
                    a(f"v_mov_b32_dpp v{44+x}, v{32+tau} quad_perm:[{x},{x},{x},{x}] row_mask:0xf bank_mask:0xf")
            a.wait_vm(f"V{needi}")
            if tau == 7 and w == 3: stamp(5)
            ra = vb + 4*w; rb = vb + 4*(4 + w)
            def perm(m):
                a(f"v_perm_b32 v{48+4*m+w}, v{rb+(m>>1)}, v{ra+(m>>1)}, s{70+(m&1)}")
            def mf(m):
                a(f"v_mfma_f32_16x16x32_bf16 a[{32+4*m}:{35+4*m}], v[44:47], v[{48+4*m}:{51+4*m}], " + ("0" if tau == 0 else f"a[{32+4*m}:{35+4*m}]"))
            if w < 3:
                for m in range(8): perm(m)
            else:
                perm(0); perm(1); perm(2)
                for m in range(8):
                    mf(m)
                    if m + 3 < 8: perm(m + 3)
    assert nv == 64 and gathered == 2
    a.c("---------------- tail ----------------")
    def sentinel(PB=PB):
        if trim:
            for k in range(5): a(f"v_max3_u32 v{72+k}, v{PB+3*k}, v{PB+3*k+1}, v{PB+3*k+2}")
            a("v_max3_u32 v72, v72, v73, v74"); a(f"v_max3_u32 v75, v75, v76, v{PB+15}")
            a("v_max_u32 v14, v72, v75")
            a("v_cmp_eq_u32 vcc, -1, v14")
            return
        a(f"v_max3_u32 v14, v{PB}, v{PB+1}, v{PB+2}")
        for i in range(6): a(f"v_max3_u32 v14, v14, v{PB+3+2*i}, v{PB+4+2*i}")
        a(f"v_max_u32 v14, v14, v{PB+15}")
        a("v_cmp_eq_u32 vcc, -1, v14")
    for m in range(0, 8, 2):
        a(f"ds_write2st64_b32 v27, a{32+4*m}, a{36+4*m} offset0:{m} offset1:{m+1}")
    a("s_waitcnt lgkmcnt(0)")
    a("s_barrier")
    for w in range(4): a(f"ds_read2st64_b32 v[{48+2*w}:{49+2*w}], v28 offset0:{w*8} offset1:{w*8+1}")
    a(f"s_cmp_eq_u32 {REM}, 0")
    a("s_waitcnt lgkmcnt(0)")
    if trim:
        a("v_pk_add_f32 v[48:49], v[48:49], v[50:51]"); a("v_pk_add_f32 v[52:53], v[52:53], v[54:55]"); a("v_pk_add_f32 v[48:49], v[48:49], v[52:53]")
    else:
        a("v_add_f32 v48, v48, v50"); a("v_add_f32 v49, v49, v51"); a("v_add_f32 v52, v52, v54"); a("v_add_f32 v53, v53, v55")
        a("v_add_f32 v48, v48, v52"); a("v_add_f32 v49, v49, v53")
    a("v_cvt_pk_bf16_f32 v48, v48, v49"); a("v_min_u32 v48, -2, v48")
    if local:
        a("s_cbranch_scc0 L_st_far")
        a(f"buffer_store_dword v48, v8, {WS}, 0 offen")
        a.label("L_st_done")
    else:
        a(f"buffer_store_dword v48, v8, {WS}, 0 offen sc1")
    stamp(6)
    a.c("hop 1: wait for the 16 partial o rows, multiply by the wo tile")
    if DFE:
        a(f"s_cmp_gt_u32 s100, {DFN}"); a("s_cbranch_scc0 L_wo_have")
        a.label("L_wo_wait")
        a(f"buffer_load_dwordx4 v[{PB}:{PB+3}], v24, {WS}, 0 offen sc1")
        a("s_waitcnt vmcnt(0)")
        a(f"v_cmp_eq_u32 vcc, -1, v{PB}"); a("s_bcnt1_i32_b64 s61, vcc")
        a(f"s_cmp_le_u32 s61, {DFT}"); a("s_cbranch_scc1 L_wo_go")
        a(f"s_cmp_eq_u32 {SPIN}, 0"); a("s_cbranch_scc1 L_wo_go")
        a(f"s_sub_u32 {SPIN}, {SPIN}, 1")
        a("s_branch L_wo_wait")
        a.label("L_wo_go")
        wo_dma()
        a.label("L_wo_have")
    if wopost:
        wo_dma(); a("s_waitcnt vmcnt(0)")
    if pafter:
        a("s_waitcnt vmcnt(0)" if pafter == 4 else "s_waitcnt vmcnt(1)")
        a("s_barrier")
        if pafter in (1, 4): poll1("P1")
        wo_frags()
        if pafter == 3: a("s_waitcnt vmcnt(0)")
        if pafter in (2, 3): poll1("P1")
    else:
        if prod and prepoll:
            a("s_waitcnt vmcnt(1)")
            sentinel()
            a("s_or_b32 vcc_lo, vcc_lo, 1")
            a("s_mov_b64 exec, vcc")
        poll1("P1")
        if prod and prepoll: a("s_mov_b64 exec, -1")
        if wolate:
            a("s_waitcnt vmcnt(5)")
            a("s_barrier")
            wo_frags()
    def p1_mfma(PB=PB):
        for s in range(4):
            for ct in range(2):
                acc = 64 + 4*ct; r = 64 + (ct*4 + s)*4
                a(f"v_mfma_f32_16x16x32_bf16 v[{acc}:{acc+3}], v[{PB+4*s}:{PB+3+4*s}], a[{r}:{r+3}], " + ("0" if s == 0 else f"v[{acc}:{acc+3}]"))
    if not pipe1:
        a("s_waitcnt vmcnt(0) lgkmcnt(0)")
        stamp(3)
        a.label("L_p1_chk")
        if spec: p1_mfma()
        sentinel()
        retry("L_p1", poll1, sleep=True)
        if fine: stamp(1)
        if not spec: p1_mfma()
    else:
        PC = 224
        poll1("P1b", PC)
        a("s_waitcnt lgkmcnt(0)")
        stamp(3)
        a.label("L_p1_chk")
        a("s_waitcnt vmcnt(4)")
        sentinel()
        a("s_cbranch_vccz L_p1_ok")
        a("s_mov_b64 exec, vcc"); poll1("R1"); a("s_mov_b64 exec, -1")
        a("s_waitcnt vmcnt(4)")
        sentinel(PC)
        a("s_cbranch_vccz L_p1_okb")
        a("s_mov_b64 exec, vcc"); poll1("R1b", PC); a("s_mov_b64 exec, -1")
        a(f"s_cmp_eq_u32 {SPIN}, 0"); a("s_cbranch_scc1 L_p1_okb")
        a(f"s_sub_u32 {SPIN}, {SPIN}, 1")
        a("s_branch L_p1_chk")
        a.label("L_p1_okb")
        if fine: stamp(1)
        p1_mfma(PC)
        a("s_branch L_p1_sum")
        a.label("L_p1_ok")
        if fine: stamp(1)
        p1_mfma()
        a.label("L_p1_sum")
    a("v_mul_f32 v40, v64, v80"); a("v_mul_f32 v41, v68, v80")
    for r in range(1, 4):
        a(f"v_fmac_f32 v40, v{64+r}, v{80+4*r}"); a(f"v_fmac_f32 v41, v{68+r}, v{80+4*r}")
    a("v_and_or_b32 v40, v40, v42, s75"); a("v_and_or_b32 v41, v41, v42, s75")
    if sbar and not x4: a("s_barrier")
    if x4:
        a("v_mov_b32_dpp v42, v40 quad_perm:[1,1,3,3] row_mask:0xf bank_mask:0xf")
        a("v_mov_b32_dpp v43, v41 quad_perm:[1,1,3,3] row_mask:0xf bank_mask:0xf")
        a("s_mov_b32 exec_lo, 0x55555555"); a("s_mov_b32 exec_hi, 0x55555555")
        if sbar: a("s_barrier")
        a(f"buffer_store_dwordx4 v[40:43], v25, {WS}, 0 offen sc1")
        if dbl: a(f"buffer_store_dwordx4 v[40:43], v25, {WS}, s101 offen sc1")
        a("s_mov_b64 exec, -1")
    else:
        a(f"buffer_store_dwordx2 v[40:41], v25, {WS}, 0 offen sc1")
    stamp(7)
    a.c("hop 2 (wave 3): gate, FFN sum, sum of the 32 heads, output")
    if ewb:
        a(f"s_lshl_b32 s61, {WAVE}, 5"); a(f"s_add_u32 s61, s61, {RR}"); a("s_cmp_eq_u32 s61, 31"); a("s_cbranch_scc0 L_noewb")
        if ewb == 2: a("s_waitcnt vmcnt(0)")
        a("buffer_wbl2 sc1")
        a.label("L_noewb")
    if fbar and not sbar: a("s_barrier")
    a(f"s_cmp_eq_u32 {WAVE}, 3"); a("s_cbranch_scc0 L_fin")
    a.cond = "F"
    def poll2(nm, base=96):
        for s in range(2):
            a(f"buffer_load_dwordx4 v[{base+4*s}:{base+3+4*s}], v26, {WS}, 0 offen offset:{s*(2048 if pfull else 1024)} sc1", name=f"{nm}{s}")
    if not ackf: poll2("P2")
    if dbl == 2:
        a("s_lshr_b32 s61, s77, 6"); a("s_lshl_b32 s61, s61, 14"); a("s_and_b32 s62, s77, 63"); a("s_lshl_b32 s62, s62, 7"); a("s_add_u32 s61, s61, s62")
        a(f"s_add_u32 s61, s61, {RACE}"); a("s_add_u32 s62, s61, 8192")
        a(f"s_mov_b32 s40, {TAG}"); a(f"s_mov_b32 s41, {TAG}")
        a(f"s_buffer_load_dword s40, {WS}, s61"); a(f"s_buffer_load_dword s41, {WS}, s62")
    gate()
    def ffn():
        a.label("L_f_chk")
        tagcheck([17, 19], "v14")
        retry("L_f", fgather)
        a("v_add_f32 v16, v16, v18")
        a("v_add_f32_dpp v16, v16, v16 row_ror:4 row_mask:0xf bank_mask:0xf")
        a("v_add_f32_dpp v16, v16, v16 row_ror:8 row_mask:0xf bank_mask:0xf")
        bf16r("v16", "v16"); a("v_add_f32 v16, v16, v11"); bf16r("v16", "v16"); a("v_mul_f32 v16, v16, v10"); bf16r("v16", "v16")
    if not fmid: ffn()
    if dbl == 2:
        a("s_waitcnt lgkmcnt(1)")
        a(f"s_cmp_eq_u32 s40, {TAG}"); a("s_cselect_b32 s61, 8192, 0"); a("v_add_u32 v26, s61, v26")
        if stamps: a("s_mov_b32 s100, s61")
    if ackf:
        a("s_waitcnt vmcnt(0)")
        poll2("P2")
    if not pipe:
        a("s_waitcnt vmcnt(0)")
        if fine: stamp(4)
        a.label("L_p2_chk")
        tagcheck([96 + i for i in range(8)], "v14", mask="0x3ff")
        retry("L_p2", poll2)
    else:
        if fmid: ffn()
        else: a("s_nop 15"); a("s_nop 7")
        poll2("P3", 104)
        def chk2(base):
            for k in range(4): a(f"v_bitop3_b32 v{116+k}, v{base+2*k}, v{base+2*k+1}, {TAG} bitop3:0x7e")
            a("v_or3_b32 v116, v116, v117, v118")
            a(f"v_pk_add_f32 v[112:113], v[{base}:{base+1}], v[{base+4}:{base+5}]")
            a("v_bitop3_b32 v116, v116, v119, v120 bitop3:0xa8")
            a(f"v_pk_add_f32 v[114:115], v[{base+2}:{base+3}], v[{base+6}:{base+7}]")
            a("v_cmp_ne_u32 vcc, 0, v116")
        if trim:
            a("v_mov_b32 v120, 0x3ff")
            a.label("L_p2_chk")
            a("s_waitcnt vmcnt(2)")
            chk2(96)
            a("s_cbranch_vccz L_p2_sum")
            a("s_mov_b64 exec, vcc"); poll2("R2"); a("s_mov_b64 exec, -1")
            a("s_waitcnt vmcnt(2)")
            chk2(104)
            a("s_cbranch_vccz L_p2_sum")
            a("s_mov_b64 exec, vcc"); poll2("R3", 104); a("s_mov_b64 exec, -1")
            a(f"s_cmp_eq_u32 {SPIN}, 0"); a("s_cbranch_scc1 L_p2_sum")
            a(f"s_sub_u32 {SPIN}, {SPIN}, 1")
            a("s_branch L_p2_chk")
            a.label("L_p2_sum")
    if not (trim and pipe):
        if pipe:
            a.label("L_p2_chk")
            a("s_waitcnt vmcnt(2)")
            tagcheck([96 + i for i in range(8)], "v14", mask="0x3ff")
            a("s_cbranch_vccz L_p2_ok")
            a("s_mov_b64 exec, vcc"); poll2("R2"); a("s_mov_b64 exec, -1")
            a("s_waitcnt vmcnt(2)")
            tagcheck([104 + i for i in range(8)], "v14", mask="0x3ff")
            a("s_cbranch_vccz L_p2_okb")
            a("s_mov_b64 exec, vcc"); poll2("R3", 104); a("s_mov_b64 exec, -1")
            a(f"s_cmp_eq_u32 {SPIN}, 0"); a("s_cbranch_scc1 L_p2_okb")
            a(f"s_sub_u32 {SPIN}, {SPIN}, 1")
            a("s_branch L_p2_chk")
            a.label("L_p2_okb")
            for i in range(4): a(f"v_add_f32 v{112+i}, v{104+i}, v{108+i}")
            a("s_branch L_p2_sum")
            a.label("L_p2_ok")
        for i in range(4): a(f"v_add_f32 v{112+i}, v{96+i}, v{100+i}")
        a.label("L_p2_sum")
    a("v_permlane16_swap_b32 v112, v113"); a("v_permlane16_swap_b32 v114, v115")
    a("v_add_f32 v112, v112, v113"); a("v_add_f32 v114, v114, v115")
    a("v_permlane32_swap_b32 v112, v114"); a("v_add_f32 v112, v112, v114")
    a("v_add_f32_dpp v112, v112, v112 row_ror:4 row_mask:0xf bank_mask:0xf")
    a("v_add_f32_dpp v112, v112, v112 row_ror:8 row_mask:0xf bank_mask:0xf")
    bf16r("v112", "v112"); a("v_mul_f32 v112, v112, v9"); bf16r("v112", "v112"); a("v_add_f32 v112, v112, v16")
    a("v_cvt_pk_bf16_f32 v112, v112, v112")
    a("s_mov_b32 exec_lo, 0x000f000f"); a("s_mov_b32 exec_hi, 0x000f000f")
    a(f"global_store_short v12, v112, s[26:27] {ofl}")
    a("s_cmp_eq_u32 s2, 0"); a("s_cbranch_scc0 L_noep")
    a("s_mov_b64 exec, 1")
    a(f"v_mov_b32 v113, {TAG}"); a("v_mov_b32 v114, 0")
    a(f"buffer_store_dword v113, v114, {WS}, 0 offen {efl}")
    a.label("L_noep")
    a("s_mov_b64 exec, -1")
    a.cond = None
    a.label("L_fin")
    if hold:
        if holdwg >= 0: a(f"s_cmp_eq_u32 s2, {holdwg}"); a("s_cbranch_scc0 L_end")
        a.label("L_hold")
        a("s_memrealtime s[98:99]"); a("s_waitcnt lgkmcnt(0)"); a("s_sub_u32 s98, s98, s96"); a(f"s_cmp_lt_u32 s98, {hold}"); a("s_cbranch_scc1 L_hold")
    if stamps:
        stamp(8)
        a("s_waitcnt vmcnt(0)")
        stamp(9)
        a("s_waitcnt lgkmcnt(0)")
        for i in range(10): a(f"v_mov_b32 v{96+i}, s{80+2*i}")
        a("s_getreg_b32 s61, hwreg(HW_REG_HW_ID)"); a("s_lshl_b32 s61, s61, 4"); a(f"s_or_b32 s61, s61, {XCC}")
        a(f"v_mov_b32 v{96+10}, s61"); a(f"v_mov_b32 v{96+11}, {SPIN}")
        a(f"s_lshl_b32 s61, s2, 2"); a(f"s_add_u32 s61, s61, {WAVE}"); a("s_lshl_b32 s61, s61, 6"); a(f"s_add_u32 s61, s61, {STAMP}")
        a("v_mov_b32 v5, s61"); a("s_mov_b64 exec, 1")
        for i in range(3): a(f"buffer_store_dwordx4 v[{96+4*i}:{99+4*i}], v5, {WS}, 0 offen offset:{16*i}")
        if dbg:
            srd(40, "s28", "s29", 256)
            a("v_not_b32 v110, v96"); a("v_mov_b32 v5, 0")
            a("buffer_atomic_umax v110, v5, s[40:43], 0 offen")
            for i in range(10): a(f"buffer_atomic_umax v{96+i}, v5, s[40:43], 0 offen offset:{4+4*i}")
    a.label("L_end")
    a("s_endpgm")
    if local:
        a.label("L_st_far")
        a(f"buffer_store_dword v48, v8, {WS}, 0 offen sc1")
        a("s_branch L_st_done")
    a.raw('.section .rodata,"a"'); a.raw(".p2align 6"); a.raw(f".amdhsa_kernel {NAME}")
    a.raw("  .amdhsa_next_free_vgpr 512"); a.raw("  .amdhsa_next_free_sgpr 102"); a.raw("  .amdhsa_accum_offset 256")
    a.raw("  .amdhsa_group_segment_fixed_size 0"); a.raw("  .amdhsa_kernarg_size 112"); a.raw("  .amdhsa_user_sgpr_count 2")
    a.raw("  .amdhsa_user_sgpr_kernarg_segment_ptr 1"); a.raw("  .amdhsa_system_sgpr_workgroup_id_x 1"); a.raw(".end_amdhsa_kernel")
    return a.text()

def parse(args):
    kw = {}
    for x in args:
        k, v = x.split("=")
        kw[k] = int(v) if v.lstrip('-').isdigit() else (v.replace("+", " ") if v not in ("True", "False") else v == "True")
    return kw
if __name__ == "__main__":
    import build
    out = sys.argv[1]
    open(out, "w").write(gen(**parse(sys.argv[2:])))
    print(build.build(out))
```
